```python
import torch

def _softmax(x, axis=-1):
    return torch.softmax(x, dim=axis)
def _gelu(x):
    return torch.nn.functional.gelu(x, approximate="tanh")
def _silu(x):
    return torch.nn.functional.silu(x)
def _sigmoid(x):
    return torch.sigmoid(x)
def _layernorm(x, axis=-1, eps=1e-5):
    m = x.mean(dim=axis, keepdim=True)
    v = x.var(dim=axis, keepdim=True, unbiased=False)
    return (x - m) / torch.sqrt(v + eps)
def _scatter_add(tgt, idx, src, axis=0):
    return tgt.clone().index_add_(axis, idx, src)
def _segment_sum(src, seg, n):
    out = torch.zeros((n,) + src.shape[1:], dtype=src.dtype)
    return out.index_add_(0, seg, src)
def _pad(x, pw):
    flat = tuple(v for pair in reversed(pw) for v in pair)
    return torch.nn.functional.pad(x, flat)

kernel_name = 'standalone__kv_cache_quant_int4_int2_kv_with_per_channel_or_per_token_scales__decode'

def setup_inputs():

    _w = (lambda a: (lambda t: t.to(torch.bfloat16) if t.is_floating_point() else t)(torch.as_tensor(a)))
    B = 2
    Sq = 1
    Skv = 32768
    Hq = 32
    Hkv = 8
    Dh = 128
    bits = 3
    G = 32
    if G <= 0 or G >= Skv:
        G = max(1, Skv // 2)
    Skv = (Skv // G) * G
    ngk = Skv // G
    qmax = (1 << bits) - 1
    return {
        "q": _w((lambda *s: torch.randn(*s, dtype=torch.bfloat16) * 1.6)(B, Hq, Sq, Dh)),
        "qk": _w(torch.randint(0, qmax + 1, (B, Hkv, Skv, Dh)).to(torch.int32)),
        "qv": _w(torch.randint(0, qmax + 1, (B, Hkv, Skv, Dh)).to(torch.int32)),
        "k_scales": _w(torch.abs((lambda *s: torch.randn(*s, dtype=torch.bfloat16) * 1.6)(B, Hkv, ngk, Dh)) * 0.05 + 0.02),
        "k_zeros": _w((lambda *s: torch.randn(*s, dtype=torch.bfloat16) * 1.6)(B, Hkv, ngk, Dh) + float(qmax) / 2.0),
        "v_scales": _w(torch.abs((lambda *s: torch.randn(*s, dtype=torch.bfloat16) * 0.05)(B, Hkv, Skv, 1)) * 0.05 + 0.02),
        "v_zeros": _w((lambda *s: torch.randn(*s, dtype=torch.bfloat16) * 0.05)(B, Hkv, Skv, 1) + float(qmax) / 2.0),
    }

def reference(q, qk, qv, k_scales, k_zeros, v_scales, v_zeros):
    B, Hq, Sq, Dh = q.shape
    Hkv, Skv = qk.shape[1], qk.shape[2]
    ngk = k_scales.shape[2]
    G = Skv // ngk
    ks = (lambda x, n, axis: torch.repeat_interleave(x, n, dim=axis))(k_scales, G, axis=2)
    kz = (lambda x, n, axis: torch.repeat_interleave(x, n, dim=axis))(k_zeros, G, axis=2)
    k = ((lambda x, dt: x.to(dt))(qk, q.dtype) - kz) * ks
    v = ((lambda x, dt: x.to(dt))(qv, q.dtype) - v_zeros) * v_scales
    rep = Hq // Hkv
    if rep > 1:
        k = (lambda x, n, axis: torch.repeat_interleave(x, n, dim=axis))(k, rep, axis=1)
        v = (lambda x, n, axis: torch.repeat_interleave(x, n, dim=axis))(v, rep, axis=1)
    scale = float(Dh) ** -0.5
    logits = torch.einsum("bhqd,bhkd->bhqk", q, k) * scale
    p = _softmax(logits, axis=-1)
    o = torch.einsum("bhqk,bhkd->bhqd", p, v)
    return o
```

```python
import struct, sys, argparse

NAME = "standalone__kv_cache_quant_int4_int2_kv_with_per_channel_or_per_token_scales__decode"
HEADER = """; Kernarg layout for this problem (80 bytes, ptrs only, base s[0:1]):
"""

def f32hex(x):
    return "0x%08x" % struct.unpack("<I", struct.pack("<f", x))[0]

RING, LOG, KS, KZ, VS, VZ, MX, FLAG = 0, 65536, 98304, 114688, 131072, 135168, 139264, 139520
LDS_BYTES = 139776

def gen(W=20, kflags="nt", vflags="nt", sflags="nt", stamp=False, kname=None, standalone=True):
    kname = kname or NAME + "_kernel"
    L = []
    A = L.append
    lab = lambda s: f"{kname[-24:]}_{s}".replace("__", "_").lstrip("_") if False else f"L{abs(hash(kname)) % 100000}_{s}"
    c2 = f32hex((128 ** -0.5) * 1.4426950408889634)

    A(f".globl {kname}\n.p2align 8\n.type {kname},@function\n{kname}:")
    A(f"  s_cmp_ge_u32 s2, 256\n  s_cbranch_scc1 {lab('end')}")
    if stamp: A("  s_memrealtime s[60:61]")
    A("  s_load_dwordx16 s[4:19], s[0:1], 0")
    A("  s_load_dwordx4 s[20:23], s[0:1], 64")
    A("  v_lshrrev_b32 v1, 6, v0")
    A("  v_and_b32 v0, 63, v0                    ; lane")
    A("  v_readfirstlane_b32 s3, v1")
    A("  v_lshrrev_b32 v5, 5, v0")
    A("  s_cmp_lg_u32 s3, 0")
    A(f"  s_cbranch_scc1 {lab('cons')}")
    A("  s_setprio 3")
    A("  v_xor_b32 v1, v0, v5")
    A("  v_lshlrev_b32 v1, 4, v1")
    A("  v_xor_b32 v2, 64, v1")
    A("  v_xor_b32 v3, 0x80, v1")
    A("  v_xor_b32 v4, 0xc0, v1")
    A("  s_lshl_b32 s28, s2, 20")
    A("  s_mov_b32 s26, 0x100000")
    A("  s_mov_b32 s27, 0x20000")
    A("  s_mov_b32 s30, 0")
    nb0 = 15 + W
    A(f"  s_mov_b32 s31, {nb0 >> 2}")
    A("  s_mov_b32 s33, 0x100000")
    A("  s_waitcnt lgkmcnt(0)")
    A("  s_add_u32 s24, s6, s28")
    A("  s_addc_u32 s25, s7, 0")
    def loop(label, flags):
        A(f"{label}:")
        A("  s_and_b32 m0, s30, 0xffff")
        for i in range(4):
            A(f"  s_waitcnt vmcnt({W-1})")
            if i == (nb0 & 3):
                A("  s_sub_u32 s31, s31, 1")
                A(f"  s_cbranch_scc0 {label}_nb")
                A("  s_barrier")
                A("  s_mov_b32 s31, 3")
                A(f"{label}_nb:")
            A(f"  buffer_load_dwordx4 v{1+i}, s[24:27], s30 offen offset:{i*1024} {flags} lds")
        A("  s_add_u32 s30, s30, 0x1000")
        A("  s_cmp_lt_u32 s30, s33")
        A(f"  s_cbranch_scc1 {label}")
    if kflags == vflags:
        loop(lab("ld"), kflags)
        A("  s_cmp_ge_u32 s30, 0x200000")
        A(f"  s_cbranch_scc1 {lab('ldend')}")
        A("  s_add_u32 s24, s8, s28")
        A("  s_addc_u32 s25, s9, 0")
        A("  s_sub_u32 s24, s24, 0x100000")
        A("  s_subb_u32 s25, s25, 0")
        A("  s_mov_b32 s26, 0x200000")
        A("  s_mov_b32 s33, 0x200000")
        for i in range(4): A(f"  v_lshlrev_b32 v{1+i}, 4, v0")
        A(f"  s_branch {lab('ld')}")
    else:
        loop(lab("ld"), kflags)
        A("  s_add_u32 s24, s8, s28")
        A("  s_addc_u32 s25, s9, 0")
        A("  s_mov_b32 s30, 0")
        for i in range(4): A(f"  v_lshlrev_b32 v{1+i}, 4, v0")
        loop(lab("ldv"), vflags)
    A(f"{lab('ldend')}:")
    pdone = (2047 - 15 - W) // 16
    for p in range(pdone + 1, 128):
        A(f"  s_waitcnt vmcnt({16*(127-p)})")
        A("  s_barrier")
    if stamp:
        A("  s_memrealtime s[62:63]\n  s_getreg_b32 s64, hwreg(HW_REG_XCC_ID)\n  s_waitcnt lgkmcnt(0)")
        A("  s_mul_i32 s65, s2, 5\n  s_lshl_b32 s65, s65, 4\n  s_add_u32 s65, s65, 0x200000")
        A("  v_mov_b32 v0, s60\n  v_mov_b32 v1, s62\n  v_mov_b32 v2, s64\n  v_mov_b32 v3, 0\n  v_mov_b32 v4, s65")
        A("  s_mov_b64 exec, 1\n  global_store_dwordx4 v4, v[0:3], s[22:23]")
    A("  s_endpgm")

    vI, vQ, vL16 = 1, 2, 3
    aK = [4, 5, 6, 7]
    aS, aZ, aL, vM = 8, 9, 10, 11
    aV, aP, aVS, vLs = 12, 13, 14, 15
    QF = 16
    KR = 32
    KSr = 48
    KZr = 56
    OA = 64
    OB = 72
    ACC = 80
    T0, T1, T2, T3 = 92, 93, 94, 95
    A(f"{lab('cons')}:")
    A("  s_sub_u32 s3, s3, 1")
    A(f"  v_and_b32 v{vI}, 15, v0")
    A(f"  v_lshrrev_b32 v{vQ}, 4, v0")
    A(f"  v_lshlrev_b32 v{vL16}, 4, v0")
    A(f"  v_and_b32 v{T0}, 3, v{vI}               ; h = j&3")
    A(f"  v_bfe_u32 v{T1}, v{vI}, 2, 1            ; hfb")
    A(f"  v_lshlrev_b32 v{T2}, 4, v{vQ}           ; q*16")
    A(f"  v_lshl_add_u32 v{T2}, v{T1}, 7, v{T2}   ; hfb*128 + q*16")
    A(f"  v_lshl_add_u32 v{T3}, v{T0}, 8, v{T2}")
    A(f"  v_add_u32 v{aS}, {KS}, v{T2}")
    A("  s_lshr_b32 s50, s2, 4                   ; pair")
    A("  s_and_b32 s51, s2, 15                   ; split")
    A("  s_lshl_b32 s52, s50, 10")
    A("  s_lshl_b32 s53, s2, 14")
    A("  s_lshl_b32 s54, s2, 12")
    A("  s_lshl_b32 s55, s3, 10                  ; w*1024")
    A("  s_mov_b32 s26, 0x4000\n  s_mov_b32 s27, 0x20000")
    A("  s_mov_b32 s30, 0x4000\n  s_mov_b32 s31, 0x20000")
    A("  s_mov_b32 s34, 0x4000\n  s_mov_b32 s35, 0x20000")
    A("  s_mov_b32 s38, 0x1000\n  s_mov_b32 s39, 0x20000")
    A("  s_mov_b32 s42, 0x1000\n  s_mov_b32 s43, 0x20000")
    A("  s_waitcnt lgkmcnt(0)")
    A("  s_mov_b32 s24, s4\n  s_mov_b32 s25, s5")
    A(f"  buffer_load_dwordx4 v[{KR}:{KR+3}], v{T3}, s[24:27], s52 offen")
    A(f"  buffer_load_dwordx4 v[{KR+4}:{KR+7}], v{T3}, s[24:27], s52 offen offset:64")
    A("  s_add_u32 s28, s10, s53\n  s_addc_u32 s29, s11, 0")
    A("  s_add_u32 s32, s12, s53\n  s_addc_u32 s33, s13, 0")
    A("  s_add_u32 s36, s14, s54\n  s_addc_u32 s37, s15, 0")
    A("  s_add_u32 s40, s16, s54\n  s_addc_u32 s41, s17, 0")
    for k in range(4):
        A(f"  s_add_u32 s56, s55, {k*4096}")
        A(f"  s_add_u32 m0, s56, {KS}")
        A("  s_nop 0")
        A(f"  buffer_load_dwordx4 v{vL16}, s[28:31], s56 offen {sflags} lds")
        A(f"  s_add_u32 m0, s56, {KZ}")
        A("  s_nop 0")
        A(f"  buffer_load_dwordx4 v{vL16}, s[32:35], s56 offen {sflags} lds")
    A(f"  s_add_u32 m0, s55, {VS}\n  s_nop 0")
    A(f"  buffer_load_dwordx4 v{vL16}, s[36:39], s55 offen {sflags} lds")
    A(f"  s_add_u32 m0, s55, {VZ}\n  s_nop 0")
    A(f"  buffer_load_dwordx4 v{vL16}, s[40:43], s55 offen {sflags} lds")
    A(f"  v_and_b32 v{T1}, 7, v{vI}               ; tt")
    A(f"  v_lshrrev_b32 v{T2}, 3, v{vI}           ; hfa")
    A(f"  v_lshlrev_b32 v{aZ}, 4, v{vQ}")
    A(f"  v_lshl_add_u32 v{aZ}, v{T2}, 7, v{aZ}")
    A(f"  v_add_u32 v{aZ}, {KZ}, v{aZ}")
    A(f"  v_lshlrev_b32 v{T2}, 4, v{T2}           ; 16*hfa")
    A(f"  v_lshl_add_u32 v{T2}, v{vQ}, 1, v{T2}   ; c0 = 16*hfa + 2q")
    A(f"  v_and_b32 v{T3}, 6, v{T1}")
    A(f"  v_lshlrev_b32 v{T3}, 1, v{T3}")
    A(f"  v_and_or_b32 v{T3}, v{T1}, 1, v{T3}     ; f(t)")
    A(f"  v_xor_b32 v{T2}, v{T2}, v{T3}")
    A(f"  v_lshlrev_b32 v{T2}, 4, v{T2}")
    A(f"  v_lshl_add_u32 v{T2}, v{T1}, 9, v{T2}   ; + tt*512")
    A("  s_lshl_b32 s56, s3, 12                  ; w*8*512")
    A(f"  v_add_u32 v{aK[0]}, s56, v{T2}")
    A(f"  v_xor_b32 v{aK[1]}, 16, v{aK[0]}")
    A(f"  v_xor_b32 v{aK[2]}, 0x80, v{aK[0]}")
    A(f"  v_xor_b32 v{aK[3]}, 0x90, v{aK[0]}")
    A(f"  v_and_b32 v{T1}, 1, v{vQ}")
    A(f"  v_lshrrev_b32 v{T2}, 1, v{vQ}")
    A(f"  v_lshl_add_u32 v{T1}, v{T1}, 2, v{T2}")
    A(f"  v_lshlrev_b32 v{T1}, 2, v{T1}")
    A(f"  v_lshl_add_u32 v{T1}, v{T0}, 7, v{T1}")
    A("  s_lshl_b32 s56, s3, 5")
    A(f"  s_add_u32 s56, s56, {LOG}")
    A(f"  v_add_u32 v{aL}, s56, v{T1}")
    A(f"  v_lshlrev_b32 v{T1}, 3, v{vI}")
    A(f"  v_lshl_add_u32 v{T1}, v{vQ}, 12, v{T1}")
    A("  s_lshl_b32 s56, s3, 7")
    A(f"  v_add_u32 v{aV}, s56, v{T1}")
    A(f"  v_lshrrev_b32 v{T1}, 2, v{vI}")
    A(f"  v_lshlrev_b32 v{T2}, 5, v{vQ}")
    A(f"  v_lshl_add_u32 v{T2}, v{T1}, 7, v{T2}")
    A(f"  v_add_u32 v{aP}, {LOG}, v{T2}")
    A(f"  v_lshlrev_b32 v{aVS}, 4, v{vQ}")
    A(f"  v_add_u32 v{aVS}, {VS}, v{aVS}")
    A(f"  v_mov_b32 v{vM}, 0xff800000")
    A(f"  v_mov_b32 v{vLs}, 0")
    A("  s_mov_b32 s44, 0x000f000f\n  s_mov_b32 s45, 0x000f000f")
    A("  s_mov_b32 s46, 0xffff0000")
    A("  s_waitcnt vmcnt(10)")
    for n in range(8):
        A(f"  v_lshlrev_b32 v{QF+2*n}, 16, v{KR+n}")
        A(f"  v_and_b32 v{QF+2*n+1}, 0xffff0000, v{KR+n}")
    for n in range(16):
        A(f"  v_mul_f32 v{QF+n}, {c2}, v{QF+n}")
    A("  s_mov_b32 s47, 0")
    A("  s_waitcnt vmcnt(8)")
    A(f"{lab('k')}:")
    for k in range(4):
        if k == 3: A("  s_waitcnt vmcnt(0)")
        A("  s_barrier")
        A(f"  ds_read_b128 v[{KSr}:{KSr+3}], v{aS} offset:{k*256}")
        A(f"  ds_read_b128 v[{KSr+4}:{KSr+7}], v{aS} offset:{k*256+64}")
        for n in range(4):
            A(f"  ds_read_b128 v[{KR+4*n}:{KR+4*n+3}], v{aK[n]} offset:{k*16384}")
        A(f"  ds_read_b128 v[{KZr}:{KZr+3}], v{aZ} offset:{k*256}")
        A(f"  ds_read_b128 v[{KZr+4}:{KZr+7}], v{aZ} offset:{k*256+64}")
        for m in range(2):
            A(f"  s_waitcnt lgkmcnt({7-m})")
            for n in range(4):
                r = KSr + 4*m + n
                A(f"  v_lshlrev_b32 v{T0}, 16, v{r}")
                A(f"  v_and_b32 v{T1}, s46, v{r}")
                A(f"  v_mul_f32 v{T0}, v{T0}, v{QF+8*m+2*n}")
                A(f"  v_mul_f32 v{T1}, v{T1}, v{QF+8*m+2*n+1}")
                A(f"  v_cvt_pk_bf16_f32 v{OB+4*m+n}, v{T0}, v{T1}")
        for m in range(2):
            A(f"  s_waitcnt lgkmcnt({4-2*m})")
            for n in range(8):
                A(f"  v_cvt_f32_i32 v{KR+8*m+n}, v{KR+8*m+n}")
            for n in range(4):
                A(f"  v_cvt_pk_bf16_f32 v{OA+4*m+n}, v{KR+8*m+2*n}, v{KR+8*m+2*n+1}")
        A("  s_waitcnt lgkmcnt(0)")
        for n in range(4): A(f"  v_xor_b32 v{KZr+n}, 0x80008000, v{KZr+n}")
        A(f"  v_mfma_f32_16x16x32_bf16 v[{ACC}:{ACC+3}], v[{OA}:{OA+3}], v[{OB}:{OB+3}], 0")
        for n in range(4, 8): A(f"  v_xor_b32 v{KZr+n}, 0x80008000, v{KZr+n}")
        A(f"  v_mfma_f32_16x16x32_bf16 v[{ACC}:{ACC+3}], v[{OA+4}:{OA+7}], v[{OB+4}:{OB+7}], v[{ACC}:{ACC+3}]")
        A(f"  v_mfma_f32_16x16x32_bf16 v[{ACC}:{ACC+3}], v[{KZr}:{KZr+3}], v[{OB}:{OB+3}], v[{ACC}:{ACC+3}]")
        A(f"  v_mfma_f32_16x16x32_bf16 v[{ACC}:{ACC+3}], v[{KZr+4}:{KZr+7}], v[{OB+4}:{OB+7}], v[{ACC}:{ACC+3}]")
        A("  s_nop 7")
        A(f"  v_permlane32_swap_b32 v{ACC}, v{ACC+1}")
        A(f"  v_permlane32_swap_b32 v{ACC+2}, v{ACC+3}")
        A("  s_nop 1")
        A(f"  v_add_f32_dpp v{T0}, v{ACC+1}, v{ACC} row_shl:4 row_mask:0xf bank_mask:0xf bound_ctrl:1")
        A(f"  v_add_f32_dpp v{T1}, v{ACC+3}, v{ACC+2} row_shl:4 row_mask:0xf bank_mask:0xf bound_ctrl:1")
        A("  s_mov_b64 exec, s[44:45]")
        A(f"  ds_write_b32 v{aL}, v{T0} offset:{k*512}")
        A(f"  ds_write_b32 v{aL}, v{T1} offset:{k*512+8}")
        A(f"  v_max3_f32 v{vM}, v{vM}, v{T0}, v{T1}")
        A("  s_mov_b64 exec, -1")
    A(f"  v_add_u32 v{aS}, 0x400, v{aS}")
    A(f"  v_add_u32 v{aZ}, 0x400, v{aZ}")
    A(f"  v_add_u32 v{aL}, 0x800, v{aL}")
    A("  s_add_u32 s47, s47, 1")
    A("  s_cmp_lt_u32 s47, 16")
    A(f"  s_cbranch_scc1 {lab('k')}")
    A(f"  v_and_b32 v{T0}, 3, v{vI}")
    A(f"  v_lshlrev_b32 v{T1}, 2, v{vQ}")
    A(f"  v_lshl_add_u32 v{T0}, v{T0}, 6, v{T1}")
    A("  s_lshl_b32 s56, s3, 4")
    A(f"  s_add_u32 s56, s56, {MX}")
    A(f"  v_add_u32 v{T0}, s56, v{T0}")
    A("  s_mov_b64 exec, s[44:45]")
    A(f"  ds_write_b32 v{T0}, v{vM}")
    A("  s_mov_b64 exec, -1")
    A(f"  v_lshrrev_b32 v{T1}, 2, v{vI}")
    A(f"  v_lshlrev_b32 v{T1}, 6, v{T1}")
    A(f"  v_add_u32 v{T1}, {MX}, v{T1}")
    ACC0, ACC1, ACCZ = 80, 84, 88
    for n in range(12): A(f"  v_mov_b32 v{ACC0+n}, 0")
    A("  s_mov_b32 s47, 0")
    A("  s_waitcnt lgkmcnt(0)")
    A("  s_barrier")
    for n in range(4): A(f"  ds_read_b128 v[{KR+4*n}:{KR+4*n+3}], v{T1} offset:{16*n}")
    A("  s_waitcnt lgkmcnt(0)")
    A(f"  v_max3_f32 v{vM}, v{KR}, v{KR+1}, v{KR+2}")
    for n in range(3, 15, 2): A(f"  v_max3_f32 v{vM}, v{vM}, v{KR+n}, v{KR+n+1}")
    A(f"  v_max_f32 v{vM}, v{vM}, v{KR+15}")
    A(f"  s_branch {lab('v1')}")
    SL, VSr, VZr, VR, PA, B0, B1 = 16, 24, 28, 32, 64, 72, 76
    U = 48
    A(f"{lab('v')}:")
    for k in range(4):
        A("  s_barrier")
        if k == 0: A(f"{lab('v1')}:")
        A(f"  ds_read_b128 v[{SL}:{SL+3}], v{aP} offset:{k*512}")
        A(f"  ds_read_b128 v[{SL+4}:{SL+7}], v{aP} offset:{k*512+16}")
        A(f"  ds_read_b128 v[{VSr}:{VSr+3}], v{aVS} offset:{k*64}")
        A(f"  ds_read_b128 v[{VZr}:{VZr+3}], v{aVS} offset:{k*64+4096}")
        for n in range(8):
            A(f"  ds_read_b64 v[{VR+2*n}:{VR+2*n+1}], v{aV} offset:{k*16384+n*512}")
        A("  s_waitcnt lgkmcnt(10)")
        for n in range(8): A(f"  v_sub_f32 v{SL+n}, v{SL+n}, v{vM}")
        for n in range(8): A(f"  v_exp_f32 v{SL+n}, v{SL+n}")
        A("  s_waitcnt lgkmcnt(9)")
        for n in range(4):
            A(f"  v_lshlrev_b32 v{U+2*n}, 16, v{VSr+n}")
            A(f"  v_and_b32 v{U+2*n+1}, s46, v{VSr+n}")
        for n in range(8): A(f"  v_mul_f32 v{U+n}, v{U+n}, v{SL+n}")
        for n in range(4): A(f"  v_cvt_pk_bf16_f32 v{PA+n}, v{U+2*n}, v{U+2*n+1}")
        for n in range(8): A(f"  v_add_f32 v{vLs}, v{vLs}, v{SL+n}")
        A("  s_waitcnt lgkmcnt(4)")
        A(f"  v_mfma_f32_16x16x32_bf16 v[{ACCZ}:{ACCZ+3}], v[{PA}:{PA+3}], v[{VZr}:{VZr+3}], v[{ACCZ}:{ACCZ+3}]")
        for half in range(2):
            if half: A("  s_waitcnt lgkmcnt(0)")
            for n in range(8): A(f"  v_cvt_f32_i32 v{VR+8*half+n}, v{VR+8*half+n}")
            for n in range(2):
                b = VR + 8*half + 4*n
                A(f"  v_cvt_pk_bf16_f32 v{B0+2*half+n}, v{b}, v{b+2}")
                A(f"  v_cvt_pk_bf16_f32 v{B1+2*half+n}, v{b+1}, v{b+3}")
        A("  s_nop 0")
        A(f"  v_mfma_f32_16x16x32_bf16 v[{ACC0}:{ACC0+3}], v[{PA}:{PA+3}], v[{B0}:{B0+3}], v[{ACC0}:{ACC0+3}]")
        A(f"  v_mfma_f32_16x16x32_bf16 v[{ACC1}:{ACC1+3}], v[{PA}:{PA+3}], v[{B1}:{B1+3}], v[{ACC1}:{ACC1+3}]")
    A(f"  v_add_u32 v{aP}, 0x800, v{aP}")
    A(f"  v_add_u32 v{aVS}, 0x100, v{aVS}")
    A("  s_add_u32 s47, s47, 1")
    A("  s_cmp_lt_u32 s47, 16")
    A(f"  s_cbranch_scc1 {lab('v')}")
    R = 16
    A(f"  v_mov_b32 v{T0}, v{vLs}")
    A("  s_lshl_b32 s56, s50, 2\n  s_add_u32 s56, s56, s3\n  s_lshl_b32 s56, s56, 14   ; (pair*4+w)*16384")
    A(f"  v_permlane32_swap_b32 v{T0}, v{vLs}")
    A("  s_lshl_b32 s57, s51, 10\n  s_add_u32 s57, s57, s56")
    A(f"  v_add_f32 v{vLs}, v{T0}, v{vLs}")
    A("  s_mov_b32 s24, s22\n  s_mov_b32 s25, s23\n  s_mov_b32 s26, 0x100000")
    A(f"  v_mov_b32 v{T0}, v{vLs}")
    A("  s_nop 1")
    A(f"  v_permlane16_swap_b32 v{T0}, v{vLs}")
    A("  s_nop 1")
    A(f"  v_add_f32 v{vLs}, v{T0}, v{vLs}")
    A(f"  v_sub_f32 v{R}, v{ACC0}, v{ACCZ}")
    A(f"  v_sub_f32 v{R+1}, v{ACC1}, v{ACCZ}")
    for qq in range(4):
        A(f"  v_mov_b32_dpp v{R+2}, v{vM} row_newbcast:{4*qq} row_mask:{1<<qq:#x} bank_mask:0xf")
        A(f"  v_mov_b32_dpp v{R+3}, v{vLs} row_newbcast:{4*qq} row_mask:{1<<qq:#x} bank_mask:0xf")
    A(f"  buffer_store_dwordx4 v[{R}:{R+3}], v{vL16}, s[24:27], s57 offen sc1")
    A("  s_and_b32 s58, s50, 3\n  s_lshl_b32 s58, s58, 6\n  s_lshr_b32 s59, s50, 2\n  s_lshl_b32 s59, s59, 2\n  s_add_u32 s58, s58, s59")
    A(f"  v_mov_b32 v{T0}, s58\n  v_mov_b32 v{T1}, 1\n  v_mov_b32 v{T2}, {FLAG}")
    A("  s_waitcnt vmcnt(0)")
    A("  s_barrier")
    A("  s_cmp_lg_u32 s3, 0")
    A(f"  s_cbranch_scc1 {lab('w')}")
    A("  s_mov_b64 exec, 1")
    A(f"  global_atomic_add v{T3}, v{T0}, v{T1}, s[20:21] sc0 sc1")
    A("  s_waitcnt vmcnt(0)")
    A(f"  ds_write_b32 v{T2}, v{T3}")
    A("  s_mov_b64 exec, -1")
    A("  s_waitcnt lgkmcnt(0)")
    A(f"{lab('w')}:")
    A("  s_barrier")
    A(f"  ds_read_b32 v{T3}, v{T2}")
    A(f"  v_add_u32 v4, 0x1000, v{vL16}\n  v_add_u32 v5, 0x2000, v{vL16}\n  v_add_u32 v6, 0x3000, v{vL16}")
    A("  s_waitcnt lgkmcnt(0)")
    A(f"  v_readfirstlane_b32 s58, v{T3}")
    A("  s_cmp_lg_u32 s58, 15")
    A(f"  s_cbranch_scc1 {lab('fin')}")
    C = 16
    for s in range(16):
        A(f"  buffer_load_dwordx4 v[{C+4*s}:{C+4*s+3}], v{3+(s>>2)}, s[24:27], s56 offen offset:{(s&3)*1024} sc1")
    A("  s_mov_b32 s28, s18\n  s_mov_b32 s29, s19\n  s_mov_b32 s30, 0x4000\n  s_mov_b32 s31, 0x20000")
    A(f"  v_lshlrev_b32 v8, 2, v{vI}\n  v_lshl_add_u32 v8, v{vQ}, 8, v8")
    A("  s_lshl_b32 s57, s3, 6\n  s_add_u32 s57, s57, s52")
    A("  s_waitcnt vmcnt(0)")
    A(f"  v_max3_f32 v9, v{C+2}, v{C+6}, v{C+10}")
    for s in range(3, 15, 2): A(f"  v_max3_f32 v9, v9, v{C+4*s+2}, v{C+4*s+6}")
    A(f"  v_max_f32 v9, v9, v{C+62}")
    for s in range(16): A(f"  v_sub_f32 v{C+4*s+2}, v{C+4*s+2}, v9")
    for s in range(16): A(f"  v_exp_f32 v{C+4*s+2}, v{C+4*s+2}")
    A(f"  v_mul_f32 v10, v{C}, v{C+2}\n  v_mul_f32 v11, v{C+1}, v{C+2}\n  v_mul_f32 v12, v{C+3}, v{C+2}")
    for s in range(1, 16):
        A(f"  v_fmac_f32 v10, v{C+4*s}, v{C+4*s+2}\n  v_fmac_f32 v11, v{C+4*s+1}, v{C+4*s+2}\n  v_fmac_f32 v12, v{C+4*s+3}, v{C+4*s+2}")
    A("  v_rcp_f32 v12, v12\n  s_nop 0\n  v_mul_f32 v10, v10, v12\n  v_mul_f32 v11, v11, v12")
    A("  v_cvt_pk_bf16_f32 v10, v10, v11")
    A("  buffer_store_dword v10, v8, s[28:31], s57 offen")
    A(f"{lab('fin')}:")
    if stamp:
        A("  s_waitcnt vmcnt(0)")
        A("  s_memrealtime s[62:63]\n  s_getreg_b32 s64, hwreg(HW_REG_XCC_ID)\n  s_waitcnt lgkmcnt(0)")
        A("  s_mul_i32 s65, s2, 5\n  s_add_u32 s65, s65, s3\n  s_add_u32 s65, s65, 1\n  s_lshl_b32 s65, s65, 4\n  s_add_u32 s65, s65, 0x200000")
        A("  v_mov_b32 v0, s60\n  v_mov_b32 v1, s62\n  v_mov_b32 v2, s64\n  v_mov_b32 v3, 0\n  v_mov_b32 v4, s65")
        A("  s_mov_b64 exec, 1\n  global_store_dwordx4 v4, v[0:3], s[22:23]")
    A(f"{lab('end')}:")
    A("  s_endpgm")
    kd = f""".section .rodata,"a"
.p2align 6
.amdhsa_kernel {kname}
  .amdhsa_next_free_vgpr 96
  .amdhsa_next_free_sgpr 72
  .amdhsa_accum_offset 96
  .amdhsa_group_segment_fixed_size 0
  .amdhsa_kernarg_size 80
  .amdhsa_user_sgpr_count 2
  .amdhsa_user_sgpr_kernarg_segment_ptr 1
  .amdhsa_system_sgpr_workgroup_id_x 1
  .amdhsa_float_denorm_mode_32 3
.end_amdhsa_kernel
"""
    body = "\n".join(L) + "\n" + kd
    if standalone:
        return HEADER + f"; @launch grid=(256,1,1) block=(320,1,1) lds={LDS_BYTES}\n" + '.amdgcn_target "amdgcn-amd-amdhsa--gfx950"\n.text\n' + body
    return body + ".text\n"

def meta(names):
    s = ".amdgpu_metadata\n---\namdhsa.version: [1, 2]\namdhsa.kernels:\n"
    for n, mw in names.items():
        s += f"""  - .name: {n}
    .symbol: {n}.kd
    .kernarg_segment_size: 80
    .kernarg_segment_align: 8
    .group_segment_fixed_size: 0
    .private_segment_fixed_size: 0
    .wavefront_size: 64
    .sgpr_count: 102
    .vgpr_count: 128
    .max_flat_workgroup_size: {mw}
    .args:
      - {{.name: kernargs, .size: 80, .offset: 0, .value_kind: by_value}}
"""
    return s + "...\n.end_amdgpu_metadata\n"

def bench_file(path, variants):
    out = '.amdgcn_target "amdgcn-amd-amdhsa--gfx950"\n.text\n'
    specs = []
    import os
    co = os.path.basename(path)[:-2] + ".co"
    for n, kw in variants.items():
        out += gen(kname=n, standalone=False, **kw)
        specs.append(f"{n}={co}@{n}:256:320:{LDS_BYTES}")
    out += meta({n: 320 for n in variants})
    open(path, "w").write(out)
    open(path[:-2] + ".specs", "w").write(" ".join(specs))

if __name__ == "__main__":
    ap = argparse.ArgumentParser()
    ap.add_argument("-o", default=f"cdna_kernels/{NAME}.s")
    ap.add_argument("-W", type=int, default=20)
    ap.add_argument("--kflags", default="nt")
    ap.add_argument("--vflags", default="nt")
    ap.add_argument("--sflags", default="nt")
    a = ap.parse_args()
    open(a.o, "w").write(gen(W=a.W, kflags=a.kflags, vflags=a.vflags, sflags=a.sflags))
```

```python
import struct, sys, argparse

NAME = "standalone__kv_cache_quant_int4_int2_kv_with_per_channel_or_per_token_scales__decode"
HEADER = """; Kernarg layout for this problem (80 bytes, ptrs only, base s[0:1]):
"""

def f32hex(x):
    return "0x%08x" % struct.unpack("<I", struct.pack("<f", x))[0]

RING, LOG, KS, KZ, VS, VZ, MX, FLAG = 0, 65536, 98304, 114688, 131072, 135168, 139264, 139520
LDS_BYTES = 139776

def gen(W=20, kflags="nt", vflags="nt", sflags="nt", stamp=False, kname=None, standalone=True, pre=0):
    kname = kname or NAME + "_kernel"
    L = []
    A = L.append
    lab = lambda s: f"{kname[-24:]}_{s}".replace("__", "_").lstrip("_") if False else f"L{abs(hash(kname)) % 100000}_{s}"
    c2 = f32hex((128 ** -0.5) * 1.4426950408889634)

    A(f".globl {kname}\n.p2align 8\n.type {kname},@function\n{kname}:")
    A(f"  s_cmp_ge_u32 s2, 256\n  s_cbranch_scc1 {lab('end')}")
    if stamp: A("  s_memrealtime s[60:61]")
    A("  s_load_dwordx16 s[4:19], s[0:1], 0")
    A("  s_load_dwordx4 s[20:23], s[0:1], 64")
    A("  v_lshrrev_b32 v1, 6, v0")
    A("  v_and_b32 v0, 63, v0                    ; lane")
    A("  v_readfirstlane_b32 s3, v1")
    A("  v_lshrrev_b32 v5, 5, v0")
    A("  s_cmp_lg_u32 s3, 0")
    A(f"  s_cbranch_scc1 {lab('cons')}")
    A("  s_setprio 3")
    A("  v_xor_b32 v1, v0, v5")
    A("  v_lshlrev_b32 v1, 4, v1")
    A("  v_xor_b32 v2, 64, v1")
    A("  v_xor_b32 v3, 0x80, v1")
    A("  v_xor_b32 v4, 0xc0, v1")
    A("  s_lshl_b32 s28, s2, 20")
    A("  s_mov_b32 s26, 0x100000")
    A("  s_mov_b32 s27, 0x20000")
    A("  s_mov_b32 s30, 0")
    nb0 = 15 + W
    A(f"  s_mov_b32 s31, {nb0 >> 2}")
    A("  s_mov_b32 s33, 0x100000")
    A("  s_waitcnt lgkmcnt(0)")
    A("  s_add_u32 s24, s6, s28")
    A("  s_addc_u32 s25, s7, 0")
    def loop(label, flags):
        A(f"{label}:")
        A("  s_and_b32 m0, s30, 0xffff")
        for i in range(4):
            A(f"  s_waitcnt vmcnt({W-1})")
            if i == (nb0 & 3):
                A("  s_sub_u32 s31, s31, 1")
                A(f"  s_cbranch_scc0 {label}_nb")
                A("  s_barrier")
                A("  s_mov_b32 s31, 3")
                A(f"{label}_nb:")
            A(f"  buffer_load_dwordx4 v{1+i}, s[24:27], s30 offen offset:{i*1024} {flags} lds")
        A("  s_add_u32 s30, s30, 0x1000")
        A("  s_cmp_lt_u32 s30, s33")
        A(f"  s_cbranch_scc1 {label}")
    if pre:
        A(f"{lab('pre')}:")
        A("  s_and_b32 m0, s30, 0xffff")
        for i in range(4):
            A(f"  s_waitcnt vmcnt({W-1})")
            A(f"  buffer_load_dwordx4 v{1+i}, s[24:27], s30 offen offset:{i*1024} {kflags} lds")
        A("  s_add_u32 s30, s30, 0x1000")
        A(f"  s_cmp_lt_u32 s30, {pre*1024}")
        A(f"  s_cbranch_scc1 {lab('pre')}")
        A("  s_mov_b32 s30, 0\n  s_waitcnt vmcnt(0)")
    if kflags == vflags:
        loop(lab("ld"), kflags)
        A("  s_cmp_ge_u32 s30, 0x200000")
        A(f"  s_cbranch_scc1 {lab('ldend')}")
        A("  s_add_u32 s24, s8, s28")
        A("  s_addc_u32 s25, s9, 0")
        A("  s_sub_u32 s24, s24, 0x100000")
        A("  s_subb_u32 s25, s25, 0")
        A("  s_mov_b32 s26, 0x200000")
        A("  s_mov_b32 s33, 0x200000")
        for i in range(4): A(f"  v_lshlrev_b32 v{1+i}, 4, v0")
        A(f"  s_branch {lab('ld')}")
    else:
        loop(lab("ld"), kflags)
        A("  s_add_u32 s24, s8, s28")
        A("  s_addc_u32 s25, s9, 0")
        A("  s_mov_b32 s30, 0")
        for i in range(4): A(f"  v_lshlrev_b32 v{1+i}, 4, v0")
        loop(lab("ldv"), vflags)
    A(f"{lab('ldend')}:")
    pdone = (2047 - 15 - W) // 16
    for p in range(pdone + 1, 128):
        A(f"  s_waitcnt vmcnt({16*(127-p)})")
        A("  s_barrier")
    if stamp:
        A("  s_memrealtime s[62:63]\n  s_getreg_b32 s64, hwreg(HW_REG_XCC_ID)\n  s_waitcnt lgkmcnt(0)")
        A("  s_mul_i32 s65, s2, 5\n  s_lshl_b32 s65, s65, 4\n  s_add_u32 s65, s65, 0x200000")
        A("  v_mov_b32 v0, s60\n  v_mov_b32 v1, s62\n  v_mov_b32 v2, s64\n  v_mov_b32 v3, 0\n  v_mov_b32 v4, s65")
        A("  s_mov_b64 exec, 1\n  global_store_dwordx4 v4, v[0:3], s[22:23]")
    A("  s_endpgm")

    vI, vQ, vL16 = 1, 2, 3
    aK = [4, 5, 6, 7]
    aS, aZ, aL, vM = 8, 9, 10, 11
    aV, aP, aVS, vLs = 12, 13, 14, 15
    QF = 16
    KR = 32
    KSr = 48
    KZr = 56
    OA = 64
    OB = 72
    ACC = 80
    T0, T1, T2, T3 = 92, 93, 94, 95
    A(f"{lab('cons')}:")
    A("  s_sub_u32 s3, s3, 1")
    A(f"  v_and_b32 v{vI}, 15, v0")
    A(f"  v_lshrrev_b32 v{vQ}, 4, v0")
    A(f"  v_lshlrev_b32 v{vL16}, 4, v0")
    A(f"  v_and_b32 v{T0}, 3, v{vI}               ; h = j&3")
    A(f"  v_bfe_u32 v{T1}, v{vI}, 2, 1            ; hfb")
    A(f"  v_lshlrev_b32 v{T2}, 4, v{vQ}           ; q*16")
    A(f"  v_lshl_add_u32 v{T2}, v{T1}, 7, v{T2}   ; hfb*128 + q*16")
    A(f"  v_lshl_add_u32 v{T3}, v{T0}, 8, v{T2}")
    A(f"  v_add_u32 v{aS}, {KS}, v{T2}")
    A("  s_lshr_b32 s50, s2, 4                   ; pair")
    A("  s_and_b32 s51, s2, 15                   ; split")
    A("  s_lshl_b32 s52, s50, 10")
    A("  s_lshl_b32 s53, s2, 14")
    A("  s_lshl_b32 s54, s2, 12")
    A("  s_lshl_b32 s55, s3, 10                  ; w*1024")
    A("  s_mov_b32 s26, 0x4000\n  s_mov_b32 s27, 0x20000")
    A("  s_mov_b32 s30, 0x4000\n  s_mov_b32 s31, 0x20000")
    A("  s_mov_b32 s34, 0x4000\n  s_mov_b32 s35, 0x20000")
    A("  s_mov_b32 s38, 0x1000\n  s_mov_b32 s39, 0x20000")
    A("  s_mov_b32 s42, 0x1000\n  s_mov_b32 s43, 0x20000")
    A("  s_waitcnt lgkmcnt(0)")
    A("  s_mov_b32 s24, s4\n  s_mov_b32 s25, s5")
    A(f"  buffer_load_dwordx4 v[{KR}:{KR+3}], v{T3}, s[24:27], s52 offen")
    A(f"  buffer_load_dwordx4 v[{KR+4}:{KR+7}], v{T3}, s[24:27], s52 offen offset:64")
    A("  s_add_u32 s28, s10, s53\n  s_addc_u32 s29, s11, 0")
    A("  s_add_u32 s32, s12, s53\n  s_addc_u32 s33, s13, 0")
    A("  s_add_u32 s36, s14, s54\n  s_addc_u32 s37, s15, 0")
    A("  s_add_u32 s40, s16, s54\n  s_addc_u32 s41, s17, 0")
    for k in range(4):
        A(f"  s_add_u32 s56, s55, {k*4096}")
        A(f"  s_add_u32 m0, s56, {KS}")
        A("  s_nop 0")
        A(f"  buffer_load_dwordx4 v{vL16}, s[28:31], s56 offen {sflags} lds")
        A(f"  s_add_u32 m0, s56, {KZ}")
        A("  s_nop 0")
        A(f"  buffer_load_dwordx4 v{vL16}, s[32:35], s56 offen {sflags} lds")
    A(f"  s_add_u32 m0, s55, {VS}\n  s_nop 0")
    A(f"  buffer_load_dwordx4 v{vL16}, s[36:39], s55 offen {sflags} lds")
    A(f"  s_add_u32 m0, s55, {VZ}\n  s_nop 0")
    A(f"  buffer_load_dwordx4 v{vL16}, s[40:43], s55 offen {sflags} lds")
    A(f"  v_and_b32 v{T1}, 7, v{vI}               ; tt")
    A(f"  v_lshrrev_b32 v{T2}, 3, v{vI}           ; hfa")
    A(f"  v_lshlrev_b32 v{aZ}, 4, v{vQ}")
    A(f"  v_lshl_add_u32 v{aZ}, v{T2}, 7, v{aZ}")
    A(f"  v_add_u32 v{aZ}, {KZ}, v{aZ}")
    A(f"  v_lshlrev_b32 v{T2}, 4, v{T2}           ; 16*hfa")
    A(f"  v_lshl_add_u32 v{T2}, v{vQ}, 1, v{T2}   ; c0 = 16*hfa + 2q")
    A(f"  v_and_b32 v{T3}, 6, v{T1}")
    A(f"  v_lshlrev_b32 v{T3}, 1, v{T3}")
    A(f"  v_and_or_b32 v{T3}, v{T1}, 1, v{T3}     ; f(t)")
    A(f"  v_xor_b32 v{T2}, v{T2}, v{T3}")
    A(f"  v_lshlrev_b32 v{T2}, 4, v{T2}")
    A(f"  v_lshl_add_u32 v{T2}, v{T1}, 9, v{T2}   ; + tt*512")
    A("  s_lshl_b32 s56, s3, 12                  ; w*8*512")
    A(f"  v_add_u32 v{aK[0]}, s56, v{T2}")
    A(f"  v_xor_b32 v{aK[1]}, 16, v{aK[0]}")
    A(f"  v_xor_b32 v{aK[2]}, 0x80, v{aK[0]}")
    A(f"  v_xor_b32 v{aK[3]}, 0x90, v{aK[0]}")
    A(f"  v_and_b32 v{T1}, 1, v{vQ}")
    A(f"  v_lshrrev_b32 v{T2}, 1, v{vQ}")
    A(f"  v_lshl_add_u32 v{T1}, v{T1}, 2, v{T2}")
    A(f"  v_lshlrev_b32 v{T1}, 2, v{T1}")
    A(f"  v_lshl_add_u32 v{T1}, v{T0}, 7, v{T1}")
    A("  s_lshl_b32 s56, s3, 5")
    A(f"  s_add_u32 s56, s56, {LOG}")
    A(f"  v_add_u32 v{aL}, s56, v{T1}")
    A(f"  v_lshlrev_b32 v{T1}, 3, v{vI}")
    A(f"  v_lshl_add_u32 v{T1}, v{vQ}, 12, v{T1}")
    A("  s_lshl_b32 s56, s3, 7")
    A(f"  v_add_u32 v{aV}, s56, v{T1}")
    A(f"  v_lshrrev_b32 v{T1}, 2, v{vI}")
    A(f"  v_lshlrev_b32 v{T2}, 5, v{vQ}")
    A(f"  v_lshl_add_u32 v{T2}, v{T1}, 7, v{T2}")
    A(f"  v_add_u32 v{aP}, {LOG}, v{T2}")
    A(f"  v_lshlrev_b32 v{aVS}, 4, v{vQ}")
    A(f"  v_add_u32 v{aVS}, {VS}, v{aVS}")
    A(f"  v_mov_b32 v{vM}, 0xff800000")
    A(f"  v_mov_b32 v{vLs}, 0")
    A("  s_mov_b32 s44, 0x000f000f\n  s_mov_b32 s45, 0x000f000f")
    A("  s_mov_b32 s46, 0xffff0000")
    A("  s_waitcnt vmcnt(10)")
    for n in range(8):
        A(f"  v_lshlrev_b32 v{QF+2*n}, 16, v{KR+n}")
        A(f"  v_and_b32 v{QF+2*n+1}, 0xffff0000, v{KR+n}")
    for n in range(16):
        A(f"  v_mul_f32 v{QF+n}, {c2}, v{QF+n}")
    A("  s_mov_b32 s47, 0")
    A("  s_waitcnt vmcnt(8)")
    A(f"{lab('k')}:")
    for k in range(4):
        if k == 3: A("  s_waitcnt vmcnt(0)")
        A("  s_barrier")
        A(f"  ds_read_b128 v[{KSr}:{KSr+3}], v{aS} offset:{k*256}")
        A(f"  ds_read_b128 v[{KSr+4}:{KSr+7}], v{aS} offset:{k*256+64}")
        for n in range(4):
            A(f"  ds_read_b128 v[{KR+4*n}:{KR+4*n+3}], v{aK[n]} offset:{k*16384}")
        A(f"  ds_read_b128 v[{KZr}:{KZr+3}], v{aZ} offset:{k*256}")
        A(f"  ds_read_b128 v[{KZr+4}:{KZr+7}], v{aZ} offset:{k*256+64}")
        for m in range(2):
            A(f"  s_waitcnt lgkmcnt({7-m})")
            for n in range(4):
                r = KSr + 4*m + n
                A(f"  v_lshlrev_b32 v{T0}, 16, v{r}")
                A(f"  v_and_b32 v{T1}, s46, v{r}")
                A(f"  v_mul_f32 v{T0}, v{T0}, v{QF+8*m+2*n}")
                A(f"  v_mul_f32 v{T1}, v{T1}, v{QF+8*m+2*n+1}")
                A(f"  v_cvt_pk_bf16_f32 v{OB+4*m+n}, v{T0}, v{T1}")
        for m in range(2):
            A(f"  s_waitcnt lgkmcnt({4-2*m})")
            for n in range(8):
                A(f"  v_cvt_f32_i32 v{KR+8*m+n}, v{KR+8*m+n}")
            for n in range(4):
                A(f"  v_cvt_pk_bf16_f32 v{OA+4*m+n}, v{KR+8*m+2*n}, v{KR+8*m+2*n+1}")
        A("  s_waitcnt lgkmcnt(0)")
        for n in range(4): A(f"  v_xor_b32 v{KZr+n}, 0x80008000, v{KZr+n}")
        A(f"  v_mfma_f32_16x16x32_bf16 v[{ACC}:{ACC+3}], v[{OA}:{OA+3}], v[{OB}:{OB+3}], 0")
        for n in range(4, 8): A(f"  v_xor_b32 v{KZr+n}, 0x80008000, v{KZr+n}")
        A(f"  v_mfma_f32_16x16x32_bf16 v[{ACC}:{ACC+3}], v[{OA+4}:{OA+7}], v[{OB+4}:{OB+7}], v[{ACC}:{ACC+3}]")
        A(f"  v_mfma_f32_16x16x32_bf16 v[{ACC}:{ACC+3}], v[{KZr}:{KZr+3}], v[{OB}:{OB+3}], v[{ACC}:{ACC+3}]")
        A(f"  v_mfma_f32_16x16x32_bf16 v[{ACC}:{ACC+3}], v[{KZr+4}:{KZr+7}], v[{OB+4}:{OB+7}], v[{ACC}:{ACC+3}]")
        A("  s_nop 7")
        A(f"  v_permlane32_swap_b32 v{ACC}, v{ACC+1}")
        A(f"  v_permlane32_swap_b32 v{ACC+2}, v{ACC+3}")
        A("  s_nop 1")
        A(f"  v_add_f32_dpp v{T0}, v{ACC+1}, v{ACC} row_shl:4 row_mask:0xf bank_mask:0xf bound_ctrl:1")
        A(f"  v_add_f32_dpp v{T1}, v{ACC+3}, v{ACC+2} row_shl:4 row_mask:0xf bank_mask:0xf bound_ctrl:1")
        A("  s_mov_b64 exec, s[44:45]")
        A(f"  ds_write_b32 v{aL}, v{T0} offset:{k*512}")
        A(f"  ds_write_b32 v{aL}, v{T1} offset:{k*512+8}")
        A(f"  v_max3_f32 v{vM}, v{vM}, v{T0}, v{T1}")
        A("  s_mov_b64 exec, -1")
    A(f"  v_add_u32 v{aS}, 0x400, v{aS}")
    A(f"  v_add_u32 v{aZ}, 0x400, v{aZ}")
    A(f"  v_add_u32 v{aL}, 0x800, v{aL}")
    A("  s_add_u32 s47, s47, 1")
    A("  s_cmp_lt_u32 s47, 16")
    A(f"  s_cbranch_scc1 {lab('k')}")
    A(f"  v_and_b32 v{T0}, 3, v{vI}")
    A(f"  v_lshlrev_b32 v{T1}, 2, v{vQ}")
    A(f"  v_lshl_add_u32 v{T0}, v{T0}, 6, v{T1}")
    A("  s_lshl_b32 s56, s3, 4")
    A(f"  s_add_u32 s56, s56, {MX}")
    A(f"  v_add_u32 v{T0}, s56, v{T0}")
    A("  s_mov_b64 exec, s[44:45]")
    A(f"  ds_write_b32 v{T0}, v{vM}")
    A("  s_mov_b64 exec, -1")
    A(f"  v_lshrrev_b32 v{T1}, 2, v{vI}")
    A(f"  v_lshlrev_b32 v{T1}, 6, v{T1}")
    A(f"  v_add_u32 v{T1}, {MX}, v{T1}")
    ACC0, ACC1, ACCZ = 80, 84, 88
    for n in range(12): A(f"  v_mov_b32 v{ACC0+n}, 0")
    A("  s_mov_b32 s47, 0")
    A("  s_waitcnt lgkmcnt(0)")
    A("  s_barrier")
    for n in range(4): A(f"  ds_read_b128 v[{KR+4*n}:{KR+4*n+3}], v{T1} offset:{16*n}")
    A("  s_waitcnt lgkmcnt(0)")
    A(f"  v_max3_f32 v{vM}, v{KR}, v{KR+1}, v{KR+2}")
    for n in range(3, 15, 2): A(f"  v_max3_f32 v{vM}, v{vM}, v{KR+n}, v{KR+n+1}")
    A(f"  v_max_f32 v{vM}, v{vM}, v{KR+15}")
    A(f"  s_branch {lab('v1')}")
    SL, VSr, VZr, VR, PA, B0, B1 = 16, 24, 28, 32, 64, 72, 76
    U = 48
    A(f"{lab('v')}:")
    for k in range(4):
        A("  s_barrier")
        if k == 0: A(f"{lab('v1')}:")
        A(f"  ds_read_b128 v[{SL}:{SL+3}], v{aP} offset:{k*512}")
        A(f"  ds_read_b128 v[{SL+4}:{SL+7}], v{aP} offset:{k*512+16}")
        A(f"  ds_read_b128 v[{VSr}:{VSr+3}], v{aVS} offset:{k*64}")
        A(f"  ds_read_b128 v[{VZr}:{VZr+3}], v{aVS} offset:{k*64+4096}")
        for n in range(8):
            A(f"  ds_read_b64 v[{VR+2*n}:{VR+2*n+1}], v{aV} offset:{k*16384+n*512}")
        A("  s_waitcnt lgkmcnt(10)")
        for n in range(8): A(f"  v_sub_f32 v{SL+n}, v{SL+n}, v{vM}")
        for n in range(8): A(f"  v_exp_f32 v{SL+n}, v{SL+n}")
        A("  s_waitcnt lgkmcnt(9)")
        for n in range(4):
            A(f"  v_lshlrev_b32 v{U+2*n}, 16, v{VSr+n}")
            A(f"  v_and_b32 v{U+2*n+1}, s46, v{VSr+n}")
        for n in range(8): A(f"  v_mul_f32 v{U+n}, v{U+n}, v{SL+n}")
        for n in range(4): A(f"  v_cvt_pk_bf16_f32 v{PA+n}, v{U+2*n}, v{U+2*n+1}")
        for n in range(8): A(f"  v_add_f32 v{vLs}, v{vLs}, v{SL+n}")
        A("  s_waitcnt lgkmcnt(4)")
        A(f"  v_mfma_f32_16x16x32_bf16 v[{ACCZ}:{ACCZ+3}], v[{PA}:{PA+3}], v[{VZr}:{VZr+3}], v[{ACCZ}:{ACCZ+3}]")
        for half in range(2):
            if half: A("  s_waitcnt lgkmcnt(0)")
            for n in range(8): A(f"  v_cvt_f32_i32 v{VR+8*half+n}, v{VR+8*half+n}")
            for n in range(2):
                b = VR + 8*half + 4*n
                A(f"  v_cvt_pk_bf16_f32 v{B0+2*half+n}, v{b}, v{b+2}")
                A(f"  v_cvt_pk_bf16_f32 v{B1+2*half+n}, v{b+1}, v{b+3}")
        A("  s_nop 0")
        A(f"  v_mfma_f32_16x16x32_bf16 v[{ACC0}:{ACC0+3}], v[{PA}:{PA+3}], v[{B0}:{B0+3}], v[{ACC0}:{ACC0+3}]")
        A(f"  v_mfma_f32_16x16x32_bf16 v[{ACC1}:{ACC1+3}], v[{PA}:{PA+3}], v[{B1}:{B1+3}], v[{ACC1}:{ACC1+3}]")
    A(f"  v_add_u32 v{aP}, 0x800, v{aP}")
    A(f"  v_add_u32 v{aVS}, 0x100, v{aVS}")
    A("  s_add_u32 s47, s47, 1")
    A("  s_cmp_lt_u32 s47, 16")
    A(f"  s_cbranch_scc1 {lab('v')}")
    R = 16
    A(f"  v_mov_b32 v{T0}, v{vLs}")
    A("  s_lshl_b32 s56, s50, 2\n  s_add_u32 s56, s56, s3\n  s_lshl_b32 s56, s56, 14   ; (pair*4+w)*16384")
    A(f"  v_permlane32_swap_b32 v{T0}, v{vLs}")
    A("  s_lshl_b32 s57, s51, 10\n  s_add_u32 s57, s57, s56")
    A(f"  v_add_f32 v{vLs}, v{T0}, v{vLs}")
    A("  s_mov_b32 s24, s22\n  s_mov_b32 s25, s23\n  s_mov_b32 s26, 0x100000")
    A(f"  v_mov_b32 v{T0}, v{vLs}")
    A("  s_nop 1")
    A(f"  v_permlane16_swap_b32 v{T0}, v{vLs}")
    A("  s_nop 1")
    A(f"  v_add_f32 v{vLs}, v{T0}, v{vLs}")
    A(f"  v_sub_f32 v{R}, v{ACC0}, v{ACCZ}")
    A(f"  v_sub_f32 v{R+1}, v{ACC1}, v{ACCZ}")
    for qq in range(4):
        A(f"  v_mov_b32_dpp v{R+2}, v{vM} row_newbcast:{4*qq} row_mask:{1<<qq:#x} bank_mask:0xf")
        A(f"  v_mov_b32_dpp v{R+3}, v{vLs} row_newbcast:{4*qq} row_mask:{1<<qq:#x} bank_mask:0xf")
    A(f"  buffer_store_dwordx4 v[{R}:{R+3}], v{vL16}, s[24:27], s57 offen sc1")
    A("  s_and_b32 s58, s50, 3\n  s_lshl_b32 s58, s58, 6\n  s_lshr_b32 s59, s50, 2\n  s_lshl_b32 s59, s59, 2\n  s_add_u32 s58, s58, s59")
    A(f"  v_mov_b32 v{T0}, s58\n  v_mov_b32 v{T1}, 1\n  v_mov_b32 v{T2}, {FLAG}")
    A("  s_waitcnt vmcnt(0)")
    A("  s_barrier")
    A("  s_cmp_lg_u32 s3, 0")
    A(f"  s_cbranch_scc1 {lab('w')}")
    A("  s_mov_b64 exec, 1")
    A(f"  global_atomic_add v{T3}, v{T0}, v{T1}, s[20:21] sc0 sc1")
    A("  s_waitcnt vmcnt(0)")
    A(f"  ds_write_b32 v{T2}, v{T3}")
    A("  s_mov_b64 exec, -1")
    A("  s_waitcnt lgkmcnt(0)")
    A(f"{lab('w')}:")
    A("  s_barrier")
    A(f"  ds_read_b32 v{T3}, v{T2}")
    A(f"  v_add_u32 v4, 0x1000, v{vL16}\n  v_add_u32 v5, 0x2000, v{vL16}\n  v_add_u32 v6, 0x3000, v{vL16}")
    A("  s_waitcnt lgkmcnt(0)")
    A(f"  v_readfirstlane_b32 s58, v{T3}")
    A("  s_cmp_lg_u32 s58, 15")
    A(f"  s_cbranch_scc1 {lab('fin')}")
    C = 16
    for s in range(16):
        A(f"  buffer_load_dwordx4 v[{C+4*s}:{C+4*s+3}], v{3+(s>>2)}, s[24:27], s56 offen offset:{(s&3)*1024} sc1")
    A("  s_mov_b32 s28, s18\n  s_mov_b32 s29, s19\n  s_mov_b32 s30, 0x4000\n  s_mov_b32 s31, 0x20000")
    A(f"  v_lshlrev_b32 v8, 2, v{vI}\n  v_lshl_add_u32 v8, v{vQ}, 8, v8")
    A("  s_lshl_b32 s57, s3, 6\n  s_add_u32 s57, s57, s52")
    A("  s_waitcnt vmcnt(0)")
    A(f"  v_max3_f32 v9, v{C+2}, v{C+6}, v{C+10}")
    for s in range(3, 15, 2): A(f"  v_max3_f32 v9, v9, v{C+4*s+2}, v{C+4*s+6}")
    A(f"  v_max_f32 v9, v9, v{C+62}")
    for s in range(16): A(f"  v_sub_f32 v{C+4*s+2}, v{C+4*s+2}, v9")
    for s in range(16): A(f"  v_exp_f32 v{C+4*s+2}, v{C+4*s+2}")
    A(f"  v_mul_f32 v10, v{C}, v{C+2}\n  v_mul_f32 v11, v{C+1}, v{C+2}\n  v_mul_f32 v12, v{C+3}, v{C+2}")
    for s in range(1, 16):
        A(f"  v_fmac_f32 v10, v{C+4*s}, v{C+4*s+2}\n  v_fmac_f32 v11, v{C+4*s+1}, v{C+4*s+2}\n  v_fmac_f32 v12, v{C+4*s+3}, v{C+4*s+2}")
    A("  v_rcp_f32 v12, v12\n  s_nop 0\n  v_mul_f32 v10, v10, v12\n  v_mul_f32 v11, v11, v12")
    A("  v_cvt_pk_bf16_f32 v10, v10, v11")
    A("  buffer_store_dword v10, v8, s[28:31], s57 offen")
    A(f"{lab('fin')}:")
    if stamp:
        A("  s_waitcnt vmcnt(0)")
        A("  s_memrealtime s[62:63]\n  s_getreg_b32 s64, hwreg(HW_REG_XCC_ID)\n  s_waitcnt lgkmcnt(0)")
        A("  s_mul_i32 s65, s2, 5\n  s_add_u32 s65, s65, s3\n  s_add_u32 s65, s65, 1\n  s_lshl_b32 s65, s65, 4\n  s_add_u32 s65, s65, 0x200000")
        A("  v_mov_b32 v0, s60\n  v_mov_b32 v1, s62\n  v_mov_b32 v2, s64\n  v_mov_b32 v3, 0\n  v_mov_b32 v4, s65")
        A("  s_mov_b64 exec, 1\n  global_store_dwordx4 v4, v[0:3], s[22:23]")
    A(f"{lab('end')}:")
    A("  s_endpgm")
    kd = f""".section .rodata,"a"
.p2align 6
.amdhsa_kernel {kname}
  .amdhsa_next_free_vgpr 96
  .amdhsa_next_free_sgpr 72
  .amdhsa_accum_offset 96
  .amdhsa_group_segment_fixed_size 0
  .amdhsa_kernarg_size 80
  .amdhsa_user_sgpr_count 2
  .amdhsa_user_sgpr_kernarg_segment_ptr 1
  .amdhsa_system_sgpr_workgroup_id_x 1
  .amdhsa_float_denorm_mode_32 3
.end_amdhsa_kernel
"""
    body = "\n".join(L) + "\n" + kd
    if standalone:
        return HEADER + f"; @launch grid=(256,1,1) block=(320,1,1) lds={LDS_BYTES}\n" + '.amdgcn_target "amdgcn-amd-amdhsa--gfx950"\n.text\n' + body
    return body + ".text\n"

def meta(names):
    s = ".amdgpu_metadata\n---\namdhsa.version: [1, 2]\namdhsa.kernels:\n"
    for n, mw in names.items():
        s += f"""  - .name: {n}
    .symbol: {n}.kd
    .kernarg_segment_size: 80
    .kernarg_segment_align: 8
    .group_segment_fixed_size: 0
    .private_segment_fixed_size: 0
    .wavefront_size: 64
    .sgpr_count: 102
    .vgpr_count: 128
    .max_flat_workgroup_size: {mw}
    .args:
      - {{.name: kernargs, .size: 80, .offset: 0, .value_kind: by_value}}
"""
    return s + "...\n.end_amdgpu_metadata\n"

def bench_file(path, variants):
    out = '.amdgcn_target "amdgcn-amd-amdhsa--gfx950"\n.text\n'
    specs = []
    import os
    co = os.path.basename(path)[:-2] + ".co"
    for n, kw in variants.items():
        out += gen(kname=n, standalone=False, **kw)
        specs.append(f"{n}={co}@{n}:256:320:{LDS_BYTES}")
    out += meta({n: 320 for n in variants})
    open(path, "w").write(out)
    open(path[:-2] + ".specs", "w").write(" ".join(specs))

if __name__ == "__main__":
    ap = argparse.ArgumentParser()
    ap.add_argument("-o", default=f"cdna_kernels/{NAME}.s")
    ap.add_argument("-W", type=int, default=20)
    ap.add_argument("--kflags", default="nt")
    ap.add_argument("--vflags", default="nt")
    ap.add_argument("--sflags", default="nt")
    ap.add_argument("--pre", type=int, default=0)
    a = ap.parse_args()
    open(a.o, "w").write(gen(W=a.W, kflags=a.kflags, vflags=a.vflags, sflags=a.sflags, pre=a.pre))
```

```python
import struct, sys, argparse

NAME = "standalone__kv_cache_quant_int4_int2_kv_with_per_channel_or_per_token_scales__decode"
HEADER = """; Kernarg layout for this problem (80 bytes, ptrs only, base s[0:1]):
"""

def f32hex(x):
    return "0x%08x" % struct.unpack("<I", struct.pack("<f", x))[0]

RING, LOG, KS, KZ, VS, VZ, MX, FLAG = 0, 65536, 98304, 114688, 131072, 135168, 139264, 139520
LDS_BYTES = 139776

def gen(W=20, kflags="nt", vflags="nt", sflags="nt", stamp=False, kname=None, standalone=True, pre=0, dstamp=False, W2=0, X=0):
    kname = kname or NAME + "_kernel"
    L = []
    A = L.append
    lab = lambda s: f"{kname[-24:]}_{s}".replace("__", "_").lstrip("_") if False else f"L{abs(hash(kname)) % 100000}_{s}"
    def dst(word, sreg, neg=False):
        A("  s_waitcnt lgkmcnt(0)")
        if neg: A(f"  s_not_b32 s69, {sreg}")
        else: A(f"  s_mov_b32 s69, {sreg}")
        A(f"  v_mov_b32 v102, s69\n  v_mov_b32 v103, {word*4}\n  s_mov_b64 s[70:71], exec\n  s_mov_b64 exec, 1")
        A("  global_atomic_umax v103, v102, s[20:21] sc1\n  s_mov_b64 exec, s[70:71]")
    c2 = f32hex((128 ** -0.5) * 1.4426950408889634)

    A(f".globl {kname}\n.p2align 8\n.type {kname},@function\n{kname}:")
    A(f"  s_cmp_ge_u32 s2, 256\n  s_cbranch_scc1 {lab('end')}")
    if stamp or dstamp: A("  s_memrealtime s[60:61]")
    A("  s_load_dwordx16 s[4:19], s[0:1], 0")
    A("  s_load_dwordx4 s[20:23], s[0:1], 64")
    A("  v_lshrrev_b32 v1, 6, v0")
    A("  v_and_b32 v0, 63, v0                    ; lane")
    A("  v_readfirstlane_b32 s3, v1")
    A("  v_lshrrev_b32 v5, 5, v0")
    A("  s_cmp_lg_u32 s3, 0")
    A(f"  s_cbranch_scc1 {lab('cons')}")
    A("  s_setprio 3")
    A("  v_xor_b32 v1, v0, v5")
    A("  v_lshlrev_b32 v1, 4, v1")
    A("  v_xor_b32 v2, 64, v1")
    A("  v_xor_b32 v3, 0x80, v1")
    A("  v_xor_b32 v4, 0xc0, v1")
    A("  s_lshl_b32 s28, s2, 20")
    A("  s_mov_b32 s26, 0x100000")
    A("  s_mov_b32 s27, 0x20000")
    A("  s_mov_b32 s30, 0")
    nb0 = 15 + W
    A(f"  s_mov_b32 s31, {nb0 >> 2}")
    A("  s_mov_b32 s33, 0x100000")
    A("  s_waitcnt lgkmcnt(0)")
    A("  s_add_u32 s24, s6, s28")
    A("  s_addc_u32 s25, s7, 0")
    if stamp: A("  s_memrealtime s[76:77]\n  s_mov_b32 s78, 0")
    def loop(label, flags, W=W):
        A(f"{label}:")
        A("  s_and_b32 m0, s30, 0xffff")
        for i in range(4):
            A(f"  s_waitcnt vmcnt({W-1})")
            if i == (nb0 & 3):
                A("  s_sub_u32 s31, s31, 1")
                A(f"  s_cbranch_scc0 {label}_nb")
                if stamp:
                    A(f"  s_cmp_lg_u32 s78, 0\n  s_cbranch_scc1 {label}_st\n  s_memrealtime s[78:79]\n  s_waitcnt lgkmcnt(0)\n{label}_st:")
                A("  s_barrier")
                A("  s_mov_b32 s31, 3")
                A(f"{label}_nb:")
            A(f"  buffer_load_dwordx4 v{1+i}, s[24:27], s30 offen offset:{i*1024} {flags} lds")
        A("  s_add_u32 s30, s30, 0x1000")
        A("  s_cmp_lt_u32 s30, s33")
        A(f"  s_cbranch_scc1 {label}")
    if pre:
        A(f"{lab('pre')}:")
        A("  s_and_b32 m0, s30, 0xffff")
        for i in range(4):
            A(f"  s_waitcnt vmcnt({W-1})")
            A(f"  buffer_load_dwordx4 v{1+i}, s[24:27], s30 offen offset:{i*1024} {kflags} lds")
        A("  s_add_u32 s30, s30, 0x1000")
        A(f"  s_cmp_lt_u32 s30, {pre*1024}")
        A(f"  s_cbranch_scc1 {lab('pre')}")
        A("  s_mov_b32 s30, 0\n  s_waitcnt vmcnt(0)")
    if kflags == vflags:
        loop(lab("ld"), kflags)
        A("  s_cmp_gt_u32 s30, 0x100000")
        A(f"  s_cbranch_scc1 {lab('ldend')}")
        A("  s_add_u32 s24, s8, s28")
        A("  s_addc_u32 s25, s9, 0")
        A("  s_sub_u32 s24, s24, 0x100000")
        A("  s_subb_u32 s25, s25, 0")
        A("  s_mov_b32 s26, 0x200000")
        A(f"  s_mov_b32 s33, {0x200000 - X*16384}")
        for i in range(4): A(f"  v_lshlrev_b32 v{1+i}, 4, v0")
        A(f"  s_branch {lab('ld')}")
    else:
        loop(lab("ld"), kflags)
        A("  s_add_u32 s24, s8, s28")
        A("  s_addc_u32 s25, s9, 0")
        A("  s_mov_b32 s30, 0")
        for i in range(4): A(f"  v_lshlrev_b32 v{1+i}, 4, v0")
        loop(lab("ldv"), vflags)
    A(f"{lab('ldend')}:")
    if X:
        assert (W2 - W) % 4 == 0 and kflags == vflags
        A(f"  s_add_u32 s31, s31, {(W2-W)//4}\n  s_mov_b32 s33, 0x200000")
        loop(lab("ld2"), vflags, W2)
    pdone = (2047 - 15 - (W2 if X else W)) // 16
    for p in range(pdone + 1, 128):
        A(f"  s_waitcnt vmcnt({16*(127-p)})")
        A("  s_barrier")
    if dstamp:
        A("  s_memrealtime s[62:63]")
        dst(4, "s60", True); dst(5, "s60"); dst(6, "s62", True); dst(7, "s62")
    if stamp:
        A("  s_memrealtime s[62:63]\n  s_getreg_b32 s64, hwreg(HW_REG_XCC_ID)\n  s_waitcnt lgkmcnt(0)")
        A("  s_mul_i32 s65, s2, 5\n  s_lshl_b32 s65, s65, 4\n  s_add_u32 s65, s65, 0x200000\n  s_getreg_b32 s66, hwreg(HW_REG_HW_ID)")
        A("  s_sub_u32 s76, s76, s60\n  s_lshl_b32 s76, s76, 8\n  s_or_b32 s64, s64, s76\n  s_sub_u32 s78, s78, s60\n  s_lshl_b32 s78, s78, 20\n  s_or_b32 s64, s64, s78")
        A("  v_mov_b32 v0, s60\n  v_mov_b32 v1, s62\n  v_mov_b32 v2, s64\n  v_mov_b32 v3, s66\n  v_mov_b32 v4, s65")
        A("  s_mov_b64 exec, 1\n  global_store_dwordx4 v4, v[0:3], s[22:23]")
    A("  s_endpgm")

    vI, vQ, vL16 = 1, 2, 3
    aK = [4, 5, 6, 7]
    aS, aZ, aL, vM = 8, 9, 10, 11
    aV, aP, aVS, vLs = 12, 13, 14, 15
    QF = 16
    KR = 32
    KSr = 48
    KZr = 56
    OA = 64
    OB = 72
    ACC = 80
    T0, T1, T2, T3 = 92, 93, 94, 95
    A(f"{lab('cons')}:")
    A("  s_sub_u32 s3, s3, 1")
    A(f"  v_and_b32 v{vI}, 15, v0")
    A(f"  v_lshrrev_b32 v{vQ}, 4, v0")
    A(f"  v_lshlrev_b32 v{vL16}, 4, v0")
    A(f"  v_and_b32 v{T0}, 3, v{vI}               ; h = j&3")
    A(f"  v_bfe_u32 v{T1}, v{vI}, 2, 1            ; hfb")
    A(f"  v_lshlrev_b32 v{T2}, 4, v{vQ}           ; q*16")
    A(f"  v_lshl_add_u32 v{T2}, v{T1}, 7, v{T2}   ; hfb*128 + q*16")
    A(f"  v_lshl_add_u32 v{T3}, v{T0}, 8, v{T2}")
    A(f"  v_add_u32 v{aS}, {KS}, v{T2}")
    A("  s_lshr_b32 s50, s2, 4                   ; pair")
    A("  s_and_b32 s51, s2, 15                   ; split")
    A("  s_lshl_b32 s52, s50, 10")
    A("  s_lshl_b32 s53, s2, 14")
    A("  s_lshl_b32 s54, s2, 12")
    A("  s_lshl_b32 s55, s3, 10                  ; w*1024")
    A("  s_mov_b32 s26, 0x4000\n  s_mov_b32 s27, 0x20000")
    A("  s_mov_b32 s30, 0x4000\n  s_mov_b32 s31, 0x20000")
    A("  s_mov_b32 s34, 0x4000\n  s_mov_b32 s35, 0x20000")
    A("  s_mov_b32 s38, 0x1000\n  s_mov_b32 s39, 0x20000")
    A("  s_mov_b32 s42, 0x1000\n  s_mov_b32 s43, 0x20000")
    A("  s_waitcnt lgkmcnt(0)")
    A("  s_mov_b32 s24, s4\n  s_mov_b32 s25, s5")
    A(f"  buffer_load_dwordx4 v[{KR}:{KR+3}], v{T3}, s[24:27], s52 offen")
    A(f"  buffer_load_dwordx4 v[{KR+4}:{KR+7}], v{T3}, s[24:27], s52 offen offset:64")
    A("  s_add_u32 s28, s10, s53\n  s_addc_u32 s29, s11, 0")
    A("  s_add_u32 s32, s12, s53\n  s_addc_u32 s33, s13, 0")
    A("  s_add_u32 s36, s14, s54\n  s_addc_u32 s37, s15, 0")
    A("  s_add_u32 s40, s16, s54\n  s_addc_u32 s41, s17, 0")
    for k in range(4):
        A(f"  s_add_u32 s56, s55, {k*4096}")
        A(f"  s_add_u32 m0, s56, {KS}")
        A("  s_nop 0")
        A(f"  buffer_load_dwordx4 v{vL16}, s[28:31], s56 offen {sflags} lds")
        A(f"  s_add_u32 m0, s56, {KZ}")
        A("  s_nop 0")
        A(f"  buffer_load_dwordx4 v{vL16}, s[32:35], s56 offen {sflags} lds")
    A(f"  s_add_u32 m0, s55, {VS}\n  s_nop 0")
    A(f"  buffer_load_dwordx4 v{vL16}, s[36:39], s55 offen {sflags} lds")
    A(f"  s_add_u32 m0, s55, {VZ}\n  s_nop 0")
    A(f"  buffer_load_dwordx4 v{vL16}, s[40:43], s55 offen {sflags} lds")
    A(f"  v_and_b32 v{T1}, 7, v{vI}               ; tt")
    A(f"  v_lshrrev_b32 v{T2}, 3, v{vI}           ; hfa")
    A(f"  v_lshlrev_b32 v{aZ}, 4, v{vQ}")
    A(f"  v_lshl_add_u32 v{aZ}, v{T2}, 7, v{aZ}")
    A(f"  v_add_u32 v{aZ}, {KZ}, v{aZ}")
    A(f"  v_lshlrev_b32 v{T2}, 4, v{T2}           ; 16*hfa")
    A(f"  v_lshl_add_u32 v{T2}, v{vQ}, 1, v{T2}   ; c0 = 16*hfa + 2q")
    A(f"  v_and_b32 v{T3}, 6, v{T1}")
    A(f"  v_lshlrev_b32 v{T3}, 1, v{T3}")
    A(f"  v_and_or_b32 v{T3}, v{T1}, 1, v{T3}     ; f(t)")
    A(f"  v_xor_b32 v{T2}, v{T2}, v{T3}")
    A(f"  v_lshlrev_b32 v{T2}, 4, v{T2}")
    A(f"  v_lshl_add_u32 v{T2}, v{T1}, 9, v{T2}   ; + tt*512")
    A("  s_lshl_b32 s56, s3, 12                  ; w*8*512")
    A(f"  v_add_u32 v{aK[0]}, s56, v{T2}")
    A(f"  v_xor_b32 v{aK[1]}, 16, v{aK[0]}")
    A(f"  v_xor_b32 v{aK[2]}, 0x80, v{aK[0]}")
    A(f"  v_xor_b32 v{aK[3]}, 0x90, v{aK[0]}")
    A(f"  v_and_b32 v{T1}, 1, v{vQ}")
    A(f"  v_lshrrev_b32 v{T2}, 1, v{vQ}")
    A(f"  v_lshl_add_u32 v{T1}, v{T1}, 2, v{T2}")
    A(f"  v_lshlrev_b32 v{T1}, 2, v{T1}")
    A(f"  v_lshl_add_u32 v{T1}, v{T0}, 7, v{T1}")
    A("  s_lshl_b32 s56, s3, 5")
    A(f"  s_add_u32 s56, s56, {LOG}")
    A(f"  v_add_u32 v{aL}, s56, v{T1}")
    A(f"  v_lshlrev_b32 v{T1}, 3, v{vI}")
    A(f"  v_lshl_add_u32 v{T1}, v{vQ}, 12, v{T1}")
    A("  s_lshl_b32 s56, s3, 7")
    A(f"  v_add_u32 v{aV}, s56, v{T1}")
    A(f"  v_lshrrev_b32 v{T1}, 2, v{vI}")
    A(f"  v_lshlrev_b32 v{T2}, 5, v{vQ}")
    A(f"  v_lshl_add_u32 v{T2}, v{T1}, 7, v{T2}")
    A(f"  v_add_u32 v{aP}, {LOG}, v{T2}")
    A(f"  v_lshlrev_b32 v{aVS}, 4, v{vQ}")
    A(f"  v_add_u32 v{aVS}, {VS}, v{aVS}")
    A(f"  v_mov_b32 v{vM}, 0xff800000")
    A(f"  v_mov_b32 v{vLs}, 0")
    A("  s_mov_b32 s44, 0x000f000f\n  s_mov_b32 s45, 0x000f000f")
    A("  s_mov_b32 s46, 0xffff0000")
    A("  s_waitcnt vmcnt(10)")
    for n in range(8):
        A(f"  v_lshlrev_b32 v{QF+2*n}, 16, v{KR+n}")
        A(f"  v_and_b32 v{QF+2*n+1}, 0xffff0000, v{KR+n}")
    for n in range(16):
        A(f"  v_mul_f32 v{QF+n}, {c2}, v{QF+n}")
    A("  s_mov_b32 s47, 0")
    A("  s_waitcnt vmcnt(8)")
    def tl(vr, k):
        A("  s_waitcnt lgkmcnt(0)\n  s_memrealtime s[66:67]\n  s_lshl_b32 s68, s47, 2")
        A(f"  s_add_u32 s68, s68, {k}\n  s_mov_b32 m0, s68\n  s_waitcnt lgkmcnt(0)\n  v_writelane_b32 v{vr}, s66, m0")
    A(f"{lab('k')}:")
    for k in range(4):
        if k == 3: A("  s_waitcnt vmcnt(0)")
        A("  s_barrier")
        if stamp: tl(100, k)
        if dstamp and k == 0:
            A(f"  s_cmp_lg_u32 s47, 0\n  s_cbranch_scc1 {lab('nk0')}\n  s_waitcnt lgkmcnt(0)\n  s_memrealtime s[72:73]\n  s_waitcnt lgkmcnt(0)\n{lab('nk0')}:")
            A(f"  s_cmp_lg_u32 s47, 4\n  s_cbranch_scc1 {lab('nk1')}\n  s_waitcnt lgkmcnt(0)\n  s_memrealtime s[74:75]\n  s_waitcnt lgkmcnt(0)\n{lab('nk1')}:")
        A(f"  ds_read_b128 v[{KSr}:{KSr+3}], v{aS} offset:{k*256}")
        A(f"  ds_read_b128 v[{KSr+4}:{KSr+7}], v{aS} offset:{k*256+64}")
        for n in range(4):
            A(f"  ds_read_b128 v[{KR+4*n}:{KR+4*n+3}], v{aK[n]} offset:{k*16384}")
        A(f"  ds_read_b128 v[{KZr}:{KZr+3}], v{aZ} offset:{k*256}")
        A(f"  ds_read_b128 v[{KZr+4}:{KZr+7}], v{aZ} offset:{k*256+64}")
        for m in range(2):
            A(f"  s_waitcnt lgkmcnt({7-m})")
            for n in range(4):
                r = KSr + 4*m + n
                A(f"  v_lshlrev_b32 v{T0}, 16, v{r}")
                A(f"  v_and_b32 v{T1}, s46, v{r}")
                A(f"  v_mul_f32 v{T0}, v{T0}, v{QF+8*m+2*n}")
                A(f"  v_mul_f32 v{T1}, v{T1}, v{QF+8*m+2*n+1}")
                A(f"  v_cvt_pk_bf16_f32 v{OB+4*m+n}, v{T0}, v{T1}")
        for m in range(2):
            A(f"  s_waitcnt lgkmcnt({4-2*m})")
            for n in range(8):
                A(f"  v_cvt_f32_i32 v{KR+8*m+n}, v{KR+8*m+n}")
            for n in range(4):
                A(f"  v_cvt_pk_bf16_f32 v{OA+4*m+n}, v{KR+8*m+2*n}, v{KR+8*m+2*n+1}")
        A("  s_waitcnt lgkmcnt(0)")
        for n in range(4): A(f"  v_xor_b32 v{KZr+n}, 0x80008000, v{KZr+n}")
        A(f"  v_mfma_f32_16x16x32_bf16 v[{ACC}:{ACC+3}], v[{OA}:{OA+3}], v[{OB}:{OB+3}], 0")
        for n in range(4, 8): A(f"  v_xor_b32 v{KZr+n}, 0x80008000, v{KZr+n}")
        A(f"  v_mfma_f32_16x16x32_bf16 v[{ACC}:{ACC+3}], v[{OA+4}:{OA+7}], v[{OB+4}:{OB+7}], v[{ACC}:{ACC+3}]")
        A(f"  v_mfma_f32_16x16x32_bf16 v[{ACC}:{ACC+3}], v[{KZr}:{KZr+3}], v[{OB}:{OB+3}], v[{ACC}:{ACC+3}]")
        A(f"  v_mfma_f32_16x16x32_bf16 v[{ACC}:{ACC+3}], v[{KZr+4}:{KZr+7}], v[{OB+4}:{OB+7}], v[{ACC}:{ACC+3}]")
        A("  s_nop 7")
        A(f"  v_permlane32_swap_b32 v{ACC}, v{ACC+1}")
        A(f"  v_permlane32_swap_b32 v{ACC+2}, v{ACC+3}")
        A("  s_nop 1")
        A(f"  v_add_f32_dpp v{T0}, v{ACC+1}, v{ACC} row_shl:4 row_mask:0xf bank_mask:0xf bound_ctrl:1")
        A(f"  v_add_f32_dpp v{T1}, v{ACC+3}, v{ACC+2} row_shl:4 row_mask:0xf bank_mask:0xf bound_ctrl:1")
        A("  s_mov_b64 exec, s[44:45]")
        A(f"  ds_write_b32 v{aL}, v{T0} offset:{k*512}")
        A(f"  ds_write_b32 v{aL}, v{T1} offset:{k*512+8}")
        A(f"  v_max3_f32 v{vM}, v{vM}, v{T0}, v{T1}")
        A("  s_mov_b64 exec, -1")
    A(f"  v_add_u32 v{aS}, 0x400, v{aS}")
    A(f"  v_add_u32 v{aZ}, 0x400, v{aZ}")
    A(f"  v_add_u32 v{aL}, 0x800, v{aL}")
    A("  s_add_u32 s47, s47, 1")
    A("  s_cmp_lt_u32 s47, 16")
    A(f"  s_cbranch_scc1 {lab('k')}")
    A(f"  v_and_b32 v{T0}, 3, v{vI}")
    A(f"  v_lshlrev_b32 v{T1}, 2, v{vQ}")
    A(f"  v_lshl_add_u32 v{T0}, v{T0}, 6, v{T1}")
    A("  s_lshl_b32 s56, s3, 4")
    A(f"  s_add_u32 s56, s56, {MX}")
    A(f"  v_add_u32 v{T0}, s56, v{T0}")
    A("  s_mov_b64 exec, s[44:45]")
    A(f"  ds_write_b32 v{T0}, v{vM}")
    A("  s_mov_b64 exec, -1")
    A(f"  v_lshrrev_b32 v{T1}, 2, v{vI}")
    A(f"  v_lshlrev_b32 v{T1}, 6, v{T1}")
    A(f"  v_add_u32 v{T1}, {MX}, v{T1}")
    ACC0, ACC1, ACCZ = 80, 84, 88
    for n in range(12): A(f"  v_mov_b32 v{ACC0+n}, 0")
    A("  s_mov_b32 s47, 0")
    A("  s_waitcnt lgkmcnt(0)")
    A("  s_barrier")
    for n in range(4): A(f"  ds_read_b128 v[{KR+4*n}:{KR+4*n+3}], v{T1} offset:{16*n}")
    A("  s_waitcnt lgkmcnt(0)")
    A(f"  v_max3_f32 v{vM}, v{KR}, v{KR+1}, v{KR+2}")
    for n in range(3, 15, 2): A(f"  v_max3_f32 v{vM}, v{vM}, v{KR+n}, v{KR+n+1}")
    A(f"  v_max_f32 v{vM}, v{vM}, v{KR+15}")
    A(f"  s_branch {lab('v1')}")
    SL, VSr, VZr, VR, PA, B0, B1 = 16, 24, 28, 32, 64, 72, 76
    U = 48
    A(f"{lab('v')}:")
    for k in range(4):
        A("  s_barrier")
        if k == 0: A(f"{lab('v1')}:")
        if stamp: tl(101, k)
        A(f"  ds_read_b128 v[{SL}:{SL+3}], v{aP} offset:{k*512}")
        A(f"  ds_read_b128 v[{SL+4}:{SL+7}], v{aP} offset:{k*512+16}")
        A(f"  ds_read_b128 v[{VSr}:{VSr+3}], v{aVS} offset:{k*64}")
        A(f"  ds_read_b128 v[{VZr}:{VZr+3}], v{aVS} offset:{k*64+4096}")
        for n in range(8):
            A(f"  ds_read_b64 v[{VR+2*n}:{VR+2*n+1}], v{aV} offset:{k*16384+n*512}")
        A("  s_waitcnt lgkmcnt(10)")
        for n in range(8): A(f"  v_sub_f32 v{SL+n}, v{SL+n}, v{vM}")
        for n in range(8): A(f"  v_exp_f32 v{SL+n}, v{SL+n}")
        A("  s_waitcnt lgkmcnt(9)")
        for n in range(4):
            A(f"  v_lshlrev_b32 v{U+2*n}, 16, v{VSr+n}")
            A(f"  v_and_b32 v{U+2*n+1}, s46, v{VSr+n}")
        for n in range(8): A(f"  v_mul_f32 v{U+n}, v{U+n}, v{SL+n}")
        for n in range(4): A(f"  v_cvt_pk_bf16_f32 v{PA+n}, v{U+2*n}, v{U+2*n+1}")
        for n in range(8): A(f"  v_add_f32 v{vLs}, v{vLs}, v{SL+n}")
        A("  s_waitcnt lgkmcnt(4)")
        A(f"  v_mfma_f32_16x16x32_bf16 v[{ACCZ}:{ACCZ+3}], v[{PA}:{PA+3}], v[{VZr}:{VZr+3}], v[{ACCZ}:{ACCZ+3}]")
        for half in range(2):
            if half: A("  s_waitcnt lgkmcnt(0)")
            for n in range(8): A(f"  v_cvt_f32_i32 v{VR+8*half+n}, v{VR+8*half+n}")
            for n in range(2):
                b = VR + 8*half + 4*n
                A(f"  v_cvt_pk_bf16_f32 v{B0+2*half+n}, v{b}, v{b+2}")
                A(f"  v_cvt_pk_bf16_f32 v{B1+2*half+n}, v{b+1}, v{b+3}")
        A("  s_nop 0")
        A(f"  v_mfma_f32_16x16x32_bf16 v[{ACC0}:{ACC0+3}], v[{PA}:{PA+3}], v[{B0}:{B0+3}], v[{ACC0}:{ACC0+3}]")
        A(f"  v_mfma_f32_16x16x32_bf16 v[{ACC1}:{ACC1+3}], v[{PA}:{PA+3}], v[{B1}:{B1+3}], v[{ACC1}:{ACC1+3}]")
    A(f"  v_add_u32 v{aP}, 0x800, v{aP}")
    A(f"  v_add_u32 v{aVS}, 0x100, v{aVS}")
    A("  s_add_u32 s47, s47, 1")
    A("  s_cmp_lt_u32 s47, 16")
    A(f"  s_cbranch_scc1 {lab('v')}")
    ts = lambda n: A(f"  s_memrealtime s[{76+2*n}:{77+2*n}]") if stamp else None
    if stamp:
        for n in range(76, 92): A(f"  s_mov_b32 s{n}, 0")
    ts(0)
    R = 16
    A(f"  v_mov_b32 v{T0}, v{vLs}")
    A("  s_lshl_b32 s56, s50, 2\n  s_add_u32 s56, s56, s3\n  s_lshl_b32 s56, s56, 14   ; (pair*4+w)*16384")
    A(f"  v_permlane32_swap_b32 v{T0}, v{vLs}")
    A("  s_lshl_b32 s57, s51, 10\n  s_add_u32 s57, s57, s56")
    A(f"  v_add_f32 v{vLs}, v{T0}, v{vLs}")
    A("  s_mov_b32 s24, s22\n  s_mov_b32 s25, s23\n  s_mov_b32 s26, 0x100000")
    A(f"  v_mov_b32 v{T0}, v{vLs}")
    A("  s_nop 1")
    A(f"  v_permlane16_swap_b32 v{T0}, v{vLs}")
    A("  s_nop 1")
    A(f"  v_add_f32 v{vLs}, v{T0}, v{vLs}")
    A(f"  v_sub_f32 v{R}, v{ACC0}, v{ACCZ}")
    A(f"  v_sub_f32 v{R+1}, v{ACC1}, v{ACCZ}")
    for qq in range(4):
        A(f"  v_mov_b32_dpp v{R+2}, v{vM} row_newbcast:{4*qq} row_mask:{1<<qq:#x} bank_mask:0xf")
        A(f"  v_mov_b32_dpp v{R+3}, v{vLs} row_newbcast:{4*qq} row_mask:{1<<qq:#x} bank_mask:0xf")
    A(f"  buffer_store_dwordx4 v[{R}:{R+3}], v{vL16}, s[24:27], s57 offen sc1")
    ts(1)
    A("  s_and_b32 s58, s50, 3\n  s_lshl_b32 s58, s58, 6\n  s_lshr_b32 s59, s50, 2\n  s_lshl_b32 s59, s59, 2\n  s_add_u32 s58, s58, s59")
    A(f"  v_mov_b32 v{T0}, s58\n  v_mov_b32 v{T1}, 1\n  v_mov_b32 v{T2}, {FLAG}")
    A("  s_waitcnt vmcnt(0)")
    ts(2)
    A("  s_barrier")
    A("  s_cmp_lg_u32 s3, 0")
    A(f"  s_cbranch_scc1 {lab('w')}")
    A("  s_mov_b64 exec, 1")
    A(f"  global_atomic_add v{T3}, v{T0}, v{T1}, s[20:21] sc0 sc1")
    A("  s_waitcnt vmcnt(0)")
    ts(3)
    A(f"  ds_write_b32 v{T2}, v{T3}")
    A("  s_mov_b64 exec, -1")
    A("  s_waitcnt lgkmcnt(0)")
    A(f"{lab('w')}:")
    A("  s_barrier")
    A(f"  ds_read_b32 v{T3}, v{T2}")
    A(f"  v_add_u32 v4, 0x1000, v{vL16}\n  v_add_u32 v5, 0x2000, v{vL16}\n  v_add_u32 v6, 0x3000, v{vL16}")
    A("  s_waitcnt lgkmcnt(0)")
    A(f"  v_readfirstlane_b32 s58, v{T3}")
    A("  s_cmp_lg_u32 s58, 15")
    A(f"  s_cbranch_scc1 {lab('fin')}")
    ts(4)
    C = 16
    for s in range(16):
        A(f"  buffer_load_dwordx4 v[{C+4*s}:{C+4*s+3}], v{3+(s>>2)}, s[24:27], s56 offen offset:{(s&3)*1024} sc1")
    A("  s_mov_b32 s28, s18\n  s_mov_b32 s29, s19\n  s_mov_b32 s30, 0x4000\n  s_mov_b32 s31, 0x20000")
    A(f"  v_lshlrev_b32 v8, 2, v{vI}\n  v_lshl_add_u32 v8, v{vQ}, 8, v8")
    A("  s_lshl_b32 s57, s3, 6\n  s_add_u32 s57, s57, s52")
    A("  s_waitcnt vmcnt(0)")
    ts(5)
    A(f"  v_max3_f32 v9, v{C+2}, v{C+6}, v{C+10}")
    for s in range(3, 15, 2): A(f"  v_max3_f32 v9, v9, v{C+4*s+2}, v{C+4*s+6}")
    A(f"  v_max_f32 v9, v9, v{C+62}")
    for s in range(16): A(f"  v_sub_f32 v{C+4*s+2}, v{C+4*s+2}, v9")
    for s in range(16): A(f"  v_exp_f32 v{C+4*s+2}, v{C+4*s+2}")
    A(f"  v_mul_f32 v10, v{C}, v{C+2}\n  v_mul_f32 v11, v{C+1}, v{C+2}\n  v_mul_f32 v12, v{C+3}, v{C+2}")
    for s in range(1, 16):
        A(f"  v_fmac_f32 v10, v{C+4*s}, v{C+4*s+2}\n  v_fmac_f32 v11, v{C+4*s+1}, v{C+4*s+2}\n  v_fmac_f32 v12, v{C+4*s+3}, v{C+4*s+2}")
    A("  v_rcp_f32 v12, v12\n  s_nop 0\n  v_mul_f32 v10, v10, v12\n  v_mul_f32 v11, v11, v12")
    A("  v_cvt_pk_bf16_f32 v10, v10, v11")
    A("  buffer_store_dword v10, v8, s[28:31], s57 offen")
    ts(6)
    A(f"{lab('fin')}:")
    if dstamp:
        A(f"  s_waitcnt vmcnt(0)\n  s_cmp_lg_u32 s3, 0\n  s_cbranch_scc1 {lab('end')}")
        A("  s_memrealtime s[62:63]")
        dst(8, "s72", True); dst(9, "s72"); dst(10, "s74", True); dst(11, "s74"); dst(12, "s62", True); dst(13, "s62")
    if stamp:
        A("  s_waitcnt vmcnt(0)")
        A("  s_memrealtime s[62:63]\n  s_getreg_b32 s64, hwreg(HW_REG_XCC_ID)\n  s_waitcnt lgkmcnt(0)")
        A("  s_mul_i32 s65, s2, 5\n  s_add_u32 s65, s65, s3\n  s_add_u32 s65, s65, 1\n  s_lshl_b32 s65, s65, 4\n  s_add_u32 s65, s65, 0x200000")
        A("  v_mov_b32 v0, s60\n  v_mov_b32 v1, s62\n  v_mov_b32 v2, s64\n  v_mov_b32 v3, 0\n  v_mov_b32 v4, s65")
        A("  s_mov_b64 exec, 1\n  global_store_dwordx4 v4, v[0:3], s[22:23]")
        A(f"  s_cmp_lg_u32 s3, 0\n  s_cbranch_scc1 {lab('end')}\n  s_mov_b64 exec, -1")
        A("  v_mbcnt_lo_u32_b32 v4, -1, 0\n  v_mbcnt_hi_u32_b32 v4, -1, v4\n  v_lshlrev_b32 v4, 2, v4\n  s_lshl_b32 s65, s2, 9\n  s_add_u32 s65, s65, 0x400000\n  v_add_u32 v4, s65, v4")
        A("  global_store_dword v4, v100, s[22:23]\n  global_store_dword v4, v101, s[22:23] offset:256")
        A("  s_mov_b64 exec, 1\n  s_lshl_b32 s65, s2, 5\n  s_add_u32 s65, s65, 0x600000\n  v_mov_b32 v4, s65\n  s_mov_b32 s90, s62")
        for n in range(8): A(f"  v_mov_b32 v{8+n}, s{76+2*n}")
        A("  global_store_dwordx4 v4, v[8:11], s[22:23]\n  global_store_dwordx4 v4, v[12:15], s[22:23] offset:16")
    A(f"{lab('end')}:")
    A("  s_endpgm")
    kd = f""".section .rodata,"a"
.p2align 6
.amdhsa_kernel {kname}
  .amdhsa_next_free_vgpr {104 if (stamp or dstamp) else 96}
  .amdhsa_next_free_sgpr 96
  .amdhsa_accum_offset {104 if (stamp or dstamp) else 96}
  .amdhsa_group_segment_fixed_size 0
  .amdhsa_kernarg_size 80
  .amdhsa_user_sgpr_count 2
  .amdhsa_user_sgpr_kernarg_segment_ptr 1
  .amdhsa_system_sgpr_workgroup_id_x 1
  .amdhsa_float_denorm_mode_32 3
.end_amdhsa_kernel
"""
    body = "\n".join(L) + "\n" + kd
    if standalone:
        return HEADER + f"; @launch grid=(256,1,1) block=(320,1,1) lds={LDS_BYTES}\n" + '.amdgcn_target "amdgcn-amd-amdhsa--gfx950"\n.text\n' + body
    return body + ".text\n"

def meta(names):
    s = ".amdgpu_metadata\n---\namdhsa.version: [1, 2]\namdhsa.kernels:\n"
    for n, mw in names.items():
        s += f"""  - .name: {n}
    .symbol: {n}.kd
    .kernarg_segment_size: 80
    .kernarg_segment_align: 8
    .group_segment_fixed_size: 0
    .private_segment_fixed_size: 0
    .wavefront_size: 64
    .sgpr_count: 102
    .vgpr_count: 128
    .max_flat_workgroup_size: {mw}
    .args:
      - {{.name: kernargs, .size: 80, .offset: 0, .value_kind: by_value}}
"""
    return s + "...\n.end_amdgpu_metadata\n"

def bench_file(path, variants):
    out = '.amdgcn_target "amdgcn-amd-amdhsa--gfx950"\n.text\n'
    specs = []
    import os
    co = os.path.basename(path)[:-2] + ".co"
    for n, kw in variants.items():
        out += gen(kname=n, standalone=False, **kw)
        specs.append(f"{n}={co}@{n}:256:320:{LDS_BYTES}")
    out += meta({n: 320 for n in variants})
    open(path, "w").write(out)
    open(path[:-2] + ".specs", "w").write(" ".join(specs))

if __name__ == "__main__":
    ap = argparse.ArgumentParser()
    ap.add_argument("-o", default=f"cdna_kernels/{NAME}.s")
    ap.add_argument("-W", type=int, default=20)
    ap.add_argument("--kflags", default="nt")
    ap.add_argument("--vflags", default="nt")
    ap.add_argument("--sflags", default="nt")
    ap.add_argument("--pre", type=int, default=0)
    ap.add_argument("--dstamp", action="store_true")
    ap.add_argument("--W2", type=int, default=0)
    ap.add_argument("-X", type=int, default=0)
    a = ap.parse_args()
    open(a.o, "w").write(gen(W=a.W, kflags=a.kflags, vflags=a.vflags, sflags=a.sflags, pre=a.pre, dstamp=a.dstamp, W2=a.W2, X=a.X))
```

```python
import struct, sys, argparse, os
from gen1 import NAME, HEADER, f32hex, meta

RING, LOG, KS, KZ, VS, VZ, AUX, MX, MISC = 0, 65536, 98304, 114688, 131072, 135168, 139264, 143360, 143616
LAST, PART = MISC, MISC + 16
LDS_BYTES = 143872
WS_REC, WS_CNT, WS_AUX, AUXS = 0, 0x100000, 0x101000, 640
WS_BYTES = 0x200000
STAMP0 = 0x800000

def gen(W=20, F=6, stamp=False, kname=None, standalone=True, spin=1 << 16, vpre=True, dW=2, late=True, cfl="sc1", pfl="sc1", noclear=False):
    kname = kname or NAME + "_kernel"
    NSV = 64 - F
    assert 17 <= W <= 32 and F % 2 == 0 and WS_AUX + 16 * 16 * F * AUXS <= WS_BYTES
    L = []
    A = L.append
    tag = "L" + (kname[-12:].strip("_") if not standalone else "")
    lab = lambda s: f"{tag}_{s}"
    c2 = f32hex((128 ** -0.5) * 1.4426950408889634)
    WX = W + dW
    ibx = WX - 17
    assert WX <= 32
    ib = W - 17

    A(f".globl {kname}\n.p2align 8\n.type {kname},@function\n{kname}:")
    A(f"  s_cmp_ge_u32 s2, 256\n  s_cbranch_scc1 {lab('end')}")
    if stamp: A("  s_memrealtime s[92:93]")
    A("  s_load_dwordx16 s[4:19], s[0:1], 0")
    A("  s_load_dwordx4 s[20:23], s[0:1], 64")
    A("  v_lshrrev_b32 v1, 6, v0")
    A("  v_and_b32 v0, 63, v0                    ; lane")
    A("  v_readfirstlane_b32 s3, v1")
    A("  s_lshr_b32 s50, s2, 4")
    A("  s_and_b32 s51, s2, 7")
    A("  s_bfe_u32 s52, s2, 0x10003              ; u")
    A("  s_lshl1_add_u32 s51, s51, s52")
    A("  s_cmp_lg_u32 s3, 0")
    A(f"  s_cbranch_scc1 {lab('cons')}")
    A("  s_setprio 3")
    A("  v_lshrrev_b32 v5, 5, v0")
    A("  v_xor_b32 v1, v0, v5")
    A("  v_lshlrev_b32 v1, 4, v1")
    A("  v_xor_b32 v2, 64, v1")
    A("  v_xor_b32 v3, 0x80, v1")
    A("  v_xor_b32 v4, 0xc0, v1")
    A("  s_lshr_b32 s53, s51, 1\n  s_lshl_b32 s53, s53, 21\n  s_lshl_b32 s52, s52, 15\n  s_add_u32 s53, s53, s52")
    A("  s_lshl_b32 s28, s50, 24")
    A("  s_mov_b32 s26, 0x1000000\n  s_mov_b32 s27, 0x20000")
    A("  s_mov_b32 s30, s53")
    A("  s_mov_b32 s34, 0")
    A(f"  s_mov_b32 s31, {8 + (ib >> 2)}")
    A("  s_add_u32 s33, s53, 0x200000")
    A("  s_mov_b32 s36, 0                        ; phase")
    A("  s_waitcnt lgkmcnt(0)")
    A("  s_add_u32 s24, s6, s28\n  s_addc_u32 s25, s7, 0")
    A(f"{lab('ld')}:")
    A("  s_mov_b32 m0, s34")
    for i in range(4):
        A(f"  s_waitcnt vmcnt({W-1})")
        if i == (ib & 3):
            A(f"  s_sub_u32 s31, s31, 1\n  s_cbranch_scc0 {lab('ld_nb')}\n  s_barrier\n  s_mov_b32 s31, 3\n{lab('ld_nb')}:")
        A(f"  buffer_load_dwordx4 v{1+i}, s[24:27], s30 offen offset:{i*1024} nt lds")
    A("  s_add_u32 s30, s30, 0x1000\n  s_add_u32 s34, s34, 0x1000\n  s_and_b32 s34, s34, 0xffff")
    A("  s_and_b32 s35, s30, 0x7000\n  s_cselect_b32 s35, 0, 0x8000\n  s_add_u32 s30, s30, s35")
    A(f"  s_cmp_lt_u32 s30, s33\n  s_cbranch_scc1 {lab('ld')}")
    A(f"  s_cmp_lg_u32 s36, 0\n  s_cbranch_scc1 {lab('ldx')}")
    A("  s_mov_b32 s36, 1")
    A("  s_add_u32 s24, s8, s28\n  s_addc_u32 s25, s9, 0")
    A("  s_mov_b32 s30, s53")
    A(f"  s_add_u32 s33, s53, {(NSV-2)//2*65536}")
    for i in range(4): A(f"  v_lshlrev_b32 v{1+i}, 4, v0")
    A(f"  s_branch {lab('ld')}")
    A(f"{lab('ldx')}:")
    A(f"  v_mov_b32 v8, {PART}\n  ds_read_b32 v9, v8")
    A(f"  s_lshl_b32 s37, s50, 8\n  s_add_u32 s37, s37, {WS_CNT}\n  v_mov_b32 v11, s37\n  v_mov_b32 v10, 1")
    A("  v_mov_b32 v12, -1\n  v_mov_b32 v13, -1")
    A(f"  s_mov_b32 s44, s22\n  s_mov_b32 s45, s23\n  s_mov_b32 s46, {WS_BYTES}\n  s_mov_b32 s47, 0x20000")
    A(f"  s_mul_i32 s49, s50, {16*F*AUXS}\n  s_add_u32 s49, s49, {WS_AUX}")
    A(f"  s_mov_b32 s40, {64+NSV-2}")
    A("  s_mov_b32 s38, -1\n  s_mov_b32 s39, 0xff")
    A("  s_waitcnt lgkmcnt(0)")
    A("  v_readfirstlane_b32 s41, v9")
    A("  s_mov_b32 s48, s41")
    A(f"{lab('fx')}:")
    for par in range(2):
        A(f"  s_cmp_lt_u32 s40, {64+NSV}\n  s_cbranch_scc1 {lab(f'own{par}')}")
        A(f"  v_readfirstlane_b32 s41, v{12+par}")
        A(f"  s_cmp_ge_u32 s41, {16*F}\n  s_cbranch_scc1 {lab('ldend')}")
        A("  s_bfe_u32 s42, s41, 0x30001\n  s_lshl_b32 s30, s42, 21\n  s_and_b32 s42, s41, 1\n  s_lshl_b32 s42, s42, 15\n  s_add_u32 s30, s30, s42")
        A(f"  s_lshr_b32 s43, s41, 4\n  s_add_u32 s43, s43, {NSV}\n  s_lshr_b32 s42, s43, 1\n  s_lshl_b32 s42, s42, 16\n  s_add_u32 s30, s30, s42")
        A("  s_and_b32 s42, s43, 1\n  s_lshl_b32 s42, s42, 14\n  s_add_u32 s30, s30, s42")
        A(f"  s_mul_i32 s42, s41, {AUXS}\n  s_add_u32 s42, s42, s49")
        A(f"  s_lshr_b32 s43, s34, 4\n  s_add_u32 m0, s43, {AUX}\n  s_mov_b64 exec, s[38:39]")
        A(f"  s_waitcnt vmcnt({WX-1})")
        A("  buffer_load_dwordx4 v1, s[44:47], s42 offen sc1 lds")
        A(f"{lab(f'own{par}')}:")
        A(f"  s_cmp_eq_u32 s48, 0\n  s_cbranch_scc1 {lab(f'noc{par}')}")
        A(f"  s_mov_b64 exec, 1\n  s_waitcnt vmcnt({WX-1})\n  global_atomic_add v{12+par}, v11, v10, s[22:23] sc0 sc1")
        A(f"{lab(f'noc{par}')}:")
        A("  s_mov_b64 exec, -1")
        for g in range(4):
            A("  s_mov_b32 m0, s34")
            for i in range(4):
                A(f"  s_waitcnt vmcnt({WX-1})")
                if 4*g + i == ibx: A("  s_barrier")
                A(f"  buffer_load_dwordx4 v1, s[24:27], s30 offen offset:{i*1024} nt lds")
            A("  s_add_u32 s30, s30, 0x1000\n  s_add_u32 s34, s34, 0x1000")
        A("  s_and_b32 s34, s34, 0xffff\n  s_add_u32 s40, s40, 1")
    A(f"  s_branch {lab('fx')}")
    A(f"{lab('ldend')}:")
    A(f"  s_sub_u32 s40, s40, 1\n  v_mov_b32 v8, {LAST}\n  v_mov_b32 v9, s40\n  ds_write_b32 v8, v9")
    A("  s_waitcnt vmcnt(16) lgkmcnt(0)\n  s_barrier\n  s_waitcnt vmcnt(0)\n  s_barrier")
    if stamp:
        A("  s_memrealtime s[62:63]\n  s_getreg_b32 s64, hwreg(HW_REG_XCC_ID)\n  s_waitcnt lgkmcnt(0)")
        A(f"  s_mul_i32 s65, s2, 5\n  s_lshl_b32 s65, s65, 4\n  s_add_u32 s65, s65, {STAMP0}")
        A("  v_mov_b32 v0, s92\n  v_mov_b32 v1, s62\n  v_mov_b32 v2, s64\n  v_mov_b32 v3, s40\n  v_mov_b32 v4, s65")
        A("  s_mov_b64 exec, 1\n  global_store_dwordx4 v4, v[0:3], s[22:23]")
    A("  s_endpgm")

    vI, vQ, vL16 = 1, 2, 3
    aK = [4, 5, 6, 7]
    aS, aZ, aL, vM = 8, 9, 10, 11
    aV, aP, aVS, vLs = 12, 13, 14, 15
    QF, KR, KSr, KZr, OA, OB, ACC = 16, 32, 48, 56, 64, 72, 80
    T0, T1, T2, T3 = 92, 93, 94, 95
    vLAST, vArr, vChk, aMisc = 96, 97, 98, 99
    A(f"{lab('cons')}:")
    A("  s_sub_u32 s3, s3, 1")
    A(f"  v_and_b32 v{vI}, 15, v0")
    A(f"  v_lshrrev_b32 v{vQ}, 4, v0")
    A(f"  v_lshlrev_b32 v{vL16}, 4, v0")
    A(f"  v_and_b32 v{T0}, 3, v{vI}               ; h = j&3")
    A(f"  v_bfe_u32 v{T1}, v{vI}, 2, 1            ; hfb")
    A(f"  v_lshlrev_b32 v{T2}, 4, v{vQ}           ; q*16")
    A(f"  v_lshl_add_u32 v{T2}, v{T1}, 7, v{T2}   ; hfb*128 + q*16")
    A(f"  v_lshl_add_u32 v{T3}, v{T0}, 8, v{T2}")
    A(f"  v_add_u32 v{aS}, {KS}, v{T2}")
    A(f"  v_lshrrev_b32 v{T1}, 5, v0\n  v_and_b32 v{aV}, 31, v0\n  v_lshlrev_b32 v{aV}, 4, v{aV}\n  v_lshl_add_u32 v{aV}, v{T1}, 10, v{aV}")
    A(f"  v_lshrrev_b32 v{T1}, 3, v0\n  v_and_b32 v{aP}, 7, v0\n  v_lshlrev_b32 v{aP}, 4, v{aP}\n  v_lshl_add_u32 v{aP}, v{T1}, 8, v{aP}")
    A("  s_lshr_b32 s53, s51, 1\n  s_lshl_b32 s53, s53, 7\n  s_lshl1_add_u32 s53, s52, s53\n  s_lshl_b32 s54, s50, 10\n  s_add_u32 s53, s53, s54")
    A("  s_lshl_b32 s54, s53, 6")
    A("  s_lshl_b32 s59, s53, 14                 ; g0*16384 (V bytes)")
    A("  s_lshl_b32 s53, s53, 8")
    A("  s_lshl_b32 s52, s50, 10")
    A("  s_lshl_b32 s55, s3, 10                  ; w*1024")
    A("  s_lshl_b32 s57, s3, 11                  ; w*2048")
    A("  s_mov_b32 s26, 0x4000\n  s_mov_b32 s27, 0x20000")
    A("  s_mov_b32 s30, 32256\n  s_mov_b32 s31, 0x20000")
    A("  s_mov_b32 s34, 32256\n  s_mov_b32 s35, 0x20000")
    A("  s_mov_b32 s38, 8064\n  s_mov_b32 s39, 0x20000")
    A("  s_mov_b32 s42, 8064\n  s_mov_b32 s43, 0x20000")
    A("  s_waitcnt lgkmcnt(0)")
    A("  s_mov_b32 s24, s4\n  s_mov_b32 s25, s5")
    A(f"  buffer_load_dwordx4 v[{KR}:{KR+3}], v{T3}, s[24:27], s52 offen")
    A(f"  buffer_load_dwordx4 v[{KR+4}:{KR+7}], v{T3}, s[24:27], s52 offen offset:64")
    A("  s_add_u32 s28, s10, s53\n  s_addc_u32 s29, s11, 0")
    A("  s_add_u32 s32, s12, s53\n  s_addc_u32 s33, s13, 0")
    A("  s_add_u32 s36, s14, s54\n  s_addc_u32 s37, s15, 0")
    A("  s_add_u32 s40, s16, s54\n  s_addc_u32 s41, s17, 0")
    for k in range(4):
        A(f"  s_add_u32 s56, s57, {k*8192}")
        A(f"  s_add_u32 m0, s55, {KS + k*4096}\n  s_nop 0")
        A(f"  buffer_load_dwordx4 v{aV}, s[28:31], s56 offen nt lds")
        A(f"  s_add_u32 m0, s55, {KZ + k*4096}\n  s_nop 0")
        A(f"  buffer_load_dwordx4 v{aV}, s[32:35], s56 offen nt lds")
    A(f"  s_add_u32 m0, s55, {VS}\n  s_nop 0")
    A(f"  buffer_load_dwordx4 v{aP}, s[36:39], s57 offen nt lds")
    A(f"  s_add_u32 m0, s55, {VZ}\n  s_nop 0")
    A(f"  buffer_load_dwordx4 v{aP}, s[40:43], s57 offen nt lds")
    nvm = 12
    A(f"  s_mov_b32 s44, s22\n  s_mov_b32 s45, s23\n  s_mov_b32 s46, {WS_BYTES}\n  s_mov_b32 s47, 0x20000")
    A("  s_lshl2_add_u32 s56, s50, s3\n  s_lshl_b32 s56, s56, 14")
    A("  s_lshl_b32 s57, s51, 10\n  s_add_u32 s57, s57, s56")
    def clears():
        nonlocal nvm
        for n in range(4): A(f"  v_mov_b32 v{KSr+n}, 0")
        if not noclear: A(f"  buffer_store_dwordx4 v[{KSr}:{KSr+3}], v{vL16}, s[44:47], s57 offen {cfl}"); nvm += 1
        A(f"  s_lshl_b32 s53, s50, 8\n  s_add_u32 s53, s53, {WS_CNT}")
        A("  s_add_u32 s54, s51, s3\n  s_cmp_eq_u32 s54, 0\n  s_cselect_b32 s53, s53, 0x7ffffff0")
        A(f"  s_mov_b64 exec, 1\n  buffer_store_dword v{KSr}, v{vL16}, s[44:47], s53 offen sc1"); nvm += 1
        if vpre:
            A("  s_add_u32 s24, s8, s62\n  s_addc_u32 s25, s9, 0")
            A(f"  buffer_load_dword v{vChk}, v{vL16}, s[24:27], 0 offen nt"); nvm += 1
        A("  s_mov_b64 exec, -1")
    A("  s_mov_b32 s62, s59")
    if not late: clears()
    A(f"  v_and_b32 v{T1}, 7, v{vI}               ; tt")
    A(f"  v_lshrrev_b32 v{T2}, 3, v{vI}           ; hfa")
    A(f"  v_lshlrev_b32 v{aZ}, 4, v{vQ}")
    A(f"  v_lshl_add_u32 v{aZ}, v{T2}, 7, v{aZ}")
    A(f"  v_add_u32 v{aZ}, {KZ}, v{aZ}")
    A(f"  v_lshlrev_b32 v{T2}, 4, v{T2}")
    A(f"  v_lshl_add_u32 v{T2}, v{vQ}, 1, v{T2}   ; c0 = 16*hfa + 2q")
    A(f"  v_and_b32 v{T3}, 6, v{T1}")
    A(f"  v_lshlrev_b32 v{T3}, 1, v{T3}")
    A(f"  v_and_or_b32 v{T3}, v{T1}, 1, v{T3}     ; swizzle f(t)")
    A(f"  v_xor_b32 v{T2}, v{T2}, v{T3}")
    A(f"  v_lshlrev_b32 v{T2}, 4, v{T2}")
    A(f"  v_lshl_add_u32 v{T2}, v{T1}, 9, v{T2}")
    A("  s_lshl_b32 s58, s3, 12")
    A(f"  v_add_u32 v{aK[0]}, s58, v{T2}")
    A(f"  v_xor_b32 v{aK[1]}, 16, v{aK[0]}")
    A(f"  v_xor_b32 v{aK[2]}, 0x80, v{aK[0]}")
    A(f"  v_xor_b32 v{aK[3]}, 0x90, v{aK[0]}")
    A(f"  v_and_b32 v{T1}, 1, v{vQ}")
    A(f"  v_lshrrev_b32 v{T2}, 1, v{vQ}")
    A(f"  v_lshl_add_u32 v{T1}, v{T1}, 2, v{T2}")
    A(f"  v_lshlrev_b32 v{T1}, 2, v{T1}")
    A(f"  v_lshl_add_u32 v{T1}, v{T0}, 7, v{T1}")
    A(f"  s_lshl_b32 s58, s3, 5\n  s_add_u32 s58, s58, {LOG}")
    A(f"  v_add_u32 v{aL}, s58, v{T1}")
    A(f"  v_lshlrev_b32 v{T1}, 3, v{vI}")
    A(f"  v_lshl_add_u32 v{T1}, v{vQ}, 12, v{T1}")
    A("  s_lshl_b32 s58, s3, 7")
    A(f"  v_add_u32 v{aV}, s58, v{T1}")
    A(f"  v_lshrrev_b32 v{T1}, 2, v{vI}")
    A(f"  v_lshlrev_b32 v{T2}, 5, v{vQ}")
    A(f"  v_lshl_add_u32 v{T2}, v{T1}, 7, v{T2}")
    A(f"  v_add_u32 v{aP}, {LOG}, v{T2}")
    A(f"  v_lshlrev_b32 v{aVS}, 4, v{vQ}")
    A(f"  v_add_u32 v{aVS}, {VS}, v{aVS}")
    A(f"  v_mov_b32 v{vM}, 0xff800000")
    A(f"  v_mov_b32 v{vLs}, 0")
    A(f"  v_mov_b32 v{aMisc}, {MISC}\n  v_mov_b32 v{T0}, -1\n  ds_write_b32 v{aMisc}, v{T0}")
    A("  s_mov_b32 s48, 0x000f000f\n  s_mov_b32 s49, 0x000f000f")
    A("  s_mov_b32 s58, 0xffff0000")
    A(f"  s_waitcnt vmcnt({nvm-2})")
    for n in range(8):
        A(f"  v_lshlrev_b32 v{QF+2*n}, 16, v{KR+n}")
        A(f"  v_and_b32 v{QF+2*n+1}, s58, v{KR+n}")
    for n in range(16):
        A(f"  v_mul_f32 v{QF+n}, {c2}, v{QF+n}")
    A("  s_mov_b32 s59, 0")
    A(f"  s_waitcnt vmcnt({nvm-4})")
    def tl(vr, sreg, k=None):
        A("  s_waitcnt lgkmcnt(0)\n  s_memrealtime s[66:67]")
        if k is None: A(f"  s_and_b32 m0, {sreg}, 63")
        else: A(f"  s_lshl_b32 s68, {sreg}, 2\n  s_add_u32 m0, s68, {k}")
        A(f"  s_waitcnt lgkmcnt(0)\n  v_writelane_b32 v{vr}, s66, m0")
    A(f"{lab('k')}:")
    for k in range(4):
        if k == 3: A("  s_waitcnt vmcnt(0)")
        if stamp == 2: tl(102, "s59", k)
        A("  s_barrier")
        if stamp: tl(100, "s59", k)
        A(f"  ds_read_b128 v[{KSr}:{KSr+3}], v{aS} offset:{k*256}")
        A(f"  ds_read_b128 v[{KSr+4}:{KSr+7}], v{aS} offset:{k*256+64}")
        for n in range(4):
            A(f"  ds_read_b128 v[{KR+4*n}:{KR+4*n+3}], v{aK[n]} offset:{k*16384}")
        A(f"  ds_read_b128 v[{KZr}:{KZr+3}], v{aZ} offset:{k*256}")
        A(f"  ds_read_b128 v[{KZr+4}:{KZr+7}], v{aZ} offset:{k*256+64}")
        for m in range(2):
            A(f"  s_waitcnt lgkmcnt({7-m})")
            for n in range(4):
                r = KSr + 4*m + n
                A(f"  v_lshlrev_b32 v{T0}, 16, v{r}")
                A(f"  v_and_b32 v{T1}, s58, v{r}")
                A(f"  v_mul_f32 v{T0}, v{T0}, v{QF+8*m+2*n}")
                A(f"  v_mul_f32 v{T1}, v{T1}, v{QF+8*m+2*n+1}")
                A(f"  v_cvt_pk_bf16_f32 v{OB+4*m+n}, v{T0}, v{T1}")
        for m in range(2):
            A(f"  s_waitcnt lgkmcnt({4-2*m})")
            for n in range(8):
                A(f"  v_cvt_f32_i32 v{KR+8*m+n}, v{KR+8*m+n}")
            for n in range(4):
                A(f"  v_cvt_pk_bf16_f32 v{OA+4*m+n}, v{KR+8*m+2*n}, v{KR+8*m+2*n+1}")
        A("  s_waitcnt lgkmcnt(0)")
        for n in range(4): A(f"  v_xor_b32 v{KZr+n}, 0x80008000, v{KZr+n}")
        A(f"  v_mfma_f32_16x16x32_bf16 v[{ACC}:{ACC+3}], v[{OA}:{OA+3}], v[{OB}:{OB+3}], 0")
        for n in range(4, 8): A(f"  v_xor_b32 v{KZr+n}, 0x80008000, v{KZr+n}")
        A(f"  v_mfma_f32_16x16x32_bf16 v[{ACC}:{ACC+3}], v[{OA+4}:{OA+7}], v[{OB+4}:{OB+7}], v[{ACC}:{ACC+3}]")
        A(f"  v_mfma_f32_16x16x32_bf16 v[{ACC}:{ACC+3}], v[{KZr}:{KZr+3}], v[{OB}:{OB+3}], v[{ACC}:{ACC+3}]")
        A(f"  v_mfma_f32_16x16x32_bf16 v[{ACC}:{ACC+3}], v[{KZr+4}:{KZr+7}], v[{OB+4}:{OB+7}], v[{ACC}:{ACC+3}]")
        A("  s_nop 7")
        A(f"  v_permlane32_swap_b32 v{ACC}, v{ACC+1}")
        A(f"  v_permlane32_swap_b32 v{ACC+2}, v{ACC+3}")
        A("  s_nop 1")
        A(f"  v_add_f32_dpp v{T0}, v{ACC+1}, v{ACC} row_shl:4 row_mask:0xf bank_mask:0xf bound_ctrl:1")
        A(f"  v_add_f32_dpp v{T1}, v{ACC+3}, v{ACC+2} row_shl:4 row_mask:0xf bank_mask:0xf bound_ctrl:1")
        A("  s_mov_b64 exec, s[48:49]")
        A(f"  ds_write_b32 v{aL}, v{T0} offset:{k*512}")
        A(f"  ds_write_b32 v{aL}, v{T1} offset:{k*512+8}")
        A(f"  v_max3_f32 v{vM}, v{vM}, v{T0}, v{T1}")
        A("  s_mov_b64 exec, -1")
    A(f"  v_add_u32 v{aS}, 0x400, v{aS}")
    A(f"  v_add_u32 v{aZ}, 0x400, v{aZ}")
    A(f"  v_add_u32 v{aL}, 0x800, v{aL}")
    if late:
        A(f"  s_cmp_lg_u32 s59, 1\n  s_cbranch_scc1 {lab('kn')}")
        clears()
        A(f"{lab('kn')}:")
    A(f"  s_add_u32 s59, s59, 1\n  s_cmp_lt_u32 s59, 16\n  s_cbranch_scc1 {lab('k')}")
    A(f"  v_and_b32 v{T0}, 3, v{vI}")
    A(f"  v_lshlrev_b32 v{T1}, 2, v{vQ}")
    A(f"  v_lshl_add_u32 v{T0}, v{T0}, 6, v{T1}")
    A(f"  s_lshl_b32 s53, s3, 4\n  s_add_u32 s53, s53, {MX}")
    A(f"  v_add_u32 v{T0}, s53, v{T0}")
    A("  s_mov_b64 exec, s[48:49]")
    A(f"  ds_write_b32 v{T0}, v{vM}")
    A("  s_mov_b64 exec, -1")
    A(f"  v_lshrrev_b32 v{T1}, 2, v{vI}")
    A(f"  v_lshlrev_b32 v{T1}, 6, v{T1}")
    A(f"  v_add_u32 v{T1}, {MX}, v{T1}")
    ACC0, ACC1, ACCZ = 80, 84, 88
    for n in range(12): A(f"  v_mov_b32 v{ACC0+n}, 0")
    A(f"  s_add_u32 s53, s3, {NSV}\n  s_lshl_b32 s54, s53, 9\n  s_add_u32 s54, s54, {LOG}\n  s_lshl_b32 s53, s53, 6")
    A(f"  v_add_u32 v{T2}, s54, v{vL16}\n  v_mov_b32 v{T3}, 2048")
    A(f"  s_add_u32 s54, s53, {VS - 512}\n  s_mov_b32 exec_lo, 0\n  s_mov_b32 exec_hi, 0xf\n  v_add_u32 v{T2}, s54, v{vL16}\n  v_mov_b32 v{T3}, 256")
    A(f"  s_add_u32 s54, s53, {VZ - 576}\n  s_mov_b32 exec_hi, 0xf0\n  v_add_u32 v{T2}, s54, v{vL16}\n  v_mov_b32 v{T3}, 256")
    A("  s_mov_b64 exec, -1")
    A(f"  v_add_u32 v{aL}, v{T2}, v{T3}\n  v_mov_b32 v{aK[0]}, v{T2}")
    A(f"  s_mul_i32 s53, s50, {16*F}\n  s_lshl_b32 s54, s3, 4\n  s_add_u32 s53, s53, s54\n  s_add_u32 s53, s53, s51\n  s_mul_i32 s53, s53, {AUXS}\n  s_add_u32 s53, s53, {WS_AUX}")
    A(f"  s_add_u32 s54, s53, {64*AUXS}\n  s_cmp_lt_u32 s3, {F-4}\n  s_cselect_b32 s54, s54, 0x7ffffff0")
    if F < 4: A(f"  s_cmp_lt_u32 s3, {F}\n  s_cselect_b32 s53, s53, 0x7ffffff0")
    A("  s_mov_b32 s59, 64")
    H0 = 66
    A("  s_mov_b32 s60, s53\n  s_mov_b32 s61, s54")
    A(f"  s_mov_b32 s55, {H0}")
    A("  s_waitcnt lgkmcnt(0)")
    if stamp == 2: tl(103, "s59")
    A("  s_barrier")
    if stamp: tl(101, "s59")
    for n in range(4): A(f"  ds_read_b128 v[{KR+4*n}:{KR+4*n+3}], v{T1} offset:{16*n}")
    A("  s_waitcnt lgkmcnt(0)")
    A(f"  v_max3_f32 v{vM}, v{KR}, v{KR+1}, v{KR+2}")
    for n in range(3, 15, 2): A(f"  v_max3_f32 v{vM}, v{vM}, v{KR+n}, v{KR+n+1}")
    A(f"  v_max_f32 v{vM}, v{vM}, v{KR+15}")
    A(f"  s_branch {lab('v1')}")
    A(f"{lab('hook')}:")
    A(f"  s_cmp_lg_u32 s59, {H0}\n  s_cbranch_scc1 {lab('h1')}")
    A("  s_mov_b32 exec_hi, 0xff")
    A(f"  ds_read_b128 v[{KZr}:{KZr+3}], v{aK[0]}\n  ds_read_b128 v[{KZr+4}:{KZr+7}], v{aL}")
    A("  s_waitcnt lgkmcnt(1)")
    A(f"  buffer_store_dwordx4 v[{KZr}:{KZr+3}], v{vL16}, s[44:47], s60 offen {pfl}")
    A("  s_waitcnt lgkmcnt(0)")
    A(f"  buffer_store_dwordx4 v[{KZr+4}:{KZr+7}], v{vL16}, s[44:47], s61 offen {pfl}")
    A("  s_mov_b64 exec, -1")
    A(f"  s_mov_b32 s55, {H0+1}\n  s_branch {lab('v1')}")
    A(f"{lab('h1')}:")
    A(f"  s_cmp_lg_u32 s59, {H0+1}\n  s_cbranch_scc1 {lab('h2')}")
    A("  s_waitcnt vmcnt(0)")
    A(f"  s_cmp_eq_u32 s3, 0\n  s_cselect_b32 s55, {H0+2}, 0")
    A(f"  s_branch {lab('v1')}")
    A(f"{lab('h2')}:")
    A("  s_and_b32 s53, s50, 3\n  s_lshl_b32 s53, s53, 6\n  s_and_b32 s54, s50, 12\n  s_add_u32 s53, s53, s54")
    A(f"  v_mov_b32 v{T0}, s53\n  v_mov_b32 v{T1}, 1\n  s_mov_b64 exec, 1")
    A(f"  s_cmp_lg_u32 s59, {H0+2}\n  s_cbranch_scc1 {lab('h3')}")
    A(f"  global_atomic_add v{vArr}, v{T0}, v{T1}, s[20:21] sc0 sc1")
    A(f"  s_mov_b32 s55, 104\n  s_branch {lab('hx')}")
    A(f"{lab('h3')}:")
    A("  s_waitcnt vmcnt(0)")
    A(f"  s_cmp_lg_u32 s59, 104\n  s_cbranch_scc1 {lab('h4')}")
    A(f"  global_load_dword v{vChk}, v{T0}, s[20:21] sc1")
    A(f"  s_mov_b32 s55, 107\n  s_branch {lab('hx')}")
    A(f"{lab('h4')}:")
    A(f"  v_add_u32 v{vArr}, 1, v{vArr}\n  v_max_u32 v{T0}, v{vArr}, v{vChk}\n  v_lshrrev_b32 v{T0}, 4, v{T0}")
    A(f"  ds_write_b32 v{aMisc}, v{T0} offset:16")
    A(f"{lab('hx')}:")
    A(f"  s_mov_b64 exec, -1\n  s_branch {lab('v1')}")
    SL, VSr, VZr, VR, PA, B0, B1, U = 16, 24, 28, 32, 64, 72, 76, 48
    def vstep(flex):
        if flex:
            A(f"  ds_read_b128 v[{SL}:{SL+3}], v{aP}")
            A(f"  ds_read_b128 v[{SL+4}:{SL+7}], v{aP} offset:16")
            A(f"  ds_read_b128 v[{VSr}:{VSr+3}], v{aVS} offset:512")
            A(f"  ds_read_b128 v[{VZr}:{VZr+3}], v{aVS} offset:576")
        else:
            A(f"  ds_read_b128 v[{SL}:{SL+3}], v{aP}")
            A(f"  ds_read_b128 v[{SL+4}:{SL+7}], v{aP} offset:16")
            A(f"  ds_read_b128 v[{VSr}:{VSr+3}], v{aVS}")
            A(f"  ds_read_b128 v[{VZr}:{VZr+3}], v{aVS} offset:4096")
        for n in range(8):
            A(f"  ds_read_b64 v[{VR+2*n}:{VR+2*n+1}], v{aV} offset:{n*512}")
        A(f"  ds_read_b32 v{vLAST}, v{aMisc}")
        A(f"  v_add_u32 v{aV}, 0x4000, v{aV}\n  v_and_b32 v{aV}, 0xffff, v{aV}")
        A("  s_waitcnt lgkmcnt(11)")
        if flex:
            A(f"  v_max3_f32 v{T0}, v{SL}, v{SL+1}, v{SL+2}\n  v_max3_f32 v{T0}, v{T0}, v{SL+3}, v{SL+4}")
            A(f"  v_max3_f32 v{T0}, v{T0}, v{SL+5}, v{SL+6}\n  v_max3_f32 v{T0}, v{T0}, v{SL+7}, v{vM}")
            A(f"  v_mov_b32 v{T1}, v{T0}\n  s_nop 1\n  v_permlane32_swap_b32 v{T0}, v{T1}\n  s_nop 0\n  v_max_f32 v{T0}, v{T0}, v{T1}")
            A(f"  v_mov_b32 v{T1}, v{T0}\n  s_nop 1\n  v_permlane16_swap_b32 v{T0}, v{T1}\n  s_nop 0\n  v_max_f32 v{T0}, v{T0}, v{T1}")
            A(f"  v_sub_f32 v{T1}, v{vM}, v{T0}\n  v_exp_f32 v{T1}, v{T1}\n  v_mov_b32 v{vM}, v{T0}")
        for n in range(8): A(f"  v_sub_f32 v{SL+n}, v{SL+n}, v{vM}")
        if flex:
            A(f"  v_mul_f32 v{vLs}, v{vLs}, v{T1}")
            for qq in range(4):
                A(f"  v_mov_b32_dpp v{T2}, v{T1} row_newbcast:{4*qq} row_mask:{1<<qq:#x} bank_mask:0xf")
        for n in range(8): A(f"  v_exp_f32 v{SL+n}, v{SL+n}")
        if flex:
            for r in (ACC0, ACC1, ACCZ): A(f"  v_mul_f32 v{r}, v{r}, v{T2}")
        A("  s_waitcnt lgkmcnt(10)")
        for n in range(4):
            A(f"  v_lshlrev_b32 v{U+2*n}, 16, v{VSr+n}")
            A(f"  v_and_b32 v{U+2*n+1}, s58, v{VSr+n}")
        for n in range(8): A(f"  v_mul_f32 v{U+n}, v{U+n}, v{SL+n}")
        for n in range(4): A(f"  v_cvt_pk_bf16_f32 v{PA+n}, v{U+2*n}, v{U+2*n+1}")
        for n in range(8): A(f"  v_add_f32 v{vLs}, v{vLs}, v{SL+n}")
        A("  s_waitcnt lgkmcnt(5)")
        A(f"  v_mfma_f32_16x16x32_bf16 v[{ACCZ}:{ACCZ+3}], v[{PA}:{PA+3}], v[{VZr}:{VZr+3}], v[{ACCZ}:{ACCZ+3}]")
        for half in range(2):
            if half: A("  s_waitcnt lgkmcnt(0)")
            for n in range(8): A(f"  v_cvt_f32_i32 v{VR+8*half+n}, v{VR+8*half+n}")
            for n in range(2):
                b = VR + 8*half + 4*n
                A(f"  v_cvt_pk_bf16_f32 v{B0+2*half+n}, v{b}, v{b+2}")
                A(f"  v_cvt_pk_bf16_f32 v{B1+2*half+n}, v{b+1}, v{b+3}")
        A(f"  v_readfirstlane_b32 s53, v{vLAST}")
        A(f"  v_mfma_f32_16x16x32_bf16 v[{ACC0}:{ACC0+3}], v[{PA}:{PA+3}], v[{B0}:{B0+3}], v[{ACC0}:{ACC0+3}]")
        A(f"  v_mfma_f32_16x16x32_bf16 v[{ACC1}:{ACC1+3}], v[{PA}:{PA+3}], v[{B1}:{B1+3}], v[{ACC1}:{ACC1+3}]")
    A(f"{lab('v')}:")
    if stamp == 2: tl(103, "s59")
    A("  s_barrier")
    if stamp: tl(101, "s59")
    A(f"  s_cmp_eq_u32 s59, s55\n  s_cbranch_scc1 {lab('hook')}")
    A(f"{lab('v1')}:")
    vstep(False)
    A(f"  v_add_u32 v{aP}, 0x200, v{aP}\n  v_add_u32 v{aVS}, 64, v{aVS}")
    A(f"  s_add_u32 s59, s59, 1\n  s_cmp_lt_u32 s59, {64+NSV}\n  s_cbranch_scc1 {lab('v')}")
    A(f"  v_subrev_u32 v{aP}, {LOG + NSV*512 - AUX}, v{aP}\n  v_subrev_u32 v{aVS}, {VS + NSV*64 - AUX}, v{aVS}")
    A(f"  v_mov_b32 v{aS}, v{aP}\n  v_mov_b32 v{aZ}, v{aVS}")
    A(f"{lab('vx')}:")
    A(f"  s_cmp_lt_u32 s53, s59\n  s_cbranch_scc1 {lab('vend')}")
    A(f"  s_and_b32 s54, s59, 3\n  s_lshl_b32 s54, s54, 10\n  v_add_u32 v{aP}, s54, v{aS}\n  v_add_u32 v{aVS}, s54, v{aZ}")
    A("  s_barrier")
    vstep(True)
    A(f"  s_add_u32 s59, s59, 1\n  s_branch {lab('vx')}")
    A(f"{lab('vend')}:")
    ts = lambda n: A(f"  s_memrealtime s[{76+2*n}:{77+2*n}]") if stamp else None
    if stamp:
        for n in range(76, 92): A(f"  s_mov_b32 s{n}, 0")
    ts(0)
    R = 16
    A(f"  v_mov_b32 v{T0}, v{vLs}\n  ds_read_b32 v{T3}, v{aMisc} offset:16\n  s_lshl_b32 s54, s3, 2")
    A(f"  v_permlane32_swap_b32 v{T0}, v{vLs}\n  s_nop 0\n  v_add_f32 v{vLs}, v{T0}, v{vLs}")
    A(f"  v_mov_b32 v{T0}, v{vLs}\n  s_nop 1\n  v_permlane16_swap_b32 v{T0}, v{vLs}\n  s_nop 0\n  v_add_f32 v{vLs}, v{T0}, v{vLs}")
    A(f"  v_sub_f32 v{R}, v{ACC0}, v{ACCZ}\n  v_sub_f32 v{R+1}, v{ACC1}, v{ACCZ}")
    for qq in range(4):
        A(f"  v_mov_b32_dpp v{R+2}, v{vM} row_newbcast:{4*qq} row_mask:{1<<qq:#x} bank_mask:0xf")
        A(f"  v_mov_b32_dpp v{R+3}, v{vLs} row_newbcast:{4*qq} row_mask:{1<<qq:#x} bank_mask:0xf")
    A(f"  buffer_store_dwordx4 v[{R}:{R+3}], v{vL16}, s[44:47], s57 offen sc1")
    ts(1)
    A(f"  s_cmp_lg_u32 s54, s51\n  s_cbranch_scc1 {lab('fin')}")
    A(f"  v_add_u32 v4, 0x1000, v{vL16}\n  v_add_u32 v5, 0x2000, v{vL16}\n  v_add_u32 v6, 0x3000, v{vL16}")
    A("  s_mov_b32 s28, s18\n  s_mov_b32 s29, s19\n  s_mov_b32 s30, 0x4000\n  s_mov_b32 s31, 0x20000")
    A(f"  v_lshlrev_b32 v8, 2, v{vI}\n  v_lshl_add_u32 v8, v{vQ}, 8, v8")
    A(f"  s_lshl_b32 s57, s3, 6\n  s_add_u32 s57, s57, s52\n  s_mov_b32 s55, {spin}")
    A(f"  s_waitcnt lgkmcnt(0)\n  v_readfirstlane_b32 s53, v{T3}\n  s_cmp_lg_u32 s53, 0\n  s_cbranch_scc1 {lab('poll')}")
    A("  s_and_b32 s53, s50, 3\n  s_lshl_b32 s53, s53, 6\n  s_and_b32 s54, s50, 12\n  s_add_u32 s53, s53, s54\n  v_mov_b32 v9, s53")
    A(f"{lab('arr')}:")
    A("  global_load_dword v10, v9, s[20:21] sc1\n  s_sub_u32 s55, s55, 1\n  s_waitcnt vmcnt(0)")
    A(f"  s_cbranch_scc1 {lab('fin')}\n  v_readfirstlane_b32 s53, v10\n  s_cmp_lt_u32 s53, 16\n  s_cbranch_scc1 {lab('arr')}")
    C = 16
    A(f"{lab('poll')}:")
    for s in range(16):
        A(f"  buffer_load_dwordx4 v[{C+4*s}:{C+4*s+3}], v{3+(s>>2)}, s[44:47], s56 offen offset:{(s&3)*1024} sc1")
    A(f"  s_sub_u32 s55, s55, 1\n  s_cbranch_scc1 {lab('fin')}")
    A("  s_waitcnt vmcnt(0)")
    A(f"  v_min3_u32 v9, v{C+3}, v{C+7}, v{C+11}")
    for s in range(3, 15, 2): A(f"  v_min3_u32 v9, v9, v{C+4*s+3}, v{C+4*s+7}")
    A(f"  v_min_u32 v9, v9, v{C+63}\n  v_cmp_eq_u32 vcc, 0, v9")
    A(f"  v_max3_f32 v9, v{C+2}, v{C+6}, v{C+10}")
    for s in range(3, 15, 2): A(f"  v_max3_f32 v9, v9, v{C+4*s+2}, v{C+4*s+6}")
    A(f"  s_cbranch_vccnz {lab('poll')}")
    ts(5)
    A(f"  v_max_f32 v9, v9, v{C+62}")
    for s in range(16): A(f"  v_sub_f32 v{C+4*s+2}, v{C+4*s+2}, v9")
    for s in range(16): A(f"  v_exp_f32 v{C+4*s+2}, v{C+4*s+2}")
    A(f"  v_mul_f32 v10, v{C}, v{C+2}\n  v_mul_f32 v11, v{C+1}, v{C+2}\n  v_mul_f32 v12, v{C+3}, v{C+2}")
    for s in range(1, 16):
        A(f"  v_fmac_f32 v10, v{C+4*s}, v{C+4*s+2}\n  v_fmac_f32 v11, v{C+4*s+1}, v{C+4*s+2}\n  v_fmac_f32 v12, v{C+4*s+3}, v{C+4*s+2}")
    A("  v_rcp_f32 v12, v12\n  s_nop 0\n  v_mul_f32 v10, v10, v12\n  v_mul_f32 v11, v11, v12")
    A("  v_cvt_pk_bf16_f32 v10, v10, v11")
    A("  buffer_store_dword v10, v8, s[28:31], s57 offen")
    ts(6)
    A(f"{lab('fin')}:")
    if stamp:
        A("  s_waitcnt vmcnt(0)")
        A("  s_memrealtime s[62:63]\n  s_getreg_b32 s64, hwreg(HW_REG_XCC_ID)\n  s_waitcnt lgkmcnt(0)")
        A(f"  s_mul_i32 s65, s2, 5\n  s_add_u32 s65, s65, s3\n  s_add_u32 s65, s65, 1\n  s_lshl_b32 s65, s65, 4\n  s_add_u32 s65, s65, {STAMP0}")
        A("  v_mov_b32 v0, s92\n  v_mov_b32 v1, s62\n  v_mov_b32 v2, s64\n  v_mov_b32 v3, s55\n  v_mov_b32 v4, s65")
        A("  s_mov_b64 exec, 1\n  global_store_dwordx4 v4, v[0:3], s[22:23]")
        A(f"  s_cmp_lg_u32 s3, 0\n  s_cbranch_scc1 {lab('end')}\n  s_mov_b64 exec, -1")
        A(f"  v_mbcnt_lo_u32_b32 v4, -1, 0\n  v_mbcnt_hi_u32_b32 v4, -1, v4\n  v_lshlrev_b32 v4, 2, v4\n  s_lshl_b32 s65, s2, 9\n  s_add_u32 s65, s65, {STAMP0+0x200000}\n  v_add_u32 v4, s65, v4")
        A("  global_store_dword v4, v100, s[22:23]\n  global_store_dword v4, v101, s[22:23] offset:256")
        A("  v_add_u32 v4, 0x100000, v4\n  global_store_dword v4, v102, s[22:23]\n  global_store_dword v4, v103, s[22:23] offset:256")
        A(f"  s_mov_b64 exec, 1\n  s_lshl_b32 s65, s2, 5\n  s_add_u32 s65, s65, {STAMP0+0x400000}\n  v_mov_b32 v4, s65\n  s_mov_b32 s90, s62")
        for n in range(8): A(f"  v_mov_b32 v{8+n}, s{76+2*n}")
        A("  global_store_dwordx4 v4, v[8:11], s[22:23]\n  global_store_dwordx4 v4, v[12:15], s[22:23] offset:16")
    A(f"{lab('end')}:")
    A("  s_endpgm")
    nv = 104 if stamp else 100
    kd = f""".section .rodata,"a"
.p2align 6
.amdhsa_kernel {kname}
  .amdhsa_next_free_vgpr {nv}
  .amdhsa_next_free_sgpr {96 if stamp else 64}
  .amdhsa_accum_offset {nv}
  .amdhsa_group_segment_fixed_size 0
  .amdhsa_kernarg_size 80
  .amdhsa_user_sgpr_count 2
  .amdhsa_user_sgpr_kernarg_segment_ptr 1
  .amdhsa_system_sgpr_workgroup_id_x 1
  .amdhsa_float_denorm_mode_32 3
.end_amdhsa_kernel
"""
    body = "\n".join(L) + "\n" + kd
    if standalone:
        return HEADER + f"; @launch grid=(256,1,1) block=(320,1,1) lds={LDS_BYTES}\n" + '.amdgcn_target "amdgcn-amd-amdhsa--gfx950"\n.text\n' + body
    return body + ".text\n"

def bench_file(path, variants):
    out = '.amdgcn_target "amdgcn-amd-amdhsa--gfx950"\n.text\n'
    specs = []
    co = os.path.basename(path)[:-2] + ".co"
    for n, kw in variants.items():
        out += gen(kname=n, standalone=False, **kw)
        specs.append(f"{n}={co}@{n}:256:320:{LDS_BYTES}")
    out += meta({n: 320 for n in variants})
    open(path, "w").write(out)
    open(path[:-2] + ".specs", "w").write(" ".join(specs))

if __name__ == "__main__":
    ap = argparse.ArgumentParser()
    ap.add_argument("-o", default=f"cdna_kernels/{NAME}.s")
    ap.add_argument("-W", type=int, default=20)
    ap.add_argument("-F", type=int, default=6)
    ap.add_argument("--dW", type=int, default=2)
    a = ap.parse_args()
    open(a.o, "w").write(gen(W=a.W, F=a.F, dW=a.dW))
```

```python
import struct, sys, argparse, os
from gen1 import NAME, HEADER, f32hex, meta

RING, LOG, KS, KZ, VS, VZ, AUX, MX, MISC = 0, 65536, 98304, 114688, 131072, 135168, 139264, 143360, 143616
LAST, PART = MISC, MISC + 16
LDS_BYTES = 143872
WS_REC, WS_CNT, WS_AUX, AUXS = 0, 0x100000, 0x101000, 640
WS_BYTES = 0x200000
STAMP0 = 0x800000

def gen(W=20, F=6, stamp=False, kname=None, standalone=True, spin=1 << 16, vpre=True, dW=2, late=True, cfl="sc1", pfl="sc1", noclear=False, mapping="same"):
    kname = kname or NAME + "_kernel"
    NSV = 64 - F
    assert 17 <= W <= 32 and F % 2 == 0 and WS_AUX + 16 * 16 * F * AUXS <= WS_BYTES
    L = []
    A = L.append
    tag = "L" + (kname[-12:].strip("_") if not standalone else "")
    lab = lambda s: f"{tag}_{s}"
    c2 = f32hex((128 ** -0.5) * 1.4426950408889634)
    WX = W + dW
    ibx = WX - 17
    assert WX <= 32
    ib = W - 17

    A(f".globl {kname}\n.p2align 8\n.type {kname},@function\n{kname}:")
    A(f"  s_cmp_ge_u32 s2, 256\n  s_cbranch_scc1 {lab('end')}")
    if stamp: A("  s_memrealtime s[92:93]")
    A("  s_load_dwordx16 s[4:19], s[0:1], 0")
    A("  s_load_dwordx4 s[20:23], s[0:1], 64")
    A("  v_lshrrev_b32 v1, 6, v0")
    A("  v_and_b32 v0, 63, v0                    ; lane")
    A("  v_readfirstlane_b32 s3, v1")
    A("  s_lshr_b32 s50, s2, 4")
    if mapping == "same":
        A("  s_and_b32 s51, s2, 7")
        A("  s_bfe_u32 s52, s2, 0x10003              ; u")
        A("  s_lshl1_add_u32 s51, s51, s52")
    else:
        A("  s_and_b32 s51, s2, 15\n  s_and_b32 s52, s2, 1\n  s_nop 0")
    A("  s_cmp_lg_u32 s3, 0")
    A(f"  s_cbranch_scc1 {lab('cons')}")
    A("  s_setprio 3")
    A("  v_lshrrev_b32 v5, 5, v0")
    A("  v_xor_b32 v1, v0, v5")
    A("  v_lshlrev_b32 v1, 4, v1")
    A("  v_xor_b32 v2, 64, v1")
    A("  v_xor_b32 v3, 0x80, v1")
    A("  v_xor_b32 v4, 0xc0, v1")
    A("  s_lshr_b32 s53, s51, 1\n  s_lshl_b32 s53, s53, 21\n  s_lshl_b32 s52, s52, 15\n  s_add_u32 s53, s53, s52")
    A("  s_lshl_b32 s28, s50, 24")
    A("  s_mov_b32 s26, 0x1000000\n  s_mov_b32 s27, 0x20000")
    A("  s_mov_b32 s30, s53")
    A("  s_mov_b32 s34, 0")
    A(f"  s_mov_b32 s31, {8 + (ib >> 2)}")
    A("  s_add_u32 s33, s53, 0x200000")
    A("  s_mov_b32 s36, 0                        ; phase")
    A("  s_waitcnt lgkmcnt(0)")
    A("  s_add_u32 s24, s6, s28\n  s_addc_u32 s25, s7, 0")
    A(f"{lab('ld')}:")
    A("  s_mov_b32 m0, s34")
    for i in range(4):
        A(f"  s_waitcnt vmcnt({W-1})")
        if i == (ib & 3):
            A(f"  s_sub_u32 s31, s31, 1\n  s_cbranch_scc0 {lab('ld_nb')}\n  s_barrier\n  s_mov_b32 s31, 3\n{lab('ld_nb')}:")
        A(f"  buffer_load_dwordx4 v{1+i}, s[24:27], s30 offen offset:{i*1024} nt lds")
    A("  s_add_u32 s30, s30, 0x1000\n  s_add_u32 s34, s34, 0x1000\n  s_and_b32 s34, s34, 0xffff")
    A("  s_and_b32 s35, s30, 0x7000\n  s_cselect_b32 s35, 0, 0x8000\n  s_add_u32 s30, s30, s35")
    A(f"  s_cmp_lt_u32 s30, s33\n  s_cbranch_scc1 {lab('ld')}")
    A(f"  s_cmp_lg_u32 s36, 0\n  s_cbranch_scc1 {lab('ldx')}")
    A("  s_mov_b32 s36, 1")
    A("  s_add_u32 s24, s8, s28\n  s_addc_u32 s25, s9, 0")
    A("  s_mov_b32 s30, s53")
    A(f"  s_add_u32 s33, s53, {(NSV-2)//2*65536}")
    for i in range(4): A(f"  v_lshlrev_b32 v{1+i}, 4, v0")
    A(f"  s_branch {lab('ld')}")
    A(f"{lab('ldx')}:")
    A(f"  v_mov_b32 v8, {PART}\n  ds_read_b32 v9, v8")
    A(f"  s_lshl_b32 s37, s50, 8\n  s_add_u32 s37, s37, {WS_CNT}\n  v_mov_b32 v11, s37\n  v_mov_b32 v10, 1")
    A("  v_mov_b32 v12, -1\n  v_mov_b32 v13, -1")
    A(f"  s_mov_b32 s44, s22\n  s_mov_b32 s45, s23\n  s_mov_b32 s46, {WS_BYTES}\n  s_mov_b32 s47, 0x20000")
    A(f"  s_mul_i32 s49, s50, {16*F*AUXS}\n  s_add_u32 s49, s49, {WS_AUX}")
    A(f"  s_mov_b32 s40, {64+NSV-2}")
    A("  s_mov_b32 s38, -1\n  s_mov_b32 s39, 0xff")
    A("  s_waitcnt lgkmcnt(0)")
    A("  v_readfirstlane_b32 s41, v9")
    A("  s_mov_b32 s48, s41")
    A(f"{lab('fx')}:")
    for par in range(2):
        A(f"  s_cmp_lt_u32 s40, {64+NSV}\n  s_cbranch_scc1 {lab(f'own{par}')}")
        A(f"  v_readfirstlane_b32 s41, v{12+par}")
        A(f"  s_cmp_ge_u32 s41, {16*F}\n  s_cbranch_scc1 {lab('ldend')}")
        A("  s_bfe_u32 s42, s41, 0x30001\n  s_lshl_b32 s30, s42, 21\n  s_and_b32 s42, s41, 1\n  s_lshl_b32 s42, s42, 15\n  s_add_u32 s30, s30, s42")
        A(f"  s_lshr_b32 s43, s41, 4\n  s_add_u32 s43, s43, {NSV}\n  s_lshr_b32 s42, s43, 1\n  s_lshl_b32 s42, s42, 16\n  s_add_u32 s30, s30, s42")
        A("  s_and_b32 s42, s43, 1\n  s_lshl_b32 s42, s42, 14\n  s_add_u32 s30, s30, s42")
        A(f"  s_mul_i32 s42, s41, {AUXS}\n  s_add_u32 s42, s42, s49")
        A(f"  s_lshr_b32 s43, s34, 4\n  s_add_u32 m0, s43, {AUX}\n  s_mov_b64 exec, s[38:39]")
        A(f"  s_waitcnt vmcnt({WX-1})")
        A("  buffer_load_dwordx4 v1, s[44:47], s42 offen sc1 lds")
        A(f"{lab(f'own{par}')}:")
        A(f"  s_cmp_eq_u32 s48, 0\n  s_cbranch_scc1 {lab(f'noc{par}')}")
        A(f"  s_mov_b64 exec, 1\n  s_waitcnt vmcnt({WX-1})\n  global_atomic_add v{12+par}, v11, v10, s[22:23] sc0 sc1")
        A(f"{lab(f'noc{par}')}:")
        A("  s_mov_b64 exec, -1")
        for g in range(4):
            A("  s_mov_b32 m0, s34")
            for i in range(4):
                A(f"  s_waitcnt vmcnt({WX-1})")
                if 4*g + i == ibx: A("  s_barrier")
                A(f"  buffer_load_dwordx4 v1, s[24:27], s30 offen offset:{i*1024} nt lds")
            A("  s_add_u32 s30, s30, 0x1000\n  s_add_u32 s34, s34, 0x1000")
        A("  s_and_b32 s34, s34, 0xffff\n  s_add_u32 s40, s40, 1")
    A(f"  s_branch {lab('fx')}")
    A(f"{lab('ldend')}:")
    A(f"  s_sub_u32 s40, s40, 1\n  v_mov_b32 v8, {LAST}\n  v_mov_b32 v9, s40\n  ds_write_b32 v8, v9")
    A("  s_waitcnt vmcnt(16) lgkmcnt(0)\n  s_barrier\n  s_waitcnt vmcnt(0)\n  s_barrier")
    if stamp:
        A("  s_memrealtime s[62:63]\n  s_getreg_b32 s64, hwreg(HW_REG_XCC_ID)\n  s_waitcnt lgkmcnt(0)")
        A(f"  s_mul_i32 s65, s2, 5\n  s_lshl_b32 s65, s65, 4\n  s_add_u32 s65, s65, {STAMP0}")
        A("  v_mov_b32 v0, s92\n  v_mov_b32 v1, s62\n  v_mov_b32 v2, s64\n  v_mov_b32 v3, s40\n  v_mov_b32 v4, s65")
        A("  s_mov_b64 exec, 1\n  global_store_dwordx4 v4, v[0:3], s[22:23]")
    A("  s_endpgm")

    vI, vQ, vL16 = 1, 2, 3
    aK = [4, 5, 6, 7]
    aS, aZ, aL, vM = 8, 9, 10, 11
    aV, aP, aVS, vLs = 12, 13, 14, 15
    QF, KR, KSr, KZr, OA, OB, ACC = 16, 32, 48, 56, 64, 72, 80
    T0, T1, T2, T3 = 92, 93, 94, 95
    vLAST, vArr, vChk, aMisc = 96, 97, 98, 99
    A(f"{lab('cons')}:")
    A("  s_sub_u32 s3, s3, 1")
    A(f"  v_and_b32 v{vI}, 15, v0")
    A(f"  v_lshrrev_b32 v{vQ}, 4, v0")
    A(f"  v_lshlrev_b32 v{vL16}, 4, v0")
    A(f"  v_and_b32 v{T0}, 3, v{vI}               ; h = j&3")
    A(f"  v_bfe_u32 v{T1}, v{vI}, 2, 1            ; hfb")
    A(f"  v_lshlrev_b32 v{T2}, 4, v{vQ}           ; q*16")
    A(f"  v_lshl_add_u32 v{T2}, v{T1}, 7, v{T2}   ; hfb*128 + q*16")
    A(f"  v_lshl_add_u32 v{T3}, v{T0}, 8, v{T2}")
    A(f"  v_add_u32 v{aS}, {KS}, v{T2}")
    A(f"  v_lshrrev_b32 v{T1}, 5, v0\n  v_and_b32 v{aV}, 31, v0\n  v_lshlrev_b32 v{aV}, 4, v{aV}\n  v_lshl_add_u32 v{aV}, v{T1}, 10, v{aV}")
    A(f"  v_lshrrev_b32 v{T1}, 3, v0\n  v_and_b32 v{aP}, 7, v0\n  v_lshlrev_b32 v{aP}, 4, v{aP}\n  v_lshl_add_u32 v{aP}, v{T1}, 8, v{aP}")
    A("  s_lshr_b32 s53, s51, 1\n  s_lshl_b32 s53, s53, 7\n  s_lshl1_add_u32 s53, s52, s53\n  s_lshl_b32 s54, s50, 10\n  s_add_u32 s53, s53, s54")
    A("  s_lshl_b32 s54, s53, 6")
    A("  s_lshl_b32 s59, s53, 14                 ; g0*16384 (V bytes)")
    A("  s_lshl_b32 s53, s53, 8")
    A("  s_lshl_b32 s52, s50, 10")
    A("  s_lshl_b32 s55, s3, 10                  ; w*1024")
    A("  s_lshl_b32 s57, s3, 11                  ; w*2048")
    A("  s_mov_b32 s26, 0x4000\n  s_mov_b32 s27, 0x20000")
    A("  s_mov_b32 s30, 32256\n  s_mov_b32 s31, 0x20000")
    A("  s_mov_b32 s34, 32256\n  s_mov_b32 s35, 0x20000")
    A("  s_mov_b32 s38, 8064\n  s_mov_b32 s39, 0x20000")
    A("  s_mov_b32 s42, 8064\n  s_mov_b32 s43, 0x20000")
    A("  s_waitcnt lgkmcnt(0)")
    A("  s_mov_b32 s24, s4\n  s_mov_b32 s25, s5")
    A(f"  buffer_load_dwordx4 v[{KR}:{KR+3}], v{T3}, s[24:27], s52 offen")
    A(f"  buffer_load_dwordx4 v[{KR+4}:{KR+7}], v{T3}, s[24:27], s52 offen offset:64")
    A("  s_add_u32 s28, s10, s53\n  s_addc_u32 s29, s11, 0")
    A("  s_add_u32 s32, s12, s53\n  s_addc_u32 s33, s13, 0")
    A("  s_add_u32 s36, s14, s54\n  s_addc_u32 s37, s15, 0")
    A("  s_add_u32 s40, s16, s54\n  s_addc_u32 s41, s17, 0")
    for k in range(4):
        A(f"  s_add_u32 s56, s57, {k*8192}")
        A(f"  s_add_u32 m0, s55, {KS + k*4096}\n  s_nop 0")
        A(f"  buffer_load_dwordx4 v{aV}, s[28:31], s56 offen nt lds")
        A(f"  s_add_u32 m0, s55, {KZ + k*4096}\n  s_nop 0")
        A(f"  buffer_load_dwordx4 v{aV}, s[32:35], s56 offen nt lds")
    A(f"  s_add_u32 m0, s55, {VS}\n  s_nop 0")
    A(f"  buffer_load_dwordx4 v{aP}, s[36:39], s57 offen nt lds")
    A(f"  s_add_u32 m0, s55, {VZ}\n  s_nop 0")
    A(f"  buffer_load_dwordx4 v{aP}, s[40:43], s57 offen nt lds")
    nvm = 12
    A(f"  s_mov_b32 s44, s22\n  s_mov_b32 s45, s23\n  s_mov_b32 s46, {WS_BYTES}\n  s_mov_b32 s47, 0x20000")
    A("  s_lshl2_add_u32 s56, s50, s3\n  s_lshl_b32 s56, s56, 14")
    A("  s_lshl_b32 s57, s51, 10\n  s_add_u32 s57, s57, s56")
    def clears():
        nonlocal nvm
        for n in range(4): A(f"  v_mov_b32 v{KSr+n}, 0")
        if not noclear: A(f"  buffer_store_dwordx4 v[{KSr}:{KSr+3}], v{vL16}, s[44:47], s57 offen {cfl}"); nvm += 1
        A(f"  s_lshl_b32 s53, s50, 8\n  s_add_u32 s53, s53, {WS_CNT}")
        A("  s_add_u32 s54, s51, s3\n  s_cmp_eq_u32 s54, 0\n  s_cselect_b32 s53, s53, 0x7ffffff0")
        A(f"  s_mov_b64 exec, 1\n  buffer_store_dword v{KSr}, v{vL16}, s[44:47], s53 offen sc1"); nvm += 1
        if vpre:
            A("  s_add_u32 s24, s8, s62\n  s_addc_u32 s25, s9, 0")
            A(f"  buffer_load_dword v{vChk}, v{vL16}, s[24:27], 0 offen nt"); nvm += 1
        A("  s_mov_b64 exec, -1")
    A("  s_mov_b32 s62, s59")
    if not late: clears()
    A(f"  v_and_b32 v{T1}, 7, v{vI}               ; tt")
    A(f"  v_lshrrev_b32 v{T2}, 3, v{vI}           ; hfa")
    A(f"  v_lshlrev_b32 v{aZ}, 4, v{vQ}")
    A(f"  v_lshl_add_u32 v{aZ}, v{T2}, 7, v{aZ}")
    A(f"  v_add_u32 v{aZ}, {KZ}, v{aZ}")
    A(f"  v_lshlrev_b32 v{T2}, 4, v{T2}")
    A(f"  v_lshl_add_u32 v{T2}, v{vQ}, 1, v{T2}   ; c0 = 16*hfa + 2q")
    A(f"  v_and_b32 v{T3}, 6, v{T1}")
    A(f"  v_lshlrev_b32 v{T3}, 1, v{T3}")
    A(f"  v_and_or_b32 v{T3}, v{T1}, 1, v{T3}     ; swizzle f(t)")
    A(f"  v_xor_b32 v{T2}, v{T2}, v{T3}")
    A(f"  v_lshlrev_b32 v{T2}, 4, v{T2}")
    A(f"  v_lshl_add_u32 v{T2}, v{T1}, 9, v{T2}")
    A("  s_lshl_b32 s58, s3, 12")
    A(f"  v_add_u32 v{aK[0]}, s58, v{T2}")
    A(f"  v_xor_b32 v{aK[1]}, 16, v{aK[0]}")
    A(f"  v_xor_b32 v{aK[2]}, 0x80, v{aK[0]}")
    A(f"  v_xor_b32 v{aK[3]}, 0x90, v{aK[0]}")
    A(f"  v_and_b32 v{T1}, 1, v{vQ}")
    A(f"  v_lshrrev_b32 v{T2}, 1, v{vQ}")
    A(f"  v_lshl_add_u32 v{T1}, v{T1}, 2, v{T2}")
    A(f"  v_lshlrev_b32 v{T1}, 2, v{T1}")
    A(f"  v_lshl_add_u32 v{T1}, v{T0}, 7, v{T1}")
    A(f"  s_lshl_b32 s58, s3, 5\n  s_add_u32 s58, s58, {LOG}")
    A(f"  v_add_u32 v{aL}, s58, v{T1}")
    A(f"  v_lshlrev_b32 v{T1}, 3, v{vI}")
    A(f"  v_lshl_add_u32 v{T1}, v{vQ}, 12, v{T1}")
    A("  s_lshl_b32 s58, s3, 7")
    A(f"  v_add_u32 v{aV}, s58, v{T1}")
    A(f"  v_lshrrev_b32 v{T1}, 2, v{vI}")
    A(f"  v_lshlrev_b32 v{T2}, 5, v{vQ}")
    A(f"  v_lshl_add_u32 v{T2}, v{T1}, 7, v{T2}")
    A(f"  v_add_u32 v{aP}, {LOG}, v{T2}")
    A(f"  v_lshlrev_b32 v{aVS}, 4, v{vQ}")
    A(f"  v_add_u32 v{aVS}, {VS}, v{aVS}")
    A(f"  v_mov_b32 v{vM}, 0xff800000")
    A(f"  v_mov_b32 v{vLs}, 0")
    A(f"  v_mov_b32 v{aMisc}, {MISC}\n  v_mov_b32 v{T0}, -1\n  ds_write_b32 v{aMisc}, v{T0}")
    A("  s_mov_b32 s48, 0x000f000f\n  s_mov_b32 s49, 0x000f000f")
    A("  s_mov_b32 s58, 0xffff0000")
    A(f"  s_waitcnt vmcnt({nvm-2})")
    for n in range(8):
        A(f"  v_lshlrev_b32 v{QF+2*n}, 16, v{KR+n}")
        A(f"  v_and_b32 v{QF+2*n+1}, s58, v{KR+n}")
    for n in range(16):
        A(f"  v_mul_f32 v{QF+n}, {c2}, v{QF+n}")
    A("  s_mov_b32 s59, 0")
    A(f"  s_waitcnt vmcnt({nvm-4})")
    def tl(vr, sreg, k=None):
        A("  s_waitcnt lgkmcnt(0)\n  s_memrealtime s[66:67]")
        if k is None: A(f"  s_and_b32 m0, {sreg}, 63")
        else: A(f"  s_lshl_b32 s68, {sreg}, 2\n  s_add_u32 m0, s68, {k}")
        A(f"  s_waitcnt lgkmcnt(0)\n  v_writelane_b32 v{vr}, s66, m0")
    A(f"{lab('k')}:")
    for k in range(4):
        if k == 3: A("  s_waitcnt vmcnt(0)")
        if stamp == 2: tl(102, "s59", k)
        A("  s_barrier")
        if stamp: tl(100, "s59", k)
        A(f"  ds_read_b128 v[{KSr}:{KSr+3}], v{aS} offset:{k*256}")
        A(f"  ds_read_b128 v[{KSr+4}:{KSr+7}], v{aS} offset:{k*256+64}")
        for n in range(4):
            A(f"  ds_read_b128 v[{KR+4*n}:{KR+4*n+3}], v{aK[n]} offset:{k*16384}")
        A(f"  ds_read_b128 v[{KZr}:{KZr+3}], v{aZ} offset:{k*256}")
        A(f"  ds_read_b128 v[{KZr+4}:{KZr+7}], v{aZ} offset:{k*256+64}")
        for m in range(2):
            A(f"  s_waitcnt lgkmcnt({7-m})")
            for n in range(4):
                r = KSr + 4*m + n
                A(f"  v_lshlrev_b32 v{T0}, 16, v{r}")
                A(f"  v_and_b32 v{T1}, s58, v{r}")
                A(f"  v_mul_f32 v{T0}, v{T0}, v{QF+8*m+2*n}")
                A(f"  v_mul_f32 v{T1}, v{T1}, v{QF+8*m+2*n+1}")
                A(f"  v_cvt_pk_bf16_f32 v{OB+4*m+n}, v{T0}, v{T1}")
        for m in range(2):
            A(f"  s_waitcnt lgkmcnt({4-2*m})")
            for n in range(8):
                A(f"  v_cvt_f32_i32 v{KR+8*m+n}, v{KR+8*m+n}")
            for n in range(4):
                A(f"  v_cvt_pk_bf16_f32 v{OA+4*m+n}, v{KR+8*m+2*n}, v{KR+8*m+2*n+1}")
        A("  s_waitcnt lgkmcnt(0)")
        for n in range(4): A(f"  v_xor_b32 v{KZr+n}, 0x80008000, v{KZr+n}")
        A(f"  v_mfma_f32_16x16x32_bf16 v[{ACC}:{ACC+3}], v[{OA}:{OA+3}], v[{OB}:{OB+3}], 0")
        for n in range(4, 8): A(f"  v_xor_b32 v{KZr+n}, 0x80008000, v{KZr+n}")
        A(f"  v_mfma_f32_16x16x32_bf16 v[{ACC}:{ACC+3}], v[{OA+4}:{OA+7}], v[{OB+4}:{OB+7}], v[{ACC}:{ACC+3}]")
        A(f"  v_mfma_f32_16x16x32_bf16 v[{ACC}:{ACC+3}], v[{KZr}:{KZr+3}], v[{OB}:{OB+3}], v[{ACC}:{ACC+3}]")
        A(f"  v_mfma_f32_16x16x32_bf16 v[{ACC}:{ACC+3}], v[{KZr+4}:{KZr+7}], v[{OB+4}:{OB+7}], v[{ACC}:{ACC+3}]")
        A("  s_nop 7")
        A(f"  v_permlane32_swap_b32 v{ACC}, v{ACC+1}")
        A(f"  v_permlane32_swap_b32 v{ACC+2}, v{ACC+3}")
        A("  s_nop 1")
        A(f"  v_add_f32_dpp v{T0}, v{ACC+1}, v{ACC} row_shl:4 row_mask:0xf bank_mask:0xf bound_ctrl:1")
        A(f"  v_add_f32_dpp v{T1}, v{ACC+3}, v{ACC+2} row_shl:4 row_mask:0xf bank_mask:0xf bound_ctrl:1")
        A("  s_mov_b64 exec, s[48:49]")
        A(f"  ds_write_b32 v{aL}, v{T0} offset:{k*512}")
        A(f"  ds_write_b32 v{aL}, v{T1} offset:{k*512+8}")
        A(f"  v_max3_f32 v{vM}, v{vM}, v{T0}, v{T1}")
        A("  s_mov_b64 exec, -1")
    A(f"  v_add_u32 v{aS}, 0x400, v{aS}")
    A(f"  v_add_u32 v{aZ}, 0x400, v{aZ}")
    A(f"  v_add_u32 v{aL}, 0x800, v{aL}")
    if late:
        A(f"  s_cmp_lg_u32 s59, 1\n  s_cbranch_scc1 {lab('kn')}")
        clears()
        A(f"{lab('kn')}:")
    A(f"  s_add_u32 s59, s59, 1\n  s_cmp_lt_u32 s59, 16\n  s_cbranch_scc1 {lab('k')}")
    A(f"  v_and_b32 v{T0}, 3, v{vI}")
    A(f"  v_lshlrev_b32 v{T1}, 2, v{vQ}")
    A(f"  v_lshl_add_u32 v{T0}, v{T0}, 6, v{T1}")
    A(f"  s_lshl_b32 s53, s3, 4\n  s_add_u32 s53, s53, {MX}")
    A(f"  v_add_u32 v{T0}, s53, v{T0}")
    A("  s_mov_b64 exec, s[48:49]")
    A(f"  ds_write_b32 v{T0}, v{vM}")
    A("  s_mov_b64 exec, -1")
    A(f"  v_lshrrev_b32 v{T1}, 2, v{vI}")
    A(f"  v_lshlrev_b32 v{T1}, 6, v{T1}")
    A(f"  v_add_u32 v{T1}, {MX}, v{T1}")
    ACC0, ACC1, ACCZ = 80, 84, 88
    for n in range(12): A(f"  v_mov_b32 v{ACC0+n}, 0")
    A(f"  s_add_u32 s53, s3, {NSV}\n  s_lshl_b32 s54, s53, 9\n  s_add_u32 s54, s54, {LOG}\n  s_lshl_b32 s53, s53, 6")
    A(f"  v_add_u32 v{T2}, s54, v{vL16}\n  v_mov_b32 v{T3}, 2048")
    A(f"  s_add_u32 s54, s53, {VS - 512}\n  s_mov_b32 exec_lo, 0\n  s_mov_b32 exec_hi, 0xf\n  v_add_u32 v{T2}, s54, v{vL16}\n  v_mov_b32 v{T3}, 256")
    A(f"  s_add_u32 s54, s53, {VZ - 576}\n  s_mov_b32 exec_hi, 0xf0\n  v_add_u32 v{T2}, s54, v{vL16}\n  v_mov_b32 v{T3}, 256")
    A("  s_mov_b64 exec, -1")
    A(f"  v_add_u32 v{aL}, v{T2}, v{T3}            ; same for tile NSV+w+4\n  v_mov_b32 v{aK[0]}, v{T2}")
    A(f"  s_mul_i32 s53, s50, {16*F}\n  s_lshl_b32 s54, s3, 4\n  s_add_u32 s53, s53, s54\n  s_add_u32 s53, s53, s51\n  s_mul_i32 s53, s53, {AUXS}\n  s_add_u32 s53, s53, {WS_AUX}")
    A(f"  s_add_u32 s54, s53, {64*AUXS}\n  s_cmp_lt_u32 s3, {F-4}\n  s_cselect_b32 s54, s54, 0x7ffffff0")
    if F < 4: A(f"  s_cmp_lt_u32 s3, {F}\n  s_cselect_b32 s53, s53, 0x7ffffff0")
    A("  s_mov_b32 s59, 64")
    H0 = 66
    A("  s_mov_b32 s60, s53\n  s_mov_b32 s61, s54")
    A(f"  s_mov_b32 s55, {H0}")
    A("  s_waitcnt lgkmcnt(0)")
    if stamp == 2: tl(103, "s59")
    A("  s_barrier")
    if stamp: tl(101, "s59")
    for n in range(4): A(f"  ds_read_b128 v[{KR+4*n}:{KR+4*n+3}], v{T1} offset:{16*n}")
    A("  s_waitcnt lgkmcnt(0)")
    A(f"  v_max3_f32 v{vM}, v{KR}, v{KR+1}, v{KR+2}")
    for n in range(3, 15, 2): A(f"  v_max3_f32 v{vM}, v{vM}, v{KR+n}, v{KR+n+1}")
    A(f"  v_max_f32 v{vM}, v{vM}, v{KR+15}")
    A(f"  s_branch {lab('v1')}")
    A(f"{lab('hook')}:")
    A(f"  s_cmp_lg_u32 s59, {H0}\n  s_cbranch_scc1 {lab('h1')}")
    A("  s_mov_b32 exec_hi, 0xff")
    A(f"  ds_read_b128 v[{KZr}:{KZr+3}], v{aK[0]}\n  ds_read_b128 v[{KZr+4}:{KZr+7}], v{aL}")
    A("  s_waitcnt lgkmcnt(1)")
    A(f"  buffer_store_dwordx4 v[{KZr}:{KZr+3}], v{vL16}, s[44:47], s60 offen {pfl}")
    A("  s_waitcnt lgkmcnt(0)")
    A(f"  buffer_store_dwordx4 v[{KZr+4}:{KZr+7}], v{vL16}, s[44:47], s61 offen {pfl}")
    A("  s_mov_b64 exec, -1")
    A(f"  s_mov_b32 s55, {H0+1}\n  s_branch {lab('v1')}")
    A(f"{lab('h1')}:")
    A(f"  s_cmp_lg_u32 s59, {H0+1}\n  s_cbranch_scc1 {lab('h2')}")
    A("  s_waitcnt vmcnt(0)")
    A(f"  s_cmp_eq_u32 s3, 0\n  s_cselect_b32 s55, {H0+2}, 0")
    A(f"  s_branch {lab('v1')}")
    A(f"{lab('h2')}:")
    A("  s_and_b32 s53, s50, 3\n  s_lshl_b32 s53, s53, 6\n  s_and_b32 s54, s50, 12\n  s_add_u32 s53, s53, s54")
    A(f"  v_mov_b32 v{T0}, s53\n  v_mov_b32 v{T1}, 1\n  s_mov_b64 exec, 1")
    A(f"  s_cmp_lg_u32 s59, {H0+2}\n  s_cbranch_scc1 {lab('h3')}")
    A(f"  global_atomic_add v{vArr}, v{T0}, v{T1}, s[20:21] sc0 sc1")
    A(f"  s_mov_b32 s55, 104\n  s_branch {lab('hx')}")
    A(f"{lab('h3')}:")
    A("  s_waitcnt vmcnt(0)")
    A(f"  s_cmp_lg_u32 s59, 104\n  s_cbranch_scc1 {lab('h4')}")
    A(f"  global_load_dword v{vChk}, v{T0}, s[20:21] sc1")
    A(f"  s_mov_b32 s55, 107\n  s_branch {lab('hx')}")
    A(f"{lab('h4')}:")
    A(f"  v_add_u32 v{vArr}, 1, v{vArr}\n  v_max_u32 v{T0}, v{vArr}, v{vChk}\n  v_lshrrev_b32 v{T0}, 4, v{T0}")
    A(f"  ds_write_b32 v{aMisc}, v{T0} offset:16")
    A(f"{lab('hx')}:")
    A(f"  s_mov_b64 exec, -1\n  s_branch {lab('v1')}")
    SL, VSr, VZr, VR, PA, B0, B1, U = 16, 24, 28, 32, 64, 72, 76, 48
    def vstep(flex):
        if flex:
            A(f"  ds_read_b128 v[{SL}:{SL+3}], v{aP}")
            A(f"  ds_read_b128 v[{SL+4}:{SL+7}], v{aP} offset:16")
            A(f"  ds_read_b128 v[{VSr}:{VSr+3}], v{aVS} offset:512")
            A(f"  ds_read_b128 v[{VZr}:{VZr+3}], v{aVS} offset:576")
        else:
            A(f"  ds_read_b128 v[{SL}:{SL+3}], v{aP}")
            A(f"  ds_read_b128 v[{SL+4}:{SL+7}], v{aP} offset:16")
            A(f"  ds_read_b128 v[{VSr}:{VSr+3}], v{aVS}")
            A(f"  ds_read_b128 v[{VZr}:{VZr+3}], v{aVS} offset:4096")
        for n in range(8):
            A(f"  ds_read_b64 v[{VR+2*n}:{VR+2*n+1}], v{aV} offset:{n*512}")
        A(f"  ds_read_b32 v{vLAST}, v{aMisc}")
        A(f"  v_add_u32 v{aV}, 0x4000, v{aV}\n  v_and_b32 v{aV}, 0xffff, v{aV}")
        A("  s_waitcnt lgkmcnt(11)")
        if flex:
            A(f"  v_max3_f32 v{T0}, v{SL}, v{SL+1}, v{SL+2}\n  v_max3_f32 v{T0}, v{T0}, v{SL+3}, v{SL+4}")
            A(f"  v_max3_f32 v{T0}, v{T0}, v{SL+5}, v{SL+6}\n  v_max3_f32 v{T0}, v{T0}, v{SL+7}, v{vM}")
            A(f"  v_mov_b32 v{T1}, v{T0}\n  s_nop 1\n  v_permlane32_swap_b32 v{T0}, v{T1}\n  s_nop 0\n  v_max_f32 v{T0}, v{T0}, v{T1}")
            A(f"  v_mov_b32 v{T1}, v{T0}\n  s_nop 1\n  v_permlane16_swap_b32 v{T0}, v{T1}\n  s_nop 0\n  v_max_f32 v{T0}, v{T0}, v{T1}")
            A(f"  v_sub_f32 v{T1}, v{vM}, v{T0}\n  v_exp_f32 v{T1}, v{T1}\n  v_mov_b32 v{vM}, v{T0}")
        for n in range(8): A(f"  v_sub_f32 v{SL+n}, v{SL+n}, v{vM}")
        if flex:
            A(f"  v_mul_f32 v{vLs}, v{vLs}, v{T1}")
            for qq in range(4):
                A(f"  v_mov_b32_dpp v{T2}, v{T1} row_newbcast:{4*qq} row_mask:{1<<qq:#x} bank_mask:0xf")
        for n in range(8): A(f"  v_exp_f32 v{SL+n}, v{SL+n}")
        if flex:
            for r in (ACC0, ACC1, ACCZ): A(f"  v_mul_f32 v{r}, v{r}, v{T2}")
        A("  s_waitcnt lgkmcnt(10)")
        for n in range(4):
            A(f"  v_lshlrev_b32 v{U+2*n}, 16, v{VSr+n}")
            A(f"  v_and_b32 v{U+2*n+1}, s58, v{VSr+n}")
        for n in range(8): A(f"  v_mul_f32 v{U+n}, v{U+n}, v{SL+n}")
        for n in range(4): A(f"  v_cvt_pk_bf16_f32 v{PA+n}, v{U+2*n}, v{U+2*n+1}")
        for n in range(8): A(f"  v_add_f32 v{vLs}, v{vLs}, v{SL+n}")
        A("  s_waitcnt lgkmcnt(5)")
        A(f"  v_mfma_f32_16x16x32_bf16 v[{ACCZ}:{ACCZ+3}], v[{PA}:{PA+3}], v[{VZr}:{VZr+3}], v[{ACCZ}:{ACCZ+3}]")
        for half in range(2):
            if half: A("  s_waitcnt lgkmcnt(0)")
            for n in range(8): A(f"  v_cvt_f32_i32 v{VR+8*half+n}, v{VR+8*half+n}")
            for n in range(2):
                b = VR + 8*half + 4*n
                A(f"  v_cvt_pk_bf16_f32 v{B0+2*half+n}, v{b}, v{b+2}")
                A(f"  v_cvt_pk_bf16_f32 v{B1+2*half+n}, v{b+1}, v{b+3}")
        A(f"  v_readfirstlane_b32 s53, v{vLAST}")
        A(f"  v_mfma_f32_16x16x32_bf16 v[{ACC0}:{ACC0+3}], v[{PA}:{PA+3}], v[{B0}:{B0+3}], v[{ACC0}:{ACC0+3}]")
        A(f"  v_mfma_f32_16x16x32_bf16 v[{ACC1}:{ACC1+3}], v[{PA}:{PA+3}], v[{B1}:{B1+3}], v[{ACC1}:{ACC1+3}]")
    A(f"{lab('v')}:")
    if stamp == 2: tl(103, "s59")
    A("  s_barrier")
    if stamp: tl(101, "s59")
    A(f"  s_cmp_eq_u32 s59, s55\n  s_cbranch_scc1 {lab('hook')}")
    A(f"{lab('v1')}:")
    vstep(False)
    A(f"  v_add_u32 v{aP}, 0x200, v{aP}\n  v_add_u32 v{aVS}, 64, v{aVS}")
    A(f"  s_add_u32 s59, s59, 1\n  s_cmp_lt_u32 s59, {64+NSV}\n  s_cbranch_scc1 {lab('v')}")
    A(f"  v_subrev_u32 v{aP}, {LOG + NSV*512 - AUX}, v{aP}\n  v_subrev_u32 v{aVS}, {VS + NSV*64 - AUX}, v{aVS}")
    A(f"  v_mov_b32 v{aS}, v{aP}\n  v_mov_b32 v{aZ}, v{aVS}")
    A(f"{lab('vx')}:")
    A(f"  s_cmp_lt_u32 s53, s59\n  s_cbranch_scc1 {lab('vend')}")
    A(f"  s_and_b32 s54, s59, 3\n  s_lshl_b32 s54, s54, 10\n  v_add_u32 v{aP}, s54, v{aS}\n  v_add_u32 v{aVS}, s54, v{aZ}")
    A("  s_barrier")
    vstep(True)
    A(f"  s_add_u32 s59, s59, 1\n  s_branch {lab('vx')}")
    A(f"{lab('vend')}:")
    ts = lambda n: A(f"  s_memrealtime s[{76+2*n}:{77+2*n}]") if stamp else None
    if stamp:
        for n in range(76, 92): A(f"  s_mov_b32 s{n}, 0")
    ts(0)
    R = 16
    A(f"  v_mov_b32 v{T0}, v{vLs}\n  ds_read_b32 v{T3}, v{aMisc} offset:16\n  s_lshl_b32 s54, s3, 2")
    A(f"  v_permlane32_swap_b32 v{T0}, v{vLs}\n  s_nop 0\n  v_add_f32 v{vLs}, v{T0}, v{vLs}")
    A(f"  v_mov_b32 v{T0}, v{vLs}\n  s_nop 1\n  v_permlane16_swap_b32 v{T0}, v{vLs}\n  s_nop 0\n  v_add_f32 v{vLs}, v{T0}, v{vLs}")
    A(f"  v_sub_f32 v{R}, v{ACC0}, v{ACCZ}\n  v_sub_f32 v{R+1}, v{ACC1}, v{ACCZ}")
    for qq in range(4):
        A(f"  v_mov_b32_dpp v{R+2}, v{vM} row_newbcast:{4*qq} row_mask:{1<<qq:#x} bank_mask:0xf")
        A(f"  v_mov_b32_dpp v{R+3}, v{vLs} row_newbcast:{4*qq} row_mask:{1<<qq:#x} bank_mask:0xf")
    A(f"  buffer_store_dwordx4 v[{R}:{R+3}], v{vL16}, s[44:47], s57 offen sc1")
    ts(1)
    A(f"  s_cmp_lg_u32 s54, s51\n  s_cbranch_scc1 {lab('fin')}")
    A(f"  v_add_u32 v4, 0x1000, v{vL16}\n  v_add_u32 v5, 0x2000, v{vL16}\n  v_add_u32 v6, 0x3000, v{vL16}")
    A("  s_mov_b32 s28, s18\n  s_mov_b32 s29, s19\n  s_mov_b32 s30, 0x4000\n  s_mov_b32 s31, 0x20000")
    A(f"  v_lshlrev_b32 v8, 2, v{vI}\n  v_lshl_add_u32 v8, v{vQ}, 8, v8")
    A(f"  s_lshl_b32 s57, s3, 6\n  s_add_u32 s57, s57, s52\n  s_mov_b32 s55, {spin}")
    A(f"  s_waitcnt lgkmcnt(0)\n  v_readfirstlane_b32 s53, v{T3}\n  s_cmp_lg_u32 s53, 0\n  s_cbranch_scc1 {lab('poll')}")
    A("  s_and_b32 s53, s50, 3\n  s_lshl_b32 s53, s53, 6\n  s_and_b32 s54, s50, 12\n  s_add_u32 s53, s53, s54\n  v_mov_b32 v9, s53")
    A(f"{lab('arr')}:")
    A("  global_load_dword v10, v9, s[20:21] sc1\n  s_sub_u32 s55, s55, 1\n  s_waitcnt vmcnt(0)")
    A(f"  s_cbranch_scc1 {lab('fin')}\n  v_readfirstlane_b32 s53, v10\n  s_cmp_lt_u32 s53, 16\n  s_cbranch_scc1 {lab('arr')}")
    C = 16
    A(f"{lab('poll')}:")
    for s in range(16):
        A(f"  buffer_load_dwordx4 v[{C+4*s}:{C+4*s+3}], v{3+(s>>2)}, s[44:47], s56 offen offset:{(s&3)*1024} sc1")
    A(f"  s_sub_u32 s55, s55, 1\n  s_cbranch_scc1 {lab('fin')}")
    A("  s_waitcnt vmcnt(0)")
    A(f"  v_min3_u32 v9, v{C+3}, v{C+7}, v{C+11}")
    for s in range(3, 15, 2): A(f"  v_min3_u32 v9, v9, v{C+4*s+3}, v{C+4*s+7}")
    A(f"  v_min_u32 v9, v9, v{C+63}\n  v_cmp_eq_u32 vcc, 0, v9")
    A(f"  v_max3_f32 v9, v{C+2}, v{C+6}, v{C+10}")
    for s in range(3, 15, 2): A(f"  v_max3_f32 v9, v9, v{C+4*s+2}, v{C+4*s+6}")
    A(f"  s_cbranch_vccnz {lab('poll')}")
    ts(5)
    A(f"  v_max_f32 v9, v9, v{C+62}")
    for s in range(16): A(f"  v_sub_f32 v{C+4*s+2}, v{C+4*s+2}, v9")
    for s in range(16): A(f"  v_exp_f32 v{C+4*s+2}, v{C+4*s+2}")
    A(f"  v_mul_f32 v10, v{C}, v{C+2}\n  v_mul_f32 v11, v{C+1}, v{C+2}\n  v_mul_f32 v12, v{C+3}, v{C+2}")
    for s in range(1, 16):
        A(f"  v_fmac_f32 v10, v{C+4*s}, v{C+4*s+2}\n  v_fmac_f32 v11, v{C+4*s+1}, v{C+4*s+2}\n  v_fmac_f32 v12, v{C+4*s+3}, v{C+4*s+2}")
    A("  v_rcp_f32 v12, v12\n  s_nop 0\n  v_mul_f32 v10, v10, v12\n  v_mul_f32 v11, v11, v12")
    A("  v_cvt_pk_bf16_f32 v10, v10, v11")
    A("  buffer_store_dword v10, v8, s[28:31], s57 offen")
    ts(6)
    A(f"{lab('fin')}:")
    if stamp:
        A("  s_waitcnt vmcnt(0)")
        A("  s_memrealtime s[62:63]\n  s_getreg_b32 s64, hwreg(HW_REG_XCC_ID)\n  s_waitcnt lgkmcnt(0)")
        A(f"  s_mul_i32 s65, s2, 5\n  s_add_u32 s65, s65, s3\n  s_add_u32 s65, s65, 1\n  s_lshl_b32 s65, s65, 4\n  s_add_u32 s65, s65, {STAMP0}")
        A("  v_mov_b32 v0, s92\n  v_mov_b32 v1, s62\n  v_mov_b32 v2, s64\n  v_mov_b32 v3, s55\n  v_mov_b32 v4, s65")
        A("  s_mov_b64 exec, 1\n  global_store_dwordx4 v4, v[0:3], s[22:23]")
        A(f"  s_cmp_lg_u32 s3, 0\n  s_cbranch_scc1 {lab('end')}\n  s_mov_b64 exec, -1")
        A(f"  v_mbcnt_lo_u32_b32 v4, -1, 0\n  v_mbcnt_hi_u32_b32 v4, -1, v4\n  v_lshlrev_b32 v4, 2, v4\n  s_lshl_b32 s65, s2, 9\n  s_add_u32 s65, s65, {STAMP0+0x200000}\n  v_add_u32 v4, s65, v4")
        A("  global_store_dword v4, v100, s[22:23]\n  global_store_dword v4, v101, s[22:23] offset:256")
        A("  v_add_u32 v4, 0x100000, v4\n  global_store_dword v4, v102, s[22:23]\n  global_store_dword v4, v103, s[22:23] offset:256")
        A(f"  s_mov_b64 exec, 1\n  s_lshl_b32 s65, s2, 5\n  s_add_u32 s65, s65, {STAMP0+0x400000}\n  v_mov_b32 v4, s65\n  s_mov_b32 s90, s62")
        for n in range(8): A(f"  v_mov_b32 v{8+n}, s{76+2*n}")
        A("  global_store_dwordx4 v4, v[8:11], s[22:23]\n  global_store_dwordx4 v4, v[12:15], s[22:23] offset:16")
    A(f"{lab('end')}:")
    A("  s_endpgm")
    nv = 104 if stamp else 100
    kd = f""".section .rodata,"a"
.p2align 6
.amdhsa_kernel {kname}
  .amdhsa_next_free_vgpr {nv}
  .amdhsa_next_free_sgpr {96 if stamp else 64}
  .amdhsa_accum_offset {nv}
  .amdhsa_group_segment_fixed_size 0
  .amdhsa_kernarg_size 80
  .amdhsa_user_sgpr_count 2
  .amdhsa_user_sgpr_kernarg_segment_ptr 1
  .amdhsa_system_sgpr_workgroup_id_x 1
  .amdhsa_float_denorm_mode_32 3
.end_amdhsa_kernel
"""
    body = "\n".join(L) + "\n" + kd
    if standalone:
        return HEADER + f"; @launch grid=(256,1,1) block=(320,1,1) lds={LDS_BYTES}\n" + '.amdgcn_target "amdgcn-amd-amdhsa--gfx950"\n.text\n' + body
    return body + ".text\n"

def bench_file(path, variants):
    out = '.amdgcn_target "amdgcn-amd-amdhsa--gfx950"\n.text\n'
    specs = []
    co = os.path.basename(path)[:-2] + ".co"
    for n, kw in variants.items():
        out += gen(kname=n, standalone=False, **kw)
        specs.append(f"{n}={co}@{n}:256:320:{LDS_BYTES}")
    out += meta({n: 320 for n in variants})
    open(path, "w").write(out)
    open(path[:-2] + ".specs", "w").write(" ".join(specs))

if __name__ == "__main__":
    ap = argparse.ArgumentParser()
    ap.add_argument("-o", default=f"cdna_kernels/{NAME}.s")
    ap.add_argument("-W", type=int, default=20)
    ap.add_argument("-F", type=int, default=6)
    ap.add_argument("--dW", type=int, default=2)
    ap.add_argument("--map", default="same")
    a = ap.parse_args()
    open(a.o, "w").write(gen(W=a.W, F=a.F, dW=a.dW, mapping=a.map))
```

```python
import struct, sys, argparse, os
from gen1 import NAME, HEADER, f32hex, meta

RING, LOG, KS, KZ, VS, VZ, STG = 0, 65536, 98304, 114688, 131072, 135168, 139264
STGS = 1280
AUX = STG
MX = STG + 8 * STGS
MISC = MX + 256
oLAST, oPART, oLASTK, oPARTK, oCIDX = 0, 16, 32, 48, 64
LDS_BYTES = 150016
WS_REC, WS_ML, WS_CNT, WS_AUX, AUXS = 0, 0x80000, 0x90000, 0xb0000, 640
WS_BYTES = 0x200000
STAMP0 = 0x800000
OOB = "0x7ffffff0"

DOC = """; ---------------------------------------------------------------------------------------------
; ---------------------------------------------------------------------------------------------
"""

def gen(W=20, WV=20, WXK=22, WX=22, F=4, FV=4, stamp=0, kname=None, standalone=True, spin=1 << 20, CHK=36, PUBV=1,
        nochk=False, nochkk=False, mapping="same", jitter=0, kh0=2, skip0=True, arrsp=0, clr="k", cstr=4096, gk=None, gv=None):
    kname = kname or NAME + "_kernel"
    NS = 64 - F
    NSV = 64 - FV
    assert F % 4 == 0 and FV % 2 == 0 and F <= FV <= F + 4 and WS_AUX + 16 * 16 * FV * AUXS <= WS_BYTES
    assert all(17 <= w <= 32 for w in (W, WV, WXK, WX)) and CHK + 4 <= NSV - 5 and PUBV + 3 < CHK
    L = []
    A = L.append
    tag = "L" + (kname[-12:].strip("_") if not standalone else "")
    lab = lambda s: f"{tag}_{s}"
    njit = [0]
    def jit(reg, other="s2"):
        if not jitter: return
        njit[0] += 1
        A(f"  s_mul_i32 s70, {reg}, {jitter}\n  s_add_u32 s70, s70, {other}\n  s_add_u32 s70, s70, s3\n  s_mul_i32 s70, s70, 0x9e3779b1\n  s_lshr_b32 s70, s70, 29")
        A(f"  s_cmp_lg_u32 s70, {njit[0] & 7}\n  s_cbranch_scc1 {lab(f'j{njit[0]}')}\n  s_sleep {20 + 9*(njit[0] % 5)}\n{lab(f'j{njit[0]}')}:")
    c2 = f32hex((128 ** -0.5) * 1.4426950408889634)

    A(f".globl {kname}\n.p2align 8\n.type {kname},@function\n{kname}:")
    A(f"  s_cmp_ge_u32 s2, 256\n  s_cbranch_scc1 {lab('end')}")
    if stamp: A("  s_memrealtime s[92:93]")
    A("  s_load_dwordx16 s[4:19], s[0:1], 0")
    A("  s_load_dwordx4 s[20:23], s[0:1], 64")
    A("  v_lshrrev_b32 v1, 6, v0")
    A("  v_and_b32 v0, 63, v0                    ; lane")
    A("  v_readfirstlane_b32 s3, v1")
    A("  s_lshr_b32 s50, s2, 4")
    if mapping == "same":
        A("  s_and_b32 s51, s2, 7")
        A("  s_bfe_u32 s52, s2, 0x10003              ; u")
        A("  s_lshl1_add_u32 s51, s51, s52")
    else:
        A("  s_and_b32 s51, s2, 15\n  s_and_b32 s52, s2, 1\n  s_nop 0")
    A(f"  s_cmp_lg_u32 s3, 0\n  s_cbranch_scc1 {lab('cons')}")

    A("  s_setprio 3")
    A("  v_lshrrev_b32 v5, 5, v0\n  v_xor_b32 v1, v0, v5")
    A("  v_lshlrev_b32 v1, 4, v1")
    A("  v_xor_b32 v2, 64, v1\n  v_xor_b32 v3, 0x80, v1\n  v_xor_b32 v4, 0xc0, v1")
    A("  s_lshr_b32 s53, s51, 1\n  s_lshl_b32 s53, s53, 21\n  s_lshl_b32 s52, s52, 15\n  s_add_u32 s53, s53, s52")
    A(f"  s_add_u32 s53, s53, {F//2*65536}")
    A("  s_lshl_b32 s28, s50, 24\n  s_mov_b32 s26, 0x1000000\n  s_mov_b32 s27, 0x20000")
    A("  s_mov_b32 s30, s53\n  s_mov_b32 s34, 0")
    A(f"  s_mov_b32 s31, {8 + ((W - 17) >> 2)}")
    A(f"  s_add_u32 s33, s53, {(NS-2)//2*65536}")
    A("  s_waitcnt lgkmcnt(0)")
    A("  s_add_u32 s24, s6, s28\n  s_addc_u32 s25, s7, 0")
    def ldloop(label, w):
        ib = w - 17
        A(f"{label}:")
        jit("s30")
        A("  s_mov_b32 m0, s34")
        for i in range(4):
            A(f"  s_waitcnt vmcnt({w-1})")
            if i == (ib & 3):
                A(f"  s_sub_u32 s31, s31, 1\n  s_cbranch_scc0 {label}_nb\n  s_barrier\n  s_mov_b32 s31, 3\n{label}_nb:")
            A(f"  buffer_load_dwordx4 v{1+i}, s[24:27], s30 offen offset:{i*1024} nt lds")
        A("  s_add_u32 s30, s30, 0x1000\n  s_add_u32 s34, s34, 0x1000\n  s_and_b32 s34, s34, 0xffff")
        A("  s_and_b32 s35, s30, 0x7000\n  s_cselect_b32 s35, 0, 0x8000\n  s_add_u32 s30, s30, s35")
        A(f"  s_cmp_lt_u32 s30, s33\n  s_cbranch_scc1 {label}")
    def pool(label, isk, w):
        ib = w - 17
        A(f"  v_mov_b32 v8, {MISC}\n  ds_read_b32 v9, v8 offset:{oPARTK if isk else oPART}")
        A(f"  s_mul_i32 s37, s50, {cstr}\n  s_add_u32 s37, s37, {WS_CNT + (2048 if isk else 0)}\n  v_mov_b32 v11, s37")
        gd = gk if isk else gv
        P = 16*(F if isk else FV)
        if gd: A(f"  s_mov_b32 s58, 2\n  s_mov_b32 s54, 1\n  s_mov_b32 s55, 1\n  s_mov_b32 s41, {gd[2]}")
        A("  v_mov_b32 v12, -1\n  v_mov_b32 v13, -1\n  s_add_u32 s36, s40, 2")
        A("  s_waitcnt lgkmcnt(0)\n  v_readfirstlane_b32 s48, v9")
        A(f"{label}:")
        for par in range(2):
            A(f"  s_cmp_lt_u32 s40, s36\n  s_cbranch_scc1 {label}_own{par}")
            if gd: A(f"  v_readfirstlane_b32 s42, v{12+par}\n  s_add_u32 s41, s41, 1\n  s_cmp_lg_u32 s{54+par}, 0\n  s_cselect_b32 s41, s42, s41")
            else: A(f"  v_readfirstlane_b32 s41, v{12+par}")
            A(f"  s_cmp_ge_u32 s41, {16*(F if isk else FV)}\n  s_cbranch_scc1 {label}_end")
            A("  s_bfe_u32 s42, s41, 0x30001\n  s_lshl_b32 s30, s42, 21\n  s_and_b32 s42, s41, 1\n  s_lshl_b32 s42, s42, 15\n  s_add_u32 s30, s30, s42")
            A("  s_lshr_b32 s42, s41, 5\n  s_lshl_b32 s42, s42, 16\n  s_add_u32 s30, s30, s42\n  s_bfe_u32 s42, s41, 0x10004\n  s_lshl_b32 s42, s42, 14\n  s_add_u32 s30, s30, s42")
            if isk:
                A("  s_lshr_b32 s42, s30, 14\n  s_lshl_b32 s43, s50, 10\n  s_add_u32 s42, s42, s43")
                A("  v_mad_u64_u32 v[18:19], s[56:57], v14, s42, v[16:17]")
                A(f"  s_and_b32 s43, s40, 7\n  s_mul_i32 s43, s43, {STGS}\n  s_add_u32 m0, s43, {STG + 512}\n  s_mov_b64 exec, s[38:39]")
                A(f"  s_waitcnt vmcnt({w-1})\n  global_load_lds_dwordx4 v[18:19], off nt")
            else:
                A(f"  s_mul_i32 s42, s41, {AUXS}\n  s_add_u32 s42, s42, s49")
                A(f"  s_lshr_b32 s43, s34, 4\n  s_add_u32 m0, s43, {AUX}\n  s_mov_b64 exec, s[38:39]")
                A(f"  s_waitcnt vmcnt({w-1})\n  buffer_load_dwordx4 v1, s[44:47], s42 offen sc1 lds")
            A(f"{label}_own{par}:")
            A(f"  s_cmp_eq_u32 s48, 0\n  s_cbranch_scc1 {label}_noc{par}\n  s_mov_b64 exec, 1")
            if isk:
                A(f"  s_and_b32 s43, s40, 7\n  s_lshl2_add_u32 s43, s43, {MISC + oCIDX}\n  v_mov_b32 v8, s43\n  v_mov_b32 v9, s41\n  ds_write_b32 v8, v9")
            if gd:
                A(f"  s_mov_b32 s{54+par}, 0\n  s_sub_u32 s58, s58, 1\n  s_cmp_ge_u32 s58, 2\n  s_cbranch_scc1 {label}_noc{par}")
                A(f"  s_cmp_lt_u32 s41, {gd[0]}\n  s_cselect_b32 s43, {gd[1]}, 1\n  s_mov_b32 s{54+par}, 1\n  s_add_u32 s58, s58, s43\n  v_mov_b32 v10, s43")
            elif gk: A("  v_mov_b32 v10, 1")
            A(f"  s_waitcnt vmcnt({w-1})\n  global_atomic_add v{12+par}, v11, v10, s[22:23] sc0 sc1")
            A(f"{label}_noc{par}:\n  s_mov_b64 exec, -1")
            jit("s40")
            for g in range(4):
                A("  s_mov_b32 m0, s34")
                for i in range(4):
                    if 4*g + i == ib: A(f"  s_waitcnt vmcnt({w-1}) lgkmcnt(0)\n  s_barrier")
                    else: A(f"  s_waitcnt vmcnt({w-1})")
                    A(f"  buffer_load_dwordx4 v{1+i}, s[24:27], s30 offen offset:{i*1024} nt lds")
                A("  s_add_u32 s30, s30, 0x1000\n  s_add_u32 s34, s34, 0x1000")
            A("  s_and_b32 s34, s34, 0xffff\n  s_add_u32 s40, s40, 1")
        A(f"  s_branch {label}\n{label}_end:")
        A(f"  s_sub_u32 s42, s40, 1\n  v_mov_b32 v8, {MISC}\n  v_mov_b32 v9, s42\n  ds_write_b32 v8, v9 offset:{oLASTK if isk else oLAST}")
    ldloop(lab("lk"), W)
    A(f"  s_mov_b32 s40, {NS-2}\n  s_mov_b32 s41, 0")
    A("  s_mov_b32 s38, -1\n  s_mov_b32 s39, 0xff\n  v_mov_b32 v10, 1")
    A(f"  s_mov_b32 s44, s22\n  s_mov_b32 s45, s23\n  s_mov_b32 s46, {WS_BYTES}\n  s_mov_b32 s47, 0x20000")
    A(f"  s_mul_i32 s49, s50, {16*FV*AUXS}\n  s_add_u32 s49, s49, {WS_AUX}")
    A("  v_mov_b32 v16, s14\n  v_mov_b32 v17, s15\n  v_mov_b32 v14, 64")
    for (lo, mlo, mhi, sub, stride) in ((16, "0xffffff0", None, 64, None), (10, "0xffffff00", "0xff", 128, 256), (12, "0xff000000", "0xff", 384, None)):
        A(f"  s_sub_u32 s42, s{lo}, {sub}\n  s_subb_u32 s43, s{lo+1}, 0\n  s_mov_b32 exec_lo, {mlo}\n  s_mov_b32 exec_hi, {mhi or 0}")
        A("  v_mov_b32 v16, s42\n  v_mov_b32 v17, s43")
        if stride: A(f"  v_mov_b32 v14, {stride}")
    A("  s_mov_b64 exec, -1\n  v_lshlrev_b32 v8, 4, v0\n  v_add_co_u32 v16, vcc, v16, v8\n  s_nop 1\n  v_addc_co_u32 v17, vcc, 0, v17, vcc")
    pool(lab("pk"), True, WXK)
    A(f"  s_add_u32 s24, s8, s28\n  s_addc_u32 s25, s9, 0\n  s_add_u32 s30, s53, {(FV-F)//2*65536}")
    for i in range(4): A(f"  v_lshlrev_b32 v{1+i}, 4, v0")
    A(f"  s_mov_b32 s31, {(WV-17) >> 2}\n  s_add_u32 s33, s53, {(NS-2)//2*65536}\n  s_add_u32 s40, s40, {NSV-2}\n  s_waitcnt lgkmcnt(0)")
    ldloop(lab("lv"), WV)
    pool(lab("pv"), False, WX)
    A("  s_waitcnt vmcnt(16) lgkmcnt(0)\n  s_barrier\n  s_waitcnt vmcnt(0)\n  s_barrier")
    if stamp:
        A("  s_memrealtime s[62:63]\n  s_getreg_b32 s64, hwreg(HW_REG_XCC_ID)\n  s_waitcnt lgkmcnt(0)")
        A(f"  s_mul_i32 s65, s2, 5\n  s_lshl_b32 s65, s65, 4\n  s_add_u32 s65, s65, {STAMP0}")
        A("  v_mov_b32 v0, s92\n  v_mov_b32 v1, s62\n  v_mov_b32 v2, s64\n  v_mov_b32 v3, s42\n  v_mov_b32 v4, s65")
        A("  s_mov_b64 exec, 1\n  global_store_dwordx4 v4, v[0:3], s[22:23]")
    A("  s_endpgm")

    vI, vQ, vL16 = 1, 2, 3
    aK = [4, 5, 6, 7]
    aS, aZ, aL, vM = 8, 9, 10, 11
    aV, aP, aVS, vLs = 12, 13, 14, 15
    QF, KR, KSr, KZr, OA, OB, ACC = 16, 32, 48, 56, 64, 72, 80
    T0, T1, T2, T3 = 92, 93, 94, 95
    vLAST, vArr, vChk, aMisc = 96, 97, 98, 99
    vL8, vML = 104, 105
    aKx = [106, 107, 108, 109]
    bS, bZ, bL = 110, 111, 112
    A(f"  ; ======== consumer waves\n{lab('cons')}:")
    A("  s_sub_u32 s3, s3, 1")
    A(f"  v_and_b32 v{vI}, 15, v0\n  v_lshrrev_b32 v{vQ}, 4, v0\n  v_lshlrev_b32 v{vL16}, 4, v0")
    A(f"  v_and_b32 v{T0}, 3, v{vI}")
    A(f"  v_bfe_u32 v{T1}, v{vI}, 2, 1")
    A(f"  v_lshlrev_b32 v{T2}, 4, v{vQ}\n  v_lshl_add_u32 v{bS}, v{T1}, 7, v{T2}\n  v_lshl_add_u32 v{T3}, v{T0}, 8, v{bS}")
    A(f"  v_add_u32 v{aS}, {KS + F*256}, v{bS}")
    A(f"  v_lshrrev_b32 v{T1}, 5, v0\n  v_and_b32 v{aV}, 31, v0\n  v_lshlrev_b32 v{aV}, 4, v{aV}\n  v_lshl_add_u32 v{aV}, v{T1}, 10, v{aV}")
    A(f"  v_lshrrev_b32 v{T1}, 3, v0\n  v_and_b32 v{aP}, 7, v0\n  v_lshlrev_b32 v{aP}, 4, v{aP}\n  v_lshl_add_u32 v{aP}, v{T1}, 8, v{aP}")
    A("  s_lshr_b32 s53, s51, 1\n  s_lshl_b32 s53, s53, 7\n  s_lshl1_add_u32 s53, s52, s53\n  s_lshl_b32 s52, s50, 10\n  s_add_u32 s53, s53, s52")
    A("  s_lshl_b32 s54, s53, 6\n  s_lshl_b32 s53, s53, 8\n  s_lshl_b32 s55, s3, 10\n  s_lshl_b32 s57, s3, 11")
    A("  s_mov_b32 s26, 0x4000\n  s_mov_b32 s27, 0x20000\n  s_mov_b32 s30, 32256\n  s_mov_b32 s31, 0x20000\n  s_mov_b32 s34, 32256\n  s_mov_b32 s35, 0x20000")
    A("  s_mov_b32 s38, 8064\n  s_mov_b32 s39, 0x20000\n  s_mov_b32 s42, 8064\n  s_mov_b32 s43, 0x20000")
    A(f"  s_cmp_lt_u32 s3, {F//4 if skip0 else 0}\n  s_cselect_b32 s56, {OOB}, s57")
    A("  s_waitcnt lgkmcnt(0)\n  s_mov_b32 s24, s4\n  s_mov_b32 s25, s5")
    A(f"  buffer_load_dwordx4 v[{KR}:{KR+3}], v{T3}, s[24:27], s52 offen")
    A(f"  buffer_load_dwordx4 v[{KR+4}:{KR+7}], v{T3}, s[24:27], s52 offen offset:64")
    A("  s_add_u32 s28, s10, s53\n  s_addc_u32 s29, s11, 0\n  s_add_u32 s32, s12, s53\n  s_addc_u32 s33, s13, 0")
    A("  s_add_u32 s36, s14, s54\n  s_addc_u32 s37, s15, 0\n  s_add_u32 s40, s16, s54\n  s_addc_u32 s41, s17, 0")
    for k in range(4):
        if k: A(f"  s_add_u32 s56, s57, {k*8192}")
        A(f"  s_add_u32 m0, s55, {KS + k*4096}\n  s_nop 0\n  buffer_load_dwordx4 v{aV}, s[28:31], s56 offen nt lds")
        A(f"  s_add_u32 m0, s55, {KZ + k*4096}\n  s_nop 0\n  buffer_load_dwordx4 v{aV}, s[32:35], s56 offen nt lds")
    A(f"  s_add_u32 m0, s55, {VS}\n  s_nop 0\n  buffer_load_dwordx4 v{aP}, s[36:39], s57 offen nt lds")
    A(f"  s_add_u32 m0, s55, {VZ}\n  s_nop 0\n  buffer_load_dwordx4 v{aP}, s[40:43], s57 offen nt lds")
    A(f"  s_mov_b32 s44, s22\n  s_mov_b32 s45, s23\n  s_mov_b32 s46, {WS_BYTES}\n  s_mov_b32 s47, 0x20000")
    A(f"  s_mul_i32 s53, s50, {cstr}\n  s_add_u32 s53, s53, {WS_CNT}\n  s_add_u32 s54, s51, s3\n  s_cmp_eq_u32 s54, 0\n  s_cselect_b32 s53, s53, {OOB}")
    A(f"  v_mov_b32 v{T1}, 0\n  s_mov_b64 exec, 1")
    A(f"  buffer_store_dword v{T1}, v{vL16}, s[44:47], s53 offen sc1\n  buffer_store_dword v{T1}, v{vL16}, s[44:47], s53 offen offset:2048 sc1\n  s_mov_b64 exec, -1")
    nvm = 14
    A("  s_lshl2_add_u32 s56, s50, s3\n  s_lshl_b32 s56, s56, 13")
    A("  s_lshl_b32 s57, s51, 9\n  s_add_u32 s57, s57, s56")
    A(f"  s_lshl_b32 s63, s50, 9\n  s_add_u32 s63, s63, {WS_ML}")
    A(f"  v_lshlrev_b32 v{vL8}, 3, v0\n  v_lshlrev_b32 v{vML}, 3, v{vQ}")
    A(f"  v_and_b32 v{T1}, 7, v{vI}\n  v_lshrrev_b32 v{T2}, 3, v{vI}")
    A(f"  v_lshlrev_b32 v{bZ}, 4, v{vQ}\n  v_lshl_add_u32 v{bZ}, v{T2}, 7, v{bZ}\n  v_add_u32 v{aZ}, {KZ + F*256}, v{bZ}")
    A(f"  v_lshlrev_b32 v{T2}, 4, v{T2}\n  v_lshl_add_u32 v{T2}, v{vQ}, 1, v{T2}")
    A(f"  v_and_b32 v{T3}, 6, v{T1}\n  v_lshlrev_b32 v{T3}, 1, v{T3}\n  v_and_or_b32 v{T3}, v{T1}, 1, v{T3}")
    A(f"  v_xor_b32 v{T2}, v{T2}, v{T3}\n  v_lshlrev_b32 v{T2}, 4, v{T2}\n  v_lshl_add_u32 v{T2}, v{T1}, 9, v{T2}")
    A(f"  s_lshl_b32 s58, s3, 12\n  v_add_u32 v{aK[0]}, s58, v{T2}")
    A(f"  v_xor_b32 v{aK[1]}, 16, v{aK[0]}\n  v_xor_b32 v{aK[2]}, 0x80, v{aK[0]}\n  v_xor_b32 v{aK[3]}, 0x90, v{aK[0]}")
    A(f"  v_and_b32 v{T1}, 1, v{vQ}\n  v_lshrrev_b32 v{T2}, 1, v{vQ}\n  v_lshl_add_u32 v{T1}, v{T1}, 2, v{T2}\n  v_lshlrev_b32 v{T1}, 2, v{T1}")
    A(f"  v_lshl_add_u32 v{T1}, v{T0}, 7, v{T1}\n  s_lshl_b32 s58, s3, 5\n  v_add_u32 v{bL}, s58, v{T1}\n  v_add_u32 v{aL}, {LOG + F*512}, v{bL}")
    A(f"  v_lshlrev_b32 v{T1}, 3, v{vI}\n  v_lshl_add_u32 v{T1}, v{vQ}, 12, v{T1}\n  s_lshl_b32 s58, s3, 7\n  v_add_u32 v{aV}, s58, v{T1}")
    A(f"  v_lshrrev_b32 v{T1}, 2, v{vI}\n  v_lshlrev_b32 v{T2}, 5, v{vQ}\n  v_lshl_add_u32 v{T2}, v{T1}, 7, v{T2}\n  v_add_u32 v{aP}, {LOG + FV*512}, v{T2}")
    A(f"  v_lshlrev_b32 v{aVS}, 4, v{vQ}\n  v_add_u32 v{aVS}, {VS + FV*64}, v{aVS}")
    A(f"  v_mov_b32 v{vM}, 0xff800000\n  v_mov_b32 v{vLs}, 0")
    A(f"  v_mov_b32 v{aMisc}, {MISC}\n  v_mov_b32 v{T0}, -1\n  ds_write_b32 v{aMisc}, v{T0} offset:{oLAST}\n  ds_write_b32 v{aMisc}, v{T0} offset:{oLASTK}")
    A("  s_mov_b32 s48, 0x000f000f\n  s_mov_b32 s49, 0x000f000f\n  s_mov_b32 s58, 0xffff0000\n  s_mov_b32 s38, -1\n  s_mov_b32 s39, 0xff")
    A(f"  s_waitcnt vmcnt({nvm-2})")
    for n in range(8):
        A(f"  v_lshlrev_b32 v{QF+2*n}, 16, v{KR+n}\n  v_and_b32 v{QF+2*n+1}, s58, v{KR+n}")
    for n in range(16):
        A(f"  v_mul_f32 v{QF+n}, {c2}, v{QF+n}        ; q * 128^-0.5 * log2(e)" if n == 0 else f"  v_mul_f32 v{QF+n}, {c2}, v{QF+n}")
    A(f"  s_mov_b32 s59, 0\n  s_cmp_eq_u32 s51, 0\n  s_cselect_b32 s55, {kh0}, 8\n  s_cmp_eq_u32 s3, 0\n  s_cselect_b32 s55, s55, 99")
    A(f"  s_waitcnt vmcnt({nvm-4})")
    def tl(vr, expr):
        A(f"  s_waitcnt lgkmcnt(0)\n  s_memrealtime s[66:67]\n{expr}\n  s_waitcnt lgkmcnt(0)\n  v_writelane_b32 v{vr}, s66, m0")
    def kstep(ak, ok, oz, ol, pooled):
        e = 1 if pooled else 0
        jit("s59")
        A(f"  ds_read_b128 v[{KSr}:{KSr+3}], v{aS} offset:{oz}\n  ds_read_b128 v[{KSr+4}:{KSr+7}], v{aS} offset:{oz+64}")
        for n in range(4): A(f"  ds_read_b128 v[{KR+4*n}:{KR+4*n+3}], v{ak[n]} offset:{ok}")
        A(f"  ds_read_b128 v[{KZr}:{KZr+3}], v{aZ} offset:{oz}\n  ds_read_b128 v[{KZr+4}:{KZr+7}], v{aZ} offset:{oz+64}")
        if pooled: A(f"  ds_read_b32 v{vLAST}, v{aMisc} offset:{oLASTK}")
        for m in range(2):
            A(f"  s_waitcnt lgkmcnt({7-m+e})")
            for n in range(4):
                r = KSr + 4*m + n
                A(f"  v_lshlrev_b32 v{T0}, 16, v{r}\n  v_and_b32 v{T1}, s58, v{r}")
                A(f"  v_mul_f32 v{T0}, v{T0}, v{QF+8*m+2*n}\n  v_mul_f32 v{T1}, v{T1}, v{QF+8*m+2*n+1}")
                A(f"  v_cvt_pk_bf16_f32 v{OB+4*m+n}, v{T0}, v{T1}")
        for m in range(2):
            A(f"  s_waitcnt lgkmcnt({4-2*m+e})")
            for n in range(8): A(f"  v_cvt_f32_i32 v{KR+8*m+n}, v{KR+8*m+n}")
            for n in range(4): A(f"  v_cvt_pk_bf16_f32 v{OA+4*m+n}, v{KR+8*m+2*n}, v{KR+8*m+2*n+1}")
        A("  s_waitcnt lgkmcnt(0)")
        for n in range(4): A(f"  v_xor_b32 v{KZr+n}, 0x80008000, v{KZr+n}")
        A(f"  v_mfma_f32_16x16x32_bf16 v[{ACC}:{ACC+3}], v[{OA}:{OA+3}], v[{OB}:{OB+3}], 0")
        for n in range(4, 8): A(f"  v_xor_b32 v{KZr+n}, 0x80008000, v{KZr+n}")
        A(f"  v_mfma_f32_16x16x32_bf16 v[{ACC}:{ACC+3}], v[{OA+4}:{OA+7}], v[{OB+4}:{OB+7}], v[{ACC}:{ACC+3}]")
        A(f"  v_mfma_f32_16x16x32_bf16 v[{ACC}:{ACC+3}], v[{KZr}:{KZr+3}], v[{OB}:{OB+3}], v[{ACC}:{ACC+3}]")
        A(f"  v_mfma_f32_16x16x32_bf16 v[{ACC}:{ACC+3}], v[{KZr+4}:{KZr+7}], v[{OB+4}:{OB+7}], v[{ACC}:{ACC+3}]")
        if pooled: A(f"  v_readfirstlane_b32 s61, v{vLAST}\n  s_nop 6")
        else: A("  s_nop 7")
        A(f"  v_permlane32_swap_b32 v{ACC}, v{ACC+1}\n  v_permlane32_swap_b32 v{ACC+2}, v{ACC+3}\n  s_nop 1")
        A(f"  v_add_f32_dpp v{T0}, v{ACC+1}, v{ACC} row_shl:4 row_mask:0xf bank_mask:0xf bound_ctrl:1")
        A(f"  v_add_f32_dpp v{T1}, v{ACC+3}, v{ACC+2} row_shl:4 row_mask:0xf bank_mask:0xf bound_ctrl:1")
        A(f"  s_mov_b64 exec, s[48:49]\n  ds_write_b32 v{aL}, v{T0} offset:{ol}\n  ds_write_b32 v{aL}, v{T1} offset:{ol+8}")
        if not pooled: A(f"  v_max3_f32 v{vM}, v{vM}, v{T0}, v{T1}")
        A("  s_mov_b64 exec, -1")
        jit("s59")
    def publish(r, skip):
        A(f"  s_and_b32 s54, s53, 3\n  s_cmp_lg_u32 s54, s3\n  s_cbranch_scc1 {skip}\n  s_cmp_lt_u32 s53, {NS}\n  s_cbranch_scc1 {skip}")
        A(f"  s_and_b32 s53, s53, 7\n  s_lshl2_add_u32 s54, s53, {MISC + oCIDX}\n  s_mul_i32 s53, s53, {STGS}\n  s_add_u32 s53, s53, {STG}")
        A(f"  v_mov_b32 v{T3}, s54\n  v_add_u32 v{T2}, s53, v{vL16}\n  s_mov_b32 exec_hi, 0xff")
        A(f"  ds_read_b32 v{T3}, v{T3}\n  ds_read_b128 v[{r}:{r+3}], v{T2}\n  s_mul_i32 s54, s50, {16*FV}\n  s_waitcnt lgkmcnt(0)")
        A(f"  v_readfirstlane_b32 s53, v{T3}\n  s_add_u32 s53, s53, s54\n  s_mul_i32 s53, s53, {AUXS}\n  s_add_u32 s53, s53, {WS_AUX}")
        A(f"  buffer_store_dwordx4 v[{r}:{r+3}], v{vL16}, s[44:47], s53 offen sc1\n  s_mov_b64 exec, -1")
    dbgaddr = lambda: A(f"  s_and_b32 s53, s50, 3\n  s_lshl_b32 s53, s53, 6\n  s_and_b32 s54, s50, 12\n  s_add_u32 s53, s53, s54\n  v_mov_b32 v{T2}, s53")
    def mlstore(r):
        A(f"  s_lshl_b32 s53, s51, 5\n  s_add_u32 s53, s53, s63\n  s_cmp_eq_u32 s3, 0\n  s_cselect_b32 s53, s53, {OOB}")
        A("  s_mov_b32 exec_lo, 0x00010001\n  s_mov_b32 exec_hi, 0x00010001")
        A(f"  buffer_store_dwordx2 v[{r}:{r+1}], v{vML}, s[44:47], s53 offen sc1\n  s_mov_b64 exec, -1")
    def clear(r):
        A(f"  v_mov_b32 v{r}, -1\n  v_mov_b32 v{r+1}, -1")
        A(f"  buffer_store_dwordx2 v[{r}:{r+1}], v{vL8}, s[44:47], s57 offen sc1")
        mlstore(r)
    A(f"  ; ---- phase K\n{lab('k')}:")
    for k in range(4):
        if k == 3: A("  s_waitcnt vmcnt(0)")
        A("  s_barrier")
        if stamp: tl(100, f"  s_lshl2_add_u32 m0, s59, {k}")
        kstep(aK, k*16384, k*256, k*512, False)
    A(f"  v_add_u32 v{aS}, 0x400, v{aS}\n  v_add_u32 v{aZ}, 0x400, v{aZ}\n  v_add_u32 v{aL}, 0x800, v{aL}")
    A(f"  s_cmp_eq_u32 s59, s55\n  s_cbranch_scc1 {lab('khook')}\n{lab('kn')}:")
    A(f"  s_add_u32 s59, s59, 1\n  s_cmp_lt_u32 s59, {NS//4}\n  s_cbranch_scc1 {lab('k')}")
    if clr == "k": clear(OB)
    A(f"  ds_read_b32 v{vLAST}, v{aMisc} offset:{oLASTK}\n  s_mov_b32 s59, {NS}\n  s_waitcnt lgkmcnt(0)\n  v_readfirstlane_b32 s61, v{vLAST}")
    A(f"{lab('kx')}:\n  s_cmp_lt_u32 s61, s59\n  s_cbranch_scc1 {lab('kdone')}")
    A("  s_and_b32 s53, s59, 3\n  s_lshl_b32 s53, s53, 14")
    for n in range(4): A(f"  v_add_u32 v{aKx[n]}, s53, v{aK[n]}")
    A(f"  s_and_b32 s53, s59, 7\n  s_mul_i32 s53, s53, {STGS}\n  s_add_u32 s53, s53, {STG}")
    A(f"  v_add_u32 v{aL}, s53, v{bL}\n  s_add_u32 s54, s53, 640\n  v_add_u32 v{aS}, s54, v{bS}\n  s_add_u32 s54, s53, 896\n  v_add_u32 v{aZ}, s54, v{bZ}")
    A("  s_barrier\n  s_sub_u32 s53, s59, 2")
    publish(OA, lab("kxp"))
    A(f"{lab('kxp')}:")
    kstep(aKx, 0, 0, 0, True)
    A(f"  s_add_u32 s59, s59, 1\n  s_branch {lab('kx')}")
    A(f"{lab('khook')}:")
    dbgaddr()
    A(f"  v_mov_b32 v{T3}, 1\n  s_mov_b64 exec, 1\n  s_cmp_lg_u32 s59, {kh0}\n  s_cbranch_scc1 {lab('kh1')}")
    A(f"  s_mov_b32 s55, 8")
    A(f"  global_store_dword v{T2}, v{T3}, s[20:21] offset:16 sc1\n  s_branch {lab('khx')}")
    A(f"{lab('kh1')}:\n  s_cmp_lg_u32 s59, 8\n  s_cbranch_scc1 {lab('kh2')}")
    A(f"  global_load_dword v{vChk}, v{T2}, s[20:21] offset:16 sc1\n  s_mov_b32 s55, 9\n  s_branch {lab('khx')}")
    A(f"{lab('kh2')}:")
    if nochkk: A(f"  v_mov_b32 v{vChk}, 0")
    A(f"  s_cmp_eq_u32 s51, 0\n  s_cselect_b32 s53, 1, 0\n  v_or_b32 v{T3}, s53, v{vChk}\n  ds_write_b32 v{aMisc}, v{T3} offset:{oPARTK}")
    A(f"{lab('khx')}:\n  s_mov_b64 exec, -1\n  s_branch {lab('kn')}")
    ACC0, ACC1, ACCZ = 80, 84, 88
    A(f"{lab('kdone')}:")
    if clr == "kd": clear(OB)
    A(f"  v_and_b32 v{T0}, 3, v{vI}\n  v_lshlrev_b32 v{T1}, 2, v{vQ}\n  v_lshl_add_u32 v{T0}, v{T0}, 6, v{T1}")
    A(f"  s_lshl_b32 s53, s3, 4\n  s_add_u32 s53, s53, {MX}\n  v_add_u32 v{T0}, s53, v{T0}")
    A(f"  s_mov_b64 exec, s[48:49]\n  ds_write_b32 v{T0}, v{vM}\n  s_mov_b64 exec, -1")
    A(f"  v_lshrrev_b32 v{T1}, 2, v{vI}\n  v_lshlrev_b32 v{T1}, 6, v{T1}\n  v_add_u32 v{T1}, {MX}, v{T1}")
    for n in range(12): A(f"  v_mov_b32 v{ACC0+n}, 0")
    A(f"  s_mov_b32 s60, s59\n  s_add_u32 s61, s59, {NSV}\n  s_add_u32 s55, s59, {PUBV}\n  s_mov_b32 s62, 0")
    A(f"  s_and_b32 s53, s59, 3\n  s_lshl_b32 s53, s53, 14\n  v_add_u32 v{aV}, s53, v{aV}")
    A("  s_waitcnt lgkmcnt(0)\n  s_barrier")
    if stamp: tl(101, "  s_mov_b32 m0, 0")
    for n in range(4): A(f"  ds_read_b128 v[{KR+4*n}:{KR+4*n+3}], v{T1} offset:{16*n}")
    A("  s_waitcnt lgkmcnt(0)")
    A(f"  v_max3_f32 v{vM}, v{KR}, v{KR+1}, v{KR+2}")
    for n in range(3, 15, 2): A(f"  v_max3_f32 v{vM}, v{vM}, v{KR+n}, v{KR+n+1}")
    A(f"  v_max_f32 v{vM}, v{vM}, v{KR+15}\n  s_branch {lab('v0')}")
    A(f"{lab('hook')}:")
    A(f"  s_add_u32 s62, s62, 1\n  s_cmp_lg_u32 s62, 1\n  s_cbranch_scc1 {lab('h1')}")
    A("  s_sub_u32 s53, s60, 1\n  s_sub_u32 s54, s53, s3\n  s_and_b32 s54, s54, 3\n  s_sub_u32 s53, s53, s54")
    A(f"  s_cmp_ge_u32 s54, 2\n  s_cbranch_scc1 {lab('hp')}")
    publish(KZr, lab("hp"))
    A(f"{lab('hp')}:")
    if FV > F:
        A(f"  s_cmp_ge_u32 s3, {FV-F}\n  s_cbranch_scc1 {lab('hq')}")
        A(f"  s_lshl_b32 s54, s3, 9\n  s_add_u32 s54, s54, {LOG + F*512}\n  v_add_u32 v{T2}, s54, v{vL16}\n  s_lshl_b32 s53, s3, 6")
        A(f"  s_add_u32 s54, s53, {VS + F*64 - 512}\n  s_mov_b32 exec_lo, 0\n  s_mov_b32 exec_hi, 0xf\n  v_add_u32 v{T2}, s54, v{vL16}")
        A(f"  s_add_u32 s54, s53, {VZ + F*64 - 576}\n  s_mov_b32 exec_hi, 0xf0\n  v_add_u32 v{T2}, s54, v{vL16}\n  s_mov_b64 exec, s[38:39]")
        A(f"  ds_read_b128 v[{KR}:{KR+3}], v{T2}")
        A(f"  s_mul_i32 s53, s50, {16*FV}\n  s_add_u32 s54, s3, {F}\n  s_lshl4_add_u32 s53, s54, s53\n  s_add_u32 s53, s53, s51\n  s_mul_i32 s53, s53, {AUXS}\n  s_add_u32 s53, s53, {WS_AUX}")
        A(f"  s_waitcnt lgkmcnt(0)\n  buffer_store_dwordx4 v[{KR}:{KR+3}], v{vL16}, s[44:47], s53 offen sc1\n  s_mov_b64 exec, -1\n{lab('hq')}:")
    if clr == "v": clear(KZr + 4)
    A(f"  s_add_u32 s55, s55, 2\n  s_branch {lab('v1')}")
    A(f"{lab('h1')}:\n  s_cmp_lg_u32 s62, 2\n  s_cbranch_scc1 {lab('h2')}")
    A("  s_waitcnt vmcnt(0)")
    if arrsp: A(f"  s_mul_i32 s53, s51, {arrsp}\n  s_add_u32 s55, s55, s53")
    assert PUBV + 3 + 15*arrsp + 6 < CHK
    A(f"  s_add_u32 s55, s55, 1\n  s_cmp_eq_u32 s3, 0\n  s_cselect_b32 s55, s55, 0\n  s_branch {lab('v1')}")
    A(f"{lab('h2')}:")
    dbgaddr()
    A(f"  v_mov_b32 v{T1}, 1\n  s_mov_b64 exec, 1\n  s_cmp_lg_u32 s62, 3\n  s_cbranch_scc1 {lab('h3')}")
    A(f"  global_atomic_add v{vArr}, v{T2}, v{T1}, s[20:21] sc0 sc1\n  s_add_u32 s55, s60, {CHK}\n  s_branch {lab('hx')}")
    A(f"{lab('h3')}:\n  s_waitcnt vmcnt(0)\n  s_cmp_lg_u32 s62, 4\n  s_cbranch_scc1 {lab('h4')}")
    A(f"  global_load_dword v{vChk}, v{T2}, s[20:21] sc1\n  s_add_u32 s55, s55, 3\n  s_branch {lab('hx')}")
    A(f"{lab('h4')}:")
    if nochk: A(f"  v_mov_b32 v{vChk}, 0")
    A(f"  v_add_u32 v{vArr}, 1, v{vArr}\n  v_max_u32 v{T0}, v{vArr}, v{vChk}\n  v_lshrrev_b32 v{T0}, 4, v{T0}")
    A(f"  ds_write_b32 v{aMisc}, v{T0} offset:{oPART}")
    A(f"{lab('hx')}:\n  s_mov_b64 exec, -1\n  s_branch {lab('v1')}")
    SL, VSr, VZr, VR, PA, B0, B1, U = 16, 24, 28, 32, 64, 72, 76, 48
    def preads(flex):
        A(f"  ds_read_b128 v[{SL}:{SL+3}], v{aP}\n  ds_read_b128 v[{SL+4}:{SL+7}], v{aP} offset:16")
        A(f"  ds_read_b128 v[{VSr}:{VSr+3}], v{aVS} offset:{512 if flex else 0}\n  ds_read_b128 v[{VZr}:{VZr+3}], v{aVS} offset:{576 if flex else 4096}")
    def pprep(flex):
        jit("s59")
        A("  s_waitcnt lgkmcnt(2)")
        if flex:
            A(f"  v_max3_f32 v{T0}, v{SL}, v{SL+1}, v{SL+2}\n  v_max3_f32 v{T0}, v{T0}, v{SL+3}, v{SL+4}")
            A(f"  v_max3_f32 v{T0}, v{T0}, v{SL+5}, v{SL+6}\n  v_max3_f32 v{T0}, v{T0}, v{SL+7}, v{vM}")
            A(f"  v_mov_b32 v{T1}, v{T0}\n  s_nop 1\n  v_permlane32_swap_b32 v{T0}, v{T1}\n  s_nop 0\n  v_max_f32 v{T0}, v{T0}, v{T1}")
            A(f"  v_mov_b32 v{T1}, v{T0}\n  s_nop 1\n  v_permlane16_swap_b32 v{T0}, v{T1}\n  s_nop 0\n  v_max_f32 v{T0}, v{T0}, v{T1}")
            A(f"  v_sub_f32 v{T1}, v{vM}, v{T0}\n  v_exp_f32 v{T1}, v{T1}\n  v_mov_b32 v{vM}, v{T0}")
        for n in range(8): A(f"  v_sub_f32 v{SL+n}, v{SL+n}, v{vM}")
        if flex:
            A(f"  v_mul_f32 v{vLs}, v{vLs}, v{T1}")
            for qq in range(4): A(f"  v_mov_b32_dpp v{T2}, v{T1} row_newbcast:{4*qq} row_mask:{1<<qq:#x} bank_mask:0xf")
        for n in range(8): A(f"  v_exp_f32 v{SL+n}, v{SL+n}")
        if flex:
            for r in (ACC0, ACC1, ACCZ): A(f"  v_mul_f32 v{r}, v{r}, v{T2}")
        A("  s_waitcnt lgkmcnt(1)")
        for n in range(4): A(f"  v_lshlrev_b32 v{U+2*n}, 16, v{VSr+n}\n  v_and_b32 v{U+2*n+1}, s58, v{VSr+n}")
        for n in range(8): A(f"  v_mul_f32 v{U+n}, v{U+n}, v{SL+n}")
        for n in range(4): A(f"  v_cvt_pk_bf16_f32 v{PA+n}, v{U+2*n}, v{U+2*n+1}")
        for n in range(8): A(f"  v_add_f32 v{vLs}, v{vLs}, v{SL+n}")
        A("  s_waitcnt lgkmcnt(0)")
        A(f"  v_mfma_f32_16x16x32_bf16 v[{ACCZ}:{ACCZ+3}], v[{PA}:{PA+3}], v[{VZr}:{VZr+3}], v[{ACCZ}:{ACCZ+3}]")
    def vpart(pre):
        jit("s59")
        for n in range(8): A(f"  ds_read_b64 v[{VR+2*n}:{VR+2*n+1}], v{aV} offset:{n*512}")
        A(f"  ds_read_b32 v{vLAST}, v{aMisc} offset:{oLAST}")
        if pre: preads(True)
        A(f"  v_add_u32 v{aV}, 0x4000, v{aV}\n  v_and_b32 v{aV}, 0xffff, v{aV}")
        for part in range(4):
            A(f"  s_waitcnt lgkmcnt({(7-2*part if part < 3 else 0) + (4 if pre else 0)})")
            b = VR + 4*part
            for n in range(4): A(f"  v_cvt_f32_i32 v{b+n}, v{b+n}")
            A(f"  v_cvt_pk_bf16_f32 v{B0+part}, v{b}, v{b+2}\n  v_cvt_pk_bf16_f32 v{B1+part}, v{b+1}, v{b+3}")
        A(f"  v_readfirstlane_b32 s53, v{vLAST}")
        A(f"  v_mfma_f32_16x16x32_bf16 v[{ACC0}:{ACC0+3}], v[{PA}:{PA+3}], v[{B0}:{B0+3}], v[{ACC0}:{ACC0+3}]")
        A(f"  v_mfma_f32_16x16x32_bf16 v[{ACC1}:{ACC1+3}], v[{PA}:{PA+3}], v[{B1}:{B1+3}], v[{ACC1}:{ACC1+3}]")
    A(f"  ; ---- phase V\n{lab('v0')}:")
    preads(False)
    A(f"  v_add_u32 v{aP}, 0x200, v{aP}\n  v_add_u32 v{aVS}, 64, v{aVS}")
    pprep(False)
    A(f"  s_cmp_eq_u32 s59, s60\n  s_cbranch_scc1 {lab('v1')}\n  s_barrier")
    if stamp: tl(101, "  s_sub_u32 m0, s59, s60")
    A(f"  s_cmp_eq_u32 s59, s55\n  s_cbranch_scc1 {lab('hook')}\n{lab('v1')}:")
    vpart(False)
    A(f"  s_add_u32 s59, s59, 1\n  s_cmp_lt_u32 s59, s61\n  s_cbranch_scc1 {lab('v0')}")
    A(f"  s_cmp_lt_u32 s53, s59\n  s_cbranch_scc1 {lab('vend')}")
    A(f"  v_subrev_u32 v{aS}, {LOG + 64*512 - AUX}, v{aP}\n  v_subrev_u32 v{aZ}, {VS + 64*64 - AUX}, v{aVS}")
    A(f"  s_and_b32 s54, s59, 3\n  s_lshl_b32 s54, s54, 10\n  v_add_u32 v{aP}, s54, v{aS}\n  v_add_u32 v{aVS}, s54, v{aZ}")
    preads(True)
    A(f"{lab('vy')}:")
    pprep(True)
    A(f"  s_add_u32 s59, s59, 1\n  s_and_b32 s54, s59, 3\n  s_lshl_b32 s54, s54, 10\n  v_add_u32 v{aP}, s54, v{aS}\n  v_add_u32 v{aVS}, s54, v{aZ}\n  s_barrier")
    vpart(True)
    A(f"  s_cmp_ge_u32 s53, s59\n  s_cbranch_scc1 {lab('vy')}\n  s_waitcnt lgkmcnt(0)")
    A(f"{lab('vend')}:")
    ts = lambda n: A(f"  s_memrealtime s[{76+2*n}:{77+2*n}]") if stamp else None
    if stamp:
        for n in range(76, 92): A(f"  s_mov_b32 s{n}, 0")
    ts(0)
    R = 16
    jit("s59")
    A(f"  ; ---- partial result of this workgroup\n  v_mov_b32 v{T0}, v{vLs}\n  ds_read_b32 v{T3}, v{aMisc} offset:{oPART}\n  s_lshl_b32 s54, s3, 2")
    A(f"  v_permlane32_swap_b32 v{T0}, v{vLs}\n  s_nop 0\n  v_add_f32 v{vLs}, v{T0}, v{vLs}")
    A(f"  v_mov_b32 v{T0}, v{vLs}\n  s_nop 1\n  v_permlane16_swap_b32 v{T0}, v{vLs}")
    A(f"  v_sub_f32 v{R}, v{ACC0}, v{ACCZ}\n  v_sub_f32 v{R+1}, v{ACC1}, v{ACCZ}\n  v_add_f32 v{vLs}, v{T0}, v{vLs}")
    A(f"  v_min_u32 v{R}, -2, v{R}\n  v_min_u32 v{R+1}, -2, v{R+1}")
    A(f"  buffer_store_dwordx2 v[{R}:{R+1}], v{vL8}, s[44:47], s57 offen sc1")
    A(f"  v_min_u32 v{vLs}, -2, v{vLs}\n  v_min_u32 v{vM}, -2, v{vM}\n  s_nop 1")
    for qq in range(4): A(f"  v_mov_b32_dpp v{R+2}, v{vM} row_newbcast:{4*qq} row_mask:{1<<qq:#x} bank_mask:0xf")
    for qq in range(4): A(f"  v_mov_b32_dpp v{R+3}, v{vLs} row_newbcast:{4*qq} row_mask:{1<<qq:#x} bank_mask:0xf")
    mlstore(R + 2)
    ts(1)
    A(f"  s_cmp_lg_u32 s54, s51\n  s_cbranch_scc1 {lab('fin')}")
    A(f"  v_add_u32 v4, 0x1000, v{vL8}\n  v_lshl_add_u32 v5, v{vI}, 5, v{vML}")
    A("  s_mov_b32 s28, s18\n  s_mov_b32 s29, s19\n  s_mov_b32 s30, 0x4000\n  s_mov_b32 s31, 0x20000")
    A(f"  v_lshlrev_b32 v8, 2, v{vI}\n  v_lshl_add_u32 v8, v{vQ}, 8, v8")
    A(f"  s_lshl_b32 s57, s3, 6\n  s_add_u32 s57, s57, s52\n  s_mov_b32 s55, {spin}")
    A(f"  s_waitcnt lgkmcnt(0)\n  v_readfirstlane_b32 s53, v{T3}\n  s_cmp_lg_u32 s53, 0\n  s_cbranch_scc1 {lab('poll')}")
    dbgaddr()
    A(f"{lab('arr')}:                                   ; not yet known that all granules were marked: wait for the count")
    A(f"  global_load_dword v10, v{T2}, s[20:21] sc1\n  s_sub_u32 s55, s55, 1\n  s_waitcnt vmcnt(0)")
    A(f"  s_cbranch_scc1 {lab('fin')}\n  v_readfirstlane_b32 s53, v10\n  s_cmp_lt_u32 s53, 16\n  s_cbranch_scc1 {lab('arr')}")
    C = 20
    dpp = lambda op, d, a, b, c: A(f"  {op}_dpp v{d}, v{a}, v{b} {c} row_mask:0xf bank_mask:0xf")
    A(f"{lab('poll')}:")
    A("  buffer_load_dwordx2 v[16:17], v5, s[44:47], s63 offen sc1      ; lane (split, head): {M, L}")
    for sp in range(16):
        A(f"  buffer_load_dwordx2 v[{C+2*sp}:{C+2*sp+1}], v{vL8 if sp < 8 else 4}, s[44:47], s56 offen offset:{(sp&7)*512} sc1")
    A(f"  s_sub_u32 s55, s55, 1\n  s_cbranch_scc1 {lab('fin')}\n  s_waitcnt vmcnt(16)\n  v_mov_b32 v9, v16\n  s_nop 1")
    for r in (8, 4, 2, 1):
        dpp("v_max_f32", 9, 9, 9, f"row_ror:{r}"); A("  s_nop 1")
    A("  v_sub_f32 v10, v16, v9\n  v_exp_f32 v10, v10\n  s_nop 0\n  v_mul_f32 v11, v10, v17\n  s_nop 1")
    for r in (8, 4, 2, 1):
        dpp("v_add_f32", 11, 11, 11, f"row_ror:{r}"); A("  s_nop 1")
    A("  v_rcp_f32 v11, v11\n  s_nop 0\n  v_mul_f32 v10, v10, v11\n  s_waitcnt vmcnt(8)")
    A(f"  v_max_u32 v9, v16, v17\n  v_max3_u32 v9, v9, v{C}, v{C+1}")
    dpp("v_mul_f32", 12, 10, C, "row_newbcast:0"); dpp("v_mul_f32", 13, 10, C+1, "row_newbcast:0")
    for sp in range(1, 16):
        if sp == 8: A("  s_waitcnt vmcnt(0)")
        A(f"  v_max3_u32 v9, v9, v{C+2*sp}, v{C+2*sp+1}")
        if sp == 15: A("  v_cmp_eq_u32 vcc, -1, v9")
        dpp("v_fmac_f32", 12, 10, C+2*sp, f"row_newbcast:{sp}"); dpp("v_fmac_f32", 13, 10, C+2*sp+1, f"row_newbcast:{sp}")
    A(f"  v_cvt_pk_bf16_f32 v12, v12, v13\n  s_nop 2\n  s_cbranch_vccnz {lab('poll')}")
    ts(5)
    A("  buffer_store_dword v12, v8, s[28:31], s57 offen")
    ts(6)
    A(f"{lab('fin')}:")
    if stamp:
        A("  s_waitcnt vmcnt(0)\n  s_memrealtime s[62:63]\n  s_getreg_b32 s64, hwreg(HW_REG_XCC_ID)\n  s_waitcnt lgkmcnt(0)")
        A(f"  s_mul_i32 s65, s2, 5\n  s_add_u32 s65, s65, s3\n  s_add_u32 s65, s65, 1\n  s_lshl_b32 s65, s65, 4\n  s_add_u32 s65, s65, {STAMP0}")
        A("  v_mov_b32 v0, s92\n  v_mov_b32 v1, s62\n  v_mov_b32 v2, s64\n  v_mov_b32 v3, s60\n  v_mov_b32 v4, s65")
        A("  s_mov_b64 exec, 1\n  global_store_dwordx4 v4, v[0:3], s[22:23]")
        A(f"  s_cmp_lg_u32 s3, 0\n  s_cbranch_scc1 {lab('end')}\n  s_mov_b64 exec, -1")
        A(f"  v_mbcnt_lo_u32_b32 v4, -1, 0\n  v_mbcnt_hi_u32_b32 v4, -1, v4\n  v_lshlrev_b32 v4, 2, v4\n  s_lshl_b32 s65, s2, 9\n  s_add_u32 s65, s65, {STAMP0+0x200000}\n  v_add_u32 v4, s65, v4")
        A("  global_store_dword v4, v100, s[22:23]\n  global_store_dword v4, v101, s[22:23] offset:256")
        A(f"  s_mov_b64 exec, 1\n  s_lshl_b32 s65, s2, 5\n  s_add_u32 s65, s65, {STAMP0+0x400000}\n  v_mov_b32 v4, s65\n  s_mov_b32 s90, s62")
        for n in range(8): A(f"  v_mov_b32 v{8+n}, s{76+2*n}")
        A("  global_store_dwordx4 v4, v[8:11], s[22:23]\n  global_store_dwordx4 v4, v[12:15], s[22:23] offset:16")
    A(f"{lab('end')}:\n  s_endpgm")
    kd = f""".section .rodata,"a"
.p2align 6
.amdhsa_kernel {kname}
  .amdhsa_next_free_vgpr 116
  .amdhsa_next_free_sgpr {96 if (stamp or jitter) else 64}
  .amdhsa_accum_offset 116
  .amdhsa_group_segment_fixed_size 0
  .amdhsa_kernarg_size 80
  .amdhsa_user_sgpr_count 2
  .amdhsa_user_sgpr_kernarg_segment_ptr 1
  .amdhsa_system_sgpr_workgroup_id_x 1
  .amdhsa_float_denorm_mode_32 3
.end_amdhsa_kernel
"""
    body = "\n".join(L) + "\n" + kd
    if standalone:
        return HEADER + f"; @launch grid=(256,1,1) block=(320,1,1) lds={LDS_BYTES}\n" + DOC + '.amdgcn_target "amdgcn-amd-amdhsa--gfx950"\n.text\n' + body
    return body + ".text\n"

if __name__ == "__main__":
    ap = argparse.ArgumentParser()
    ap.add_argument("-o", default=f"cdna_kernels/{NAME}.s")
    for k, d in (("W", 20), ("WV", 20), ("WXK", 22), ("WX", 22), ("F", 4), ("FV", 4)):
        ap.add_argument("--" + k, type=int, default=d)
    a = ap.parse_args()
    open(a.o, "w").write(gen(W=a.W, WV=a.WV, WXK=a.WXK, WX=a.WX, F=a.F, FV=a.FV))
```

```python
import struct, sys, argparse, os
from gen1 import NAME, HEADER, f32hex, meta

RING, LOG, KS, KZ, VS, VZ, STG = 0, 65536, 98304, 114688, 131072, 135168, 139264
STGS = 1280
AUX = STG
MX = STG + 8 * STGS
MISC = MX + 256
oLAST, oPART, oLASTK, oPARTK, oCIDX = 0, 16, 32, 48, 64
LDS_BYTES = 150016
WS_REC, WS_ML, WS_CNT, WS_AUX, AUXS = 0, 0x80000, 0x90000, 0xb0000, 640
WS_BYTES = 0x200000
STAMP0 = 0x800000
OOB = "0x7ffffff0"

DOC = """; ---------------------------------------------------------------------------------------------
; ---------------------------------------------------------------------------------------------
"""

def gen(W=20, WV=20, WXK=22, WX=22, F=4, FV=4, stamp=0, kname=None, standalone=True, spin=1 << 20, CHK=36, PUBV=1,
        nochk=False, nochkk=False, mapping="same", jitter=0, kh0=2, skip0=True, arrsp=0, clr="k", cstr=4096, gk=None, gv=None, xscale=0, early=True):
    kname = kname or NAME + "_kernel"
    NS = 64 - F
    NSV = 64 - FV
    assert F % 4 == 0 and FV % 2 == 0 and F <= FV <= F + 4 and WS_AUX + 16 * 16 * FV * AUXS <= WS_BYTES
    assert all(17 <= w <= 32 for w in (W, WV, WXK, WX)) and CHK + 4 <= NSV - 5 and PUBV + 3 < CHK
    L = []
    A = L.append
    tag = "L" + (kname[-12:].strip("_") if not standalone else "")
    lab = lambda s: f"{tag}_{s}"
    njit = [0]
    def jit(reg, other="s2"):
        if not jitter: return
        njit[0] += 1
        A(f"  s_mul_i32 s70, {reg}, {jitter}\n  s_add_u32 s70, s70, {other}\n  s_add_u32 s70, s70, s3\n  s_mul_i32 s70, s70, 0x9e3779b1\n  s_lshr_b32 s70, s70, 29")
        A(f"  s_cmp_lg_u32 s70, {njit[0] & 7}\n  s_cbranch_scc1 {lab(f'j{njit[0]}')}\n  s_sleep {20 + 9*(njit[0] % 5)}\n{lab(f'j{njit[0]}')}:")
    c2 = f32hex((128 ** -0.5) * 1.4426950408889634)

    A(f".globl {kname}\n.p2align 8\n.type {kname},@function\n{kname}:")
    A(f"  s_cmp_ge_u32 s2, 256\n  s_cbranch_scc1 {lab('end')}")
    if stamp: A("  s_memrealtime s[92:93]")
    A("  s_load_dwordx16 s[4:19], s[0:1], 0")
    A("  s_load_dwordx4 s[20:23], s[0:1], 64")
    A("  v_lshrrev_b32 v1, 6, v0")
    A("  v_and_b32 v0, 63, v0                    ; lane")
    A("  v_readfirstlane_b32 s3, v1")
    A("  s_lshr_b32 s50, s2, 4")
    if mapping == "same":
        A("  s_and_b32 s51, s2, 7")
        A("  s_bfe_u32 s52, s2, 0x10003              ; u")
        A("  s_lshl1_add_u32 s51, s51, s52")
    else:
        A("  s_and_b32 s51, s2, 15\n  s_and_b32 s52, s2, 1\n  s_nop 0")
    A(f"  s_cmp_lg_u32 s3, 0\n  s_cbranch_scc1 {lab('cons')}")

    A("  s_setprio 3")
    A("  v_lshrrev_b32 v5, 5, v0\n  v_xor_b32 v1, v0, v5")
    A("  v_lshlrev_b32 v1, 4, v1")
    A("  v_xor_b32 v2, 64, v1\n  v_xor_b32 v3, 0x80, v1\n  v_xor_b32 v4, 0xc0, v1")
    A("  s_lshr_b32 s53, s51, 1\n  s_lshl_b32 s53, s53, 21\n  s_lshl_b32 s52, s52, 15\n  s_add_u32 s53, s53, s52")
    A(f"  s_add_u32 s53, s53, {F//2*65536}")
    A("  s_lshl_b32 s28, s50, 24\n  s_mov_b32 s26, 0x1000000\n  s_mov_b32 s27, 0x20000")
    A("  s_mov_b32 s30, s53\n  s_mov_b32 s34, 0")
    A(f"  s_mov_b32 s31, {8 + ((W - 17) >> 2)}")
    A(f"  s_add_u32 s33, s53, {(NS-2)//2*65536}")
    A("  s_waitcnt lgkmcnt(0)")
    A("  s_add_u32 s24, s6, s28\n  s_addc_u32 s25, s7, 0")
    def ldloop(label, w):
        ib = w - 17
        A(f"{label}:")
        jit("s30")
        A("  s_mov_b32 m0, s34")
        for i in range(4):
            A(f"  s_waitcnt vmcnt({w-1})")
            if i == (ib & 3):
                A(f"  s_sub_u32 s31, s31, 1\n  s_cbranch_scc0 {label}_nb\n  s_barrier\n  s_mov_b32 s31, 3\n{label}_nb:")
            A(f"  buffer_load_dwordx4 v{1+i}, s[24:27], s30 offen offset:{i*1024} nt lds")
        A("  s_add_u32 s30, s30, 0x1000\n  s_add_u32 s34, s34, 0x1000\n  s_and_b32 s34, s34, 0xffff")
        A("  s_and_b32 s35, s30, 0x7000\n  s_cselect_b32 s35, 0, 0x8000\n  s_add_u32 s30, s30, s35")
        A(f"  s_cmp_lt_u32 s30, s33\n  s_cbranch_scc1 {label}")
    def pool(label, isk, w):
        ib = w - 17
        A(f"  v_mov_b32 v8, {MISC}\n  ds_read_b32 v9, v8 offset:{oPARTK if isk else oPART}")
        A(f"  s_mul_i32 s37, s50, {cstr}\n  s_add_u32 s37, s37, {WS_CNT + (2048 if isk else 0)}\n  v_mov_b32 v11, s37")
        gd = gk if isk else gv
        P = 16*(F if isk else FV)
        if gd: A(f"  s_mov_b32 s58, 2\n  s_mov_b32 s54, 1\n  s_mov_b32 s55, 1\n  s_mov_b32 s41, {gd[2]}")
        A("  v_mov_b32 v12, -1\n  v_mov_b32 v13, -1\n  s_add_u32 s36, s40, 2")
        A("  s_waitcnt lgkmcnt(0)\n  v_readfirstlane_b32 s48, v9")
        A(f"{label}:")
        for par in range(2):
            A(f"  s_cmp_lt_u32 s40, s36\n  s_cbranch_scc1 {label}_own{par}")
            if gd: A(f"  v_readfirstlane_b32 s42, v{12+par}\n  s_add_u32 s41, s41, 1\n  s_cmp_lg_u32 s{54+par}, 0\n  s_cselect_b32 s41, s42, s41")
            else: A(f"  v_readfirstlane_b32 s41, v{12+par}")
            A(f"  s_cmp_ge_u32 s41, {16*(F if isk else FV)}\n  s_cbranch_scc1 {label}_end")
            A("  s_bfe_u32 s42, s41, 0x30001\n  s_lshl_b32 s30, s42, 21\n  s_and_b32 s42, s41, 1\n  s_lshl_b32 s42, s42, 15\n  s_add_u32 s30, s30, s42")
            A("  s_lshr_b32 s42, s41, 5\n  s_lshl_b32 s42, s42, 16\n  s_add_u32 s30, s30, s42\n  s_bfe_u32 s42, s41, 0x10004\n  s_lshl_b32 s42, s42, 14\n  s_add_u32 s30, s30, s42")
            if isk:
                A("  s_lshr_b32 s42, s30, 14\n  s_lshl_b32 s43, s50, 10\n  s_add_u32 s42, s42, s43")
                A("  v_mad_u64_u32 v[18:19], s[56:57], v14, s42, v[16:17]")
                A(f"  s_and_b32 s43, s40, 7\n  s_mul_i32 s43, s43, {STGS}\n  s_add_u32 m0, s43, {STG + 512}\n  s_mov_b64 exec, s[38:39]")
                A(f"  s_waitcnt vmcnt({w-1})\n  global_load_lds_dwordx4 v[18:19], off nt")
            else:
                A(f"  s_mul_i32 s42, s41, {AUXS}\n  s_add_u32 s42, s42, s49")
                A(f"  s_lshr_b32 s43, s34, 4\n  s_add_u32 m0, s43, {AUX}\n  s_mov_b64 exec, s[38:39]")
                A(f"  s_waitcnt vmcnt({w-1})\n  buffer_load_dwordx4 v1, s[44:47], s42 offen sc1 lds")
            A(f"{label}_own{par}:")
            A(f"  s_cmp_eq_u32 s48, 0\n  s_cbranch_scc1 {label}_noc{par}\n  s_mov_b64 exec, 1")
            if isk:
                A(f"  s_and_b32 s43, s40, 7\n  s_lshl2_add_u32 s43, s43, {MISC + oCIDX}\n  v_mov_b32 v8, s43\n  v_mov_b32 v9, s41\n  ds_write_b32 v8, v9")
            if gd:
                A(f"  s_mov_b32 s{54+par}, 0\n  s_sub_u32 s58, s58, 1\n  s_cmp_ge_u32 s58, 2\n  s_cbranch_scc1 {label}_noc{par}")
                A(f"  s_cmp_lt_u32 s41, {gd[0]}\n  s_cselect_b32 s43, {gd[1]}, 1\n  s_mov_b32 s{54+par}, 1\n  s_add_u32 s58, s58, s43\n  v_mov_b32 v10, s43")
            elif gk: A("  v_mov_b32 v10, 1")
            A(f"  s_waitcnt vmcnt({w-1})\n  global_atomic_add v{12+par}, v11, v10, s[22:23] sc0 sc1")
            A(f"{label}_noc{par}:\n  s_mov_b64 exec, -1")
            jit("s40")
            for g in range(4):
                A("  s_mov_b32 m0, s34")
                for i in range(4):
                    if 4*g + i == ib: A(f"  s_waitcnt vmcnt({w-1}) lgkmcnt(0)\n  s_barrier")
                    else: A(f"  s_waitcnt vmcnt({w-1})")
                    A(f"  buffer_load_dwordx4 v{1+i}, s[24:27], s30 offen offset:{i*1024} nt lds")
                A("  s_add_u32 s30, s30, 0x1000\n  s_add_u32 s34, s34, 0x1000")
            A("  s_and_b32 s34, s34, 0xffff\n  s_add_u32 s40, s40, 1")
        A(f"  s_branch {label}\n{label}_end:")
        A(f"  s_sub_u32 s42, s40, 1\n  v_mov_b32 v8, {MISC}\n  v_mov_b32 v9, s42\n  ds_write_b32 v8, v9 offset:{oLASTK if isk else oLAST}")
    ldloop(lab("lk"), W)
    A(f"  s_mov_b32 s40, {NS-2}\n  s_mov_b32 s41, 0")
    A("  s_mov_b32 s38, -1\n  s_mov_b32 s39, 0xff\n  v_mov_b32 v10, 1")
    A(f"  s_mov_b32 s44, s22\n  s_mov_b32 s45, s23\n  s_mov_b32 s46, {WS_BYTES}\n  s_mov_b32 s47, 0x20000")
    A(f"  s_mul_i32 s49, s50, {16*FV*AUXS}\n  s_add_u32 s49, s49, {WS_AUX}")
    A("  v_mov_b32 v16, s14\n  v_mov_b32 v17, s15\n  v_mov_b32 v14, 64")
    for (lo, mlo, mhi, sub, stride) in ((16, "0xffffff0", None, 64, None), (10, "0xffffff00", "0xff", 128, 256), (12, "0xff000000", "0xff", 384, None)):
        A(f"  s_sub_u32 s42, s{lo}, {sub}\n  s_subb_u32 s43, s{lo+1}, 0\n  s_mov_b32 exec_lo, {mlo}\n  s_mov_b32 exec_hi, {mhi or 0}")
        A("  v_mov_b32 v16, s42\n  v_mov_b32 v17, s43")
        if stride: A(f"  v_mov_b32 v14, {stride}")
    A("  s_mov_b64 exec, -1\n  v_lshlrev_b32 v8, 4, v0\n  v_add_co_u32 v16, vcc, v16, v8\n  s_nop 1\n  v_addc_co_u32 v17, vcc, 0, v17, vcc")
    pool(lab("pk"), True, WXK)
    A(f"  s_add_u32 s24, s8, s28\n  s_addc_u32 s25, s9, 0\n  s_add_u32 s30, s53, {(FV-F)//2*65536}")
    for i in range(4): A(f"  v_lshlrev_b32 v{1+i}, 4, v0")
    A(f"  s_mov_b32 s31, {(WV-17) >> 2}\n  s_add_u32 s33, s53, {(NS-2)//2*65536}\n  s_add_u32 s40, s40, {NSV-2}\n  s_waitcnt lgkmcnt(0)")
    ldloop(lab("lv"), WV)
    pool(lab("pv"), False, WX)
    A("  s_waitcnt vmcnt(16) lgkmcnt(0)\n  s_barrier\n  s_waitcnt vmcnt(0)\n  s_barrier")
    if stamp:
        A("  s_memrealtime s[62:63]\n  s_getreg_b32 s69, hwreg(HW_REG_XCC_ID)\n  s_waitcnt lgkmcnt(0)")
        A(f"  s_mul_i32 s65, s2, 5\n  s_lshl_b32 s65, s65, 4\n  s_add_u32 s65, s65, {STAMP0}")
        A("  v_mov_b32 v0, s92\n  v_mov_b32 v1, s62\n  v_mov_b32 v2, s69\n  v_mov_b32 v3, s42\n  v_mov_b32 v4, s65")
        A("  s_mov_b64 exec, 1\n  global_store_dwordx4 v4, v[0:3], s[22:23]")
    A("  s_endpgm")

    vI, vQ, vL16 = 1, 2, 3
    aK = [4, 5, 6, 7]
    aS, aZ, aL, vM = 8, 9, 10, 11
    aV, aP, aVS, vLs = 12, 13, 14, 15
    QF, KR, KSr, KZr, OA, OB, ACC = 16, 32, 48, 56, 64, 72, 80
    T0, T1, T2, T3 = 92, 93, 94, 95
    vLAST, vArr, vChk, aMisc = 96, 97, 98, 99
    vL8, vML = 104, 105
    aKx = [106, 107, 108, 109]
    bS, bZ, bL = 110, 111, 112
    A(f"  ; ======== consumer waves\n{lab('cons')}:")
    A("  s_sub_u32 s3, s3, 1")
    A(f"  v_and_b32 v{vI}, 15, v0\n  v_lshrrev_b32 v{vQ}, 4, v0\n  v_lshlrev_b32 v{vL16}, 4, v0")
    A(f"  v_and_b32 v{T0}, 3, v{vI}")
    A(f"  v_bfe_u32 v{T1}, v{vI}, 2, 1")
    A(f"  v_lshlrev_b32 v{T2}, 4, v{vQ}\n  v_lshl_add_u32 v{bS}, v{T1}, 7, v{T2}\n  v_lshl_add_u32 v{T3}, v{T0}, 8, v{bS}")
    A(f"  v_add_u32 v{aS}, {KS + F*256}, v{bS}")
    A(f"  v_lshrrev_b32 v{T1}, 5, v0\n  v_and_b32 v{aV}, 31, v0\n  v_lshlrev_b32 v{aV}, 4, v{aV}\n  v_lshl_add_u32 v{aV}, v{T1}, 10, v{aV}")
    A(f"  v_lshrrev_b32 v{T1}, 3, v0\n  v_and_b32 v{aP}, 7, v0\n  v_lshlrev_b32 v{aP}, 4, v{aP}\n  v_lshl_add_u32 v{aP}, v{T1}, 8, v{aP}")
    A("  s_lshr_b32 s53, s51, 1\n  s_lshl_b32 s53, s53, 7\n  s_lshl1_add_u32 s53, s52, s53\n  s_lshl_b32 s52, s50, 10\n  s_add_u32 s53, s53, s52")
    A("  s_lshl_b32 s54, s53, 6\n  s_lshl_b32 s53, s53, 8\n  s_lshl_b32 s55, s3, 10\n  s_lshl_b32 s57, s3, 11")
    A("  s_mov_b32 s26, 0x4000\n  s_mov_b32 s27, 0x20000\n  s_mov_b32 s30, 32256\n  s_mov_b32 s31, 0x20000\n  s_mov_b32 s34, 32256\n  s_mov_b32 s35, 0x20000")
    if xscale & 1: A("  s_mov_b32 s30, 0\n  s_mov_b32 s34, 0")
    A("  s_mov_b32 s38, 8064\n  s_mov_b32 s39, 0x20000\n  s_mov_b32 s42, 8064\n  s_mov_b32 s43, 0x20000")
    if xscale & 2: A("  s_mov_b32 s38, 0\n  s_mov_b32 s42, 0")
    A(f"  s_cmp_lt_u32 s3, {F//4 if skip0 else 0}\n  s_cselect_b32 s56, {OOB}, s57")
    A("  s_waitcnt lgkmcnt(0)\n  s_mov_b32 s24, s4\n  s_mov_b32 s25, s5")
    A(f"  buffer_load_dwordx4 v[{KR}:{KR+3}], v{T3}, s[24:27], s52 offen")
    A(f"  buffer_load_dwordx4 v[{KR+4}:{KR+7}], v{T3}, s[24:27], s52 offen offset:64")
    A("  s_add_u32 s28, s10, s53\n  s_addc_u32 s29, s11, 0\n  s_add_u32 s32, s12, s53\n  s_addc_u32 s33, s13, 0")
    A("  s_add_u32 s36, s14, s54\n  s_addc_u32 s37, s15, 0\n  s_add_u32 s40, s16, s54\n  s_addc_u32 s41, s17, 0")
    for k in range(4):
        if k: A(f"  s_add_u32 s56, s57, {k*8192}")
        A(f"  s_add_u32 m0, s55, {KS + k*4096}\n  s_nop 0\n  buffer_load_dwordx4 v{aV}, s[28:31], s56 offen nt lds")
        A(f"  s_add_u32 m0, s55, {KZ + k*4096}\n  s_nop 0\n  buffer_load_dwordx4 v{aV}, s[32:35], s56 offen nt lds")
    A(f"  s_add_u32 m0, s55, {VS}\n  s_nop 0\n  buffer_load_dwordx4 v{aP}, s[36:39], s57 offen nt lds")
    A(f"  s_add_u32 m0, s55, {VZ}\n  s_nop 0\n  buffer_load_dwordx4 v{aP}, s[40:43], s57 offen nt lds")
    A(f"  s_mov_b32 s44, s22\n  s_mov_b32 s45, s23\n  s_mov_b32 s46, {WS_BYTES}\n  s_mov_b32 s47, 0x20000")
    A(f"  s_mul_i32 s53, s50, {cstr}\n  s_add_u32 s53, s53, {WS_CNT}\n  s_add_u32 s54, s51, s3\n  s_cmp_eq_u32 s54, 0\n  s_cselect_b32 s53, s53, {OOB}")
    A(f"  v_mov_b32 v{T1}, 0\n  s_mov_b64 exec, 1")
    A(f"  buffer_store_dword v{T1}, v{vL16}, s[44:47], s53 offen sc1\n  buffer_store_dword v{T1}, v{vL16}, s[44:47], s53 offen offset:1024 sc1\n  buffer_store_dword v{T1}, v{vL16}, s[44:47], s53 offen offset:2048 sc1\n  s_mov_b64 exec, -1")
    nvm = 15
    A("  s_lshl2_add_u32 s56, s50, s3\n  s_lshl_b32 s56, s56, 13")
    A("  s_lshl_b32 s57, s51, 9\n  s_add_u32 s57, s57, s56")
    A(f"  s_lshl_b32 s63, s50, 9\n  s_add_u32 s63, s63, {WS_ML}")
    A(f"  v_lshlrev_b32 v{vL8}, 3, v0\n  v_lshlrev_b32 v{vML}, 3, v{vQ}")
    A(f"  v_and_b32 v{T1}, 7, v{vI}\n  v_lshrrev_b32 v{T2}, 3, v{vI}")
    A(f"  v_lshlrev_b32 v{bZ}, 4, v{vQ}\n  v_lshl_add_u32 v{bZ}, v{T2}, 7, v{bZ}\n  v_add_u32 v{aZ}, {KZ + F*256}, v{bZ}")
    A(f"  v_lshlrev_b32 v{T2}, 4, v{T2}\n  v_lshl_add_u32 v{T2}, v{vQ}, 1, v{T2}")
    A(f"  v_and_b32 v{T3}, 6, v{T1}\n  v_lshlrev_b32 v{T3}, 1, v{T3}\n  v_and_or_b32 v{T3}, v{T1}, 1, v{T3}")
    A(f"  v_xor_b32 v{T2}, v{T2}, v{T3}\n  v_lshlrev_b32 v{T2}, 4, v{T2}\n  v_lshl_add_u32 v{T2}, v{T1}, 9, v{T2}")
    A(f"  s_lshl_b32 s58, s3, 12\n  v_add_u32 v{aK[0]}, s58, v{T2}")
    A(f"  v_xor_b32 v{aK[1]}, 16, v{aK[0]}\n  v_xor_b32 v{aK[2]}, 0x80, v{aK[0]}\n  v_xor_b32 v{aK[3]}, 0x90, v{aK[0]}")
    A(f"  v_and_b32 v{T1}, 1, v{vQ}\n  v_lshrrev_b32 v{T2}, 1, v{vQ}\n  v_lshl_add_u32 v{T1}, v{T1}, 2, v{T2}\n  v_lshlrev_b32 v{T1}, 2, v{T1}")
    A(f"  v_lshl_add_u32 v{T1}, v{T0}, 7, v{T1}\n  s_lshl_b32 s58, s3, 5\n  v_add_u32 v{bL}, s58, v{T1}\n  v_add_u32 v{aL}, {LOG + F*512}, v{bL}")
    A(f"  v_lshlrev_b32 v{T1}, 3, v{vI}\n  v_lshl_add_u32 v{T1}, v{vQ}, 12, v{T1}\n  s_lshl_b32 s58, s3, 7\n  v_add_u32 v{aV}, s58, v{T1}")
    A(f"  v_lshrrev_b32 v{T1}, 2, v{vI}\n  v_lshlrev_b32 v{T2}, 5, v{vQ}\n  v_lshl_add_u32 v{T2}, v{T1}, 7, v{T2}\n  v_add_u32 v{aP}, {LOG + FV*512}, v{T2}")
    A(f"  v_lshlrev_b32 v{aVS}, 4, v{vQ}\n  v_add_u32 v{aVS}, {VS + FV*64}, v{aVS}")
    A(f"  v_mov_b32 v{vM}, 0xff800000\n  v_mov_b32 v{vLs}, 0")
    A(f"  v_mov_b32 v{aMisc}, {MISC}\n  v_mov_b32 v{T0}, -1\n  ds_write_b32 v{aMisc}, v{T0} offset:{oLAST}\n  ds_write_b32 v{aMisc}, v{T0} offset:{oLASTK}")
    A("  s_mov_b32 s48, 0x000f000f\n  s_mov_b32 s49, 0x000f000f\n  s_mov_b32 s58, 0xffff0000\n  s_mov_b32 s38, -1\n  s_mov_b32 s39, 0xff")
    A(f"  s_waitcnt vmcnt({nvm-2})")
    for n in range(8):
        A(f"  v_lshlrev_b32 v{QF+2*n}, 16, v{KR+n}\n  v_and_b32 v{QF+2*n+1}, s58, v{KR+n}")
    for n in range(16):
        A(f"  v_mul_f32 v{QF+n}, {c2}, v{QF+n}        ; q * 128^-0.5 * log2(e)" if n == 0 else f"  v_mul_f32 v{QF+n}, {c2}, v{QF+n}")
    A(f"  s_mov_b32 s59, 0\n  s_cmp_eq_u32 s51, 0\n  s_cselect_b32 s55, {kh0}, 8\n  s_cmp_eq_u32 s3, 0\n  s_cselect_b32 s55, s55, 99")
    A(f"  s_waitcnt vmcnt({nvm-4})")
    def tl(vr, expr):
        A(f"  s_waitcnt lgkmcnt(0)\n  s_memrealtime s[66:67]\n{expr}\n  s_waitcnt lgkmcnt(0)\n  v_writelane_b32 v{vr}, s66, m0")
    def kstep(ak, ok, oz, ol, pooled):
        e = 1 if pooled else 0
        jit("s59")
        A(f"  ds_read_b128 v[{KSr}:{KSr+3}], v{aS} offset:{oz}\n  ds_read_b128 v[{KSr+4}:{KSr+7}], v{aS} offset:{oz+64}")
        for n in range(4): A(f"  ds_read_b128 v[{KR+4*n}:{KR+4*n+3}], v{ak[n]} offset:{ok}")
        A(f"  ds_read_b128 v[{KZr}:{KZr+3}], v{aZ} offset:{oz}\n  ds_read_b128 v[{KZr+4}:{KZr+7}], v{aZ} offset:{oz+64}")
        if pooled: A(f"  ds_read_b32 v{vLAST}, v{aMisc} offset:{oLASTK}")
        for m in range(2):
            A(f"  s_waitcnt lgkmcnt({7-m+e})")
            for n in range(4):
                r = KSr + 4*m + n
                A(f"  v_lshlrev_b32 v{T0}, 16, v{r}\n  v_and_b32 v{T1}, s58, v{r}")
                A(f"  v_mul_f32 v{T0}, v{T0}, v{QF+8*m+2*n}\n  v_mul_f32 v{T1}, v{T1}, v{QF+8*m+2*n+1}")
                A(f"  v_cvt_pk_bf16_f32 v{OB+4*m+n}, v{T0}, v{T1}")
        for m in range(2):
            A(f"  s_waitcnt lgkmcnt({4-2*m+e})")
            for n in range(8): A(f"  v_cvt_f32_i32 v{KR+8*m+n}, v{KR+8*m+n}")
            for n in range(4): A(f"  v_cvt_pk_bf16_f32 v{OA+4*m+n}, v{KR+8*m+2*n}, v{KR+8*m+2*n+1}")
        A("  s_waitcnt lgkmcnt(0)")
        for n in range(4): A(f"  v_xor_b32 v{KZr+n}, 0x80008000, v{KZr+n}")
        A(f"  v_mfma_f32_16x16x32_bf16 v[{ACC}:{ACC+3}], v[{OA}:{OA+3}], v[{OB}:{OB+3}], 0")
        for n in range(4, 8): A(f"  v_xor_b32 v{KZr+n}, 0x80008000, v{KZr+n}")
        A(f"  v_mfma_f32_16x16x32_bf16 v[{ACC}:{ACC+3}], v[{OA+4}:{OA+7}], v[{OB+4}:{OB+7}], v[{ACC}:{ACC+3}]")
        A(f"  v_mfma_f32_16x16x32_bf16 v[{ACC}:{ACC+3}], v[{KZr}:{KZr+3}], v[{OB}:{OB+3}], v[{ACC}:{ACC+3}]")
        A(f"  v_mfma_f32_16x16x32_bf16 v[{ACC}:{ACC+3}], v[{KZr+4}:{KZr+7}], v[{OB+4}:{OB+7}], v[{ACC}:{ACC+3}]")
        if pooled: A(f"  v_readfirstlane_b32 s61, v{vLAST}\n  s_nop 6")
        else: A("  s_nop 7")
        A(f"  v_permlane32_swap_b32 v{ACC}, v{ACC+1}\n  v_permlane32_swap_b32 v{ACC+2}, v{ACC+3}\n  s_nop 1")
        A(f"  v_add_f32_dpp v{T0}, v{ACC+1}, v{ACC} row_shl:4 row_mask:0xf bank_mask:0xf bound_ctrl:1")
        A(f"  v_add_f32_dpp v{T1}, v{ACC+3}, v{ACC+2} row_shl:4 row_mask:0xf bank_mask:0xf bound_ctrl:1")
        A(f"  s_mov_b64 exec, s[48:49]\n  ds_write_b32 v{aL}, v{T0} offset:{ol}\n  ds_write_b32 v{aL}, v{T1} offset:{ol+8}")
        if not pooled: A(f"  v_max3_f32 v{vM}, v{vM}, v{T0}, v{T1}")
        A("  s_mov_b64 exec, -1")
        jit("s59")
    def publish(r, skip):
        A(f"  s_and_b32 s54, s53, 3\n  s_cmp_lg_u32 s54, s3\n  s_cbranch_scc1 {skip}\n  s_cmp_lt_u32 s53, {NS}\n  s_cbranch_scc1 {skip}")
        A(f"  s_and_b32 s53, s53, 7\n  s_lshl2_add_u32 s54, s53, {MISC + oCIDX}\n  s_mul_i32 s53, s53, {STGS}\n  s_add_u32 s53, s53, {STG}")
        A(f"  v_mov_b32 v{T3}, s54\n  v_add_u32 v{T2}, s53, v{vL16}\n  s_mov_b32 exec_hi, 0xff")
        A(f"  ds_read_b32 v{T3}, v{T3}\n  ds_read_b128 v[{r}:{r+3}], v{T2}\n  s_mul_i32 s54, s50, {16*FV}\n  s_waitcnt lgkmcnt(0)")
        A(f"  v_readfirstlane_b32 s53, v{T3}\n  s_add_u32 s53, s53, s54\n  s_mul_i32 s53, s53, {AUXS}\n  s_add_u32 s53, s53, {WS_AUX}")
        A(f"  buffer_store_dwordx4 v[{r}:{r+3}], v{vL16}, s[44:47], s53 offen sc1\n  s_mov_b64 exec, -1")
    dbgaddr = lambda: A(f"  s_lshl_b32 s53, s50, 4\n  v_mov_b32 v{T2}, s53")
    arraddr = lambda: A(f"  s_mul_i32 s53, s50, {cstr}\n  s_add_u32 s53, s53, {WS_CNT + 1024}\n  v_mov_b32 v{T2}, s53")
    def mlstore(r):
        A(f"  s_lshl_b32 s53, s51, 5\n  s_add_u32 s53, s53, s63\n  s_cmp_eq_u32 s3, 0\n  s_cselect_b32 s53, s53, {OOB}")
        A("  s_mov_b32 exec_lo, 0x00010001\n  s_mov_b32 exec_hi, 0x00010001")
        A(f"  buffer_store_dwordx2 v[{r}:{r+1}], v{vML}, s[44:47], s53 offen sc1\n  s_mov_b64 exec, -1")
    def clear(r):
        A(f"  v_mov_b32 v{r}, -1\n  v_mov_b32 v{r+1}, -1")
        A(f"  buffer_store_dwordx2 v[{r}:{r+1}], v{vL8}, s[44:47], s57 offen sc1")
        mlstore(r)
    A(f"  ; ---- phase K\n{lab('k')}:")
    for k in range(4):
        if k == 3: A("  s_waitcnt vmcnt(0)")
        A("  s_barrier")
        if stamp: tl(100, f"  s_lshl2_add_u32 m0, s59, {k}")
        kstep(aK, k*16384, k*256, k*512, False)
    A(f"  v_add_u32 v{aS}, 0x400, v{aS}\n  v_add_u32 v{aZ}, 0x400, v{aZ}\n  v_add_u32 v{aL}, 0x800, v{aL}")
    A(f"  s_cmp_eq_u32 s59, s55\n  s_cbranch_scc1 {lab('khook')}\n{lab('kn')}:")
    A(f"  s_add_u32 s59, s59, 1\n  s_cmp_lt_u32 s59, {NS//4}\n  s_cbranch_scc1 {lab('k')}")
    if clr == "k": clear(OB)
    A(f"  ds_read_b32 v{vLAST}, v{aMisc} offset:{oLASTK}\n  s_mov_b32 s59, {NS}\n  s_waitcnt lgkmcnt(0)\n  v_readfirstlane_b32 s61, v{vLAST}")
    A(f"{lab('kx')}:\n  s_cmp_lt_u32 s61, s59\n  s_cbranch_scc1 {lab('kdone')}")
    A("  s_and_b32 s53, s59, 3\n  s_lshl_b32 s53, s53, 14")
    for n in range(4): A(f"  v_add_u32 v{aKx[n]}, s53, v{aK[n]}")
    A(f"  s_and_b32 s53, s59, 7\n  s_mul_i32 s53, s53, {STGS}\n  s_add_u32 s53, s53, {STG}")
    A(f"  v_add_u32 v{aL}, s53, v{bL}\n  s_add_u32 s54, s53, 640\n  v_add_u32 v{aS}, s54, v{bS}\n  s_add_u32 s54, s53, 896\n  v_add_u32 v{aZ}, s54, v{bZ}")
    A("  s_barrier\n  s_sub_u32 s53, s59, 2")
    publish(OA, lab("kxp"))
    A(f"{lab('kxp')}:")
    kstep(aKx, 0, 0, 0, True)
    A(f"  s_add_u32 s59, s59, 1\n  s_branch {lab('kx')}")
    A(f"{lab('khook')}:")
    dbgaddr()
    A(f"  v_mov_b32 v{T3}, 1\n  s_mov_b64 exec, 1\n  s_cmp_lg_u32 s59, {kh0}\n  s_cbranch_scc1 {lab('kh1')}")
    A(f"  s_mov_b32 s55, 8")
    A(f"  global_store_dword v{T2}, v{T3}, s[20:21] sc1\n  s_branch {lab('khx')}")
    A(f"{lab('kh1')}:\n  s_cmp_lg_u32 s59, 8\n  s_cbranch_scc1 {lab('kh2')}")
    A(f"  global_load_dword v{vChk}, v{T2}, s[20:21] sc1\n  s_mov_b32 s55, 9\n  s_branch {lab('khx')}")
    A(f"{lab('kh2')}:")
    if nochkk: A(f"  v_mov_b32 v{vChk}, 0")
    A(f"  s_cmp_eq_u32 s51, 0\n  s_cselect_b32 s53, 1, 0\n  v_or_b32 v{T3}, s53, v{vChk}\n  ds_write_b32 v{aMisc}, v{T3} offset:{oPARTK}\n  v_readfirstlane_b32 s64, v{T3}")
    A(f"{lab('khx')}:\n  s_mov_b64 exec, -1\n  s_branch {lab('kn')}")
    ACC0, ACC1, ACCZ = 80, 84, 88
    A(f"{lab('kdone')}:")
    if clr == "kd": clear(OB)
    A(f"  v_and_b32 v{T0}, 3, v{vI}\n  v_lshlrev_b32 v{T1}, 2, v{vQ}\n  v_lshl_add_u32 v{T0}, v{T0}, 6, v{T1}")
    A(f"  s_lshl_b32 s53, s3, 4\n  s_add_u32 s53, s53, {MX}\n  v_add_u32 v{T0}, s53, v{T0}")
    A(f"  s_mov_b64 exec, s[48:49]\n  ds_write_b32 v{T0}, v{vM}\n  s_mov_b64 exec, -1")
    A(f"  v_lshrrev_b32 v{T1}, 2, v{vI}\n  v_lshlrev_b32 v{T1}, 6, v{T1}\n  v_add_u32 v{T1}, {MX}, v{T1}")
    for n in range(12): A(f"  v_mov_b32 v{ACC0+n}, 0")
    A(f"  s_mov_b32 s60, s59\n  s_add_u32 s61, s59, {NSV}\n  s_add_u32 s55, s59, {PUBV}\n  s_mov_b32 s62, 0")
    A(f"  s_and_b32 s53, s59, 3\n  s_lshl_b32 s53, s53, 14\n  v_add_u32 v{aV}, s53, v{aV}")
    A("  s_waitcnt lgkmcnt(0)\n  s_barrier")
    if stamp: tl(101, "  s_mov_b32 m0, 0")
    for n in range(4): A(f"  ds_read_b128 v[{KR+4*n}:{KR+4*n+3}], v{T1} offset:{16*n}")
    A("  s_waitcnt lgkmcnt(0)")
    A(f"  v_max3_f32 v{vM}, v{KR}, v{KR+1}, v{KR+2}")
    for n in range(3, 15, 2): A(f"  v_max3_f32 v{vM}, v{vM}, v{KR+n}, v{KR+n+1}")
    A(f"  v_max_f32 v{vM}, v{vM}, v{KR+15}\n  s_branch {lab('v0')}")
    A(f"{lab('hook')}:")
    A(f"  s_add_u32 s62, s62, 1\n  s_cmp_lg_u32 s62, 1\n  s_cbranch_scc1 {lab('h1')}")
    A("  s_sub_u32 s53, s60, 1\n  s_sub_u32 s54, s53, s3\n  s_and_b32 s54, s54, 3\n  s_sub_u32 s53, s53, s54")
    A(f"  s_cmp_ge_u32 s54, 2\n  s_cbranch_scc1 {lab('hp')}")
    publish(KZr, lab("hp"))
    A(f"{lab('hp')}:")
    if FV > F:
        A(f"  s_cmp_ge_u32 s3, {FV-F}\n  s_cbranch_scc1 {lab('hq')}")
        A(f"  s_lshl_b32 s54, s3, 9\n  s_add_u32 s54, s54, {LOG + F*512}\n  v_add_u32 v{T2}, s54, v{vL16}\n  s_lshl_b32 s53, s3, 6")
        A(f"  s_add_u32 s54, s53, {VS + F*64 - 512}\n  s_mov_b32 exec_lo, 0\n  s_mov_b32 exec_hi, 0xf\n  v_add_u32 v{T2}, s54, v{vL16}")
        A(f"  s_add_u32 s54, s53, {VZ + F*64 - 576}\n  s_mov_b32 exec_hi, 0xf0\n  v_add_u32 v{T2}, s54, v{vL16}\n  s_mov_b64 exec, s[38:39]")
        A(f"  ds_read_b128 v[{KR}:{KR+3}], v{T2}")
        A(f"  s_mul_i32 s53, s50, {16*FV}\n  s_add_u32 s54, s3, {F}\n  s_lshl4_add_u32 s53, s54, s53\n  s_add_u32 s53, s53, s51\n  s_mul_i32 s53, s53, {AUXS}\n  s_add_u32 s53, s53, {WS_AUX}")
        A(f"  s_waitcnt lgkmcnt(0)\n  buffer_store_dwordx4 v[{KR}:{KR+3}], v{vL16}, s[44:47], s53 offen sc1\n  s_mov_b64 exec, -1\n{lab('hq')}:")
    if clr == "v": clear(KZr + 4)
    A(f"  s_add_u32 s55, s55, 2\n  s_branch {lab('v1')}")
    A(f"{lab('h1')}:\n  s_cmp_lg_u32 s62, 2\n  s_cbranch_scc1 {lab('h2')}")
    A("  s_waitcnt vmcnt(0)")
    if arrsp: A(f"  s_mul_i32 s53, s51, {arrsp}\n  s_add_u32 s55, s55, s53")
    assert PUBV + 3 + 15*arrsp + 6 < CHK
    A(f"  s_add_u32 s55, s55, 1\n  s_cmp_eq_u32 s3, 0\n  s_cselect_b32 s55, s55, 0\n  s_branch {lab('v1')}")
    A(f"{lab('h2')}:\n  s_mov_b64 exec, 1\n  s_cmp_lg_u32 s62, 3\n  s_cbranch_scc1 {lab('h3')}")
    A(f"  s_cmp_lg_u32 s64, 0\n  s_cbranch_scc1 {lab('h2a')}\n  s_mov_b32 s55, {spin}")
    dbgaddr()
    A(f"{lab('h2w')}:                                   ; counters not yet known to be zeroed: wait for the word")
    A(f"  global_load_dword v{vChk}, v{T2}, s[20:21] sc1\n  s_sub_u32 s55, s55, 1\n  s_waitcnt vmcnt(0)\n  s_cbranch_scc1 {lab('h2a')}")
    A(f"  v_readfirstlane_b32 s64, v{vChk}\n  s_cmp_eq_u32 s64, 0\n  s_cbranch_scc1 {lab('h2w')}")
    A(f"{lab('h2a')}:")
    arraddr()
    A(f"  v_mov_b32 v{T1}, 1\n  global_atomic_add v{vArr}, v{T2}, v{T1}, s[22:23] sc0 sc1")
    A(f"  s_add_u32 s55, s60, {CHK}\n  s_branch {lab('hx')}")
    A(f"{lab('h3')}:\n  s_waitcnt vmcnt(0)\n  s_cmp_lg_u32 s62, 4\n  s_cbranch_scc1 {lab('h4')}")
    arraddr()
    A(f"  global_load_dword v{vChk}, v{T2}, s[22:23] sc1\n  s_add_u32 s55, s55, 3\n  s_branch {lab('hx')}")
    A(f"{lab('h4')}:")
    if nochk: A(f"  v_mov_b32 v{vChk}, 0")
    A(f"  v_add_u32 v{vArr}, 1, v{vArr}\n  v_max_u32 v{T0}, v{vArr}, v{vChk}\n  v_lshrrev_b32 v{T0}, 4, v{T0}")
    A(f"  ds_write_b32 v{aMisc}, v{T0} offset:{oPART}")
    A(f"{lab('hx')}:\n  s_mov_b64 exec, -1\n  s_branch {lab('v1')}")
    SL, VSr, VZr, VR, PA, B0, B1, U = 16, 24, 28, 32, 64, 72, 76, 48
    def preads(flex):
        A(f"  ds_read_b128 v[{SL}:{SL+3}], v{aP}\n  ds_read_b128 v[{SL+4}:{SL+7}], v{aP} offset:16")
        A(f"  ds_read_b128 v[{VSr}:{VSr+3}], v{aVS} offset:{512 if flex else 0}\n  ds_read_b128 v[{VZr}:{VZr+3}], v{aVS} offset:{576 if flex else 4096}")
    def pprep(flex):
        jit("s59")
        A("  s_waitcnt lgkmcnt(2)")
        if flex:
            A(f"  v_max3_f32 v{T0}, v{SL}, v{SL+1}, v{SL+2}\n  v_max3_f32 v{T0}, v{T0}, v{SL+3}, v{SL+4}")
            A(f"  v_max3_f32 v{T0}, v{T0}, v{SL+5}, v{SL+6}\n  v_max3_f32 v{T0}, v{T0}, v{SL+7}, v{vM}")
            A(f"  v_mov_b32 v{T1}, v{T0}\n  s_nop 1\n  v_permlane32_swap_b32 v{T0}, v{T1}\n  s_nop 0\n  v_max_f32 v{T0}, v{T0}, v{T1}")
            A(f"  v_mov_b32 v{T1}, v{T0}\n  s_nop 1\n  v_permlane16_swap_b32 v{T0}, v{T1}\n  s_nop 0\n  v_max_f32 v{T0}, v{T0}, v{T1}")
            A(f"  v_sub_f32 v{T1}, v{vM}, v{T0}\n  v_exp_f32 v{T1}, v{T1}\n  v_mov_b32 v{vM}, v{T0}")
        for n in range(8): A(f"  v_sub_f32 v{SL+n}, v{SL+n}, v{vM}")
        if flex:
            A(f"  v_mul_f32 v{vLs}, v{vLs}, v{T1}")
            for qq in range(4): A(f"  v_mov_b32_dpp v{T2}, v{T1} row_newbcast:{4*qq} row_mask:{1<<qq:#x} bank_mask:0xf")
        for n in range(8): A(f"  v_exp_f32 v{SL+n}, v{SL+n}")
        if flex:
            for r in (ACC0, ACC1, ACCZ): A(f"  v_mul_f32 v{r}, v{r}, v{T2}")
        A("  s_waitcnt lgkmcnt(1)")
        for n in range(4): A(f"  v_lshlrev_b32 v{U+2*n}, 16, v{VSr+n}\n  v_and_b32 v{U+2*n+1}, s58, v{VSr+n}")
        for n in range(8): A(f"  v_mul_f32 v{U+n}, v{U+n}, v{SL+n}")
        for n in range(4): A(f"  v_cvt_pk_bf16_f32 v{PA+n}, v{U+2*n}, v{U+2*n+1}")
        for n in range(8): A(f"  v_add_f32 v{vLs}, v{vLs}, v{SL+n}")
        A("  s_waitcnt lgkmcnt(0)")
        A(f"  v_mfma_f32_16x16x32_bf16 v[{ACCZ}:{ACCZ+3}], v[{PA}:{PA+3}], v[{VZr}:{VZr+3}], v[{ACCZ}:{ACCZ+3}]")
    def vpart(pre):
        jit("s59")
        for n in range(8): A(f"  ds_read_b64 v[{VR+2*n}:{VR+2*n+1}], v{aV} offset:{n*512}")
        A(f"  ds_read_b32 v{vLAST}, v{aMisc} offset:{oLAST}")
        if pre: preads(True)
        A(f"  v_add_u32 v{aV}, 0x4000, v{aV}\n  v_and_b32 v{aV}, 0xffff, v{aV}")
        for part in range(4):
            A(f"  s_waitcnt lgkmcnt({(7-2*part if part < 3 else 0) + (4 if pre else 0)})")
            b = VR + 4*part
            for n in range(4): A(f"  v_cvt_f32_i32 v{b+n}, v{b+n}")
            A(f"  v_cvt_pk_bf16_f32 v{B0+part}, v{b}, v{b+2}\n  v_cvt_pk_bf16_f32 v{B1+part}, v{b+1}, v{b+3}")
        A(f"  v_readfirstlane_b32 s53, v{vLAST}")
        A(f"  v_mfma_f32_16x16x32_bf16 v[{ACC0}:{ACC0+3}], v[{PA}:{PA+3}], v[{B0}:{B0+3}], v[{ACC0}:{ACC0+3}]")
        A(f"  v_mfma_f32_16x16x32_bf16 v[{ACC1}:{ACC1+3}], v[{PA}:{PA+3}], v[{B1}:{B1+3}], v[{ACC1}:{ACC1+3}]")
    A(f"  ; ---- phase V\n{lab('v0')}:")
    preads(False)
    A(f"  v_add_u32 v{aP}, 0x200, v{aP}\n  v_add_u32 v{aVS}, 64, v{aVS}")
    pprep(False)
    A(f"  s_cmp_eq_u32 s59, s60\n  s_cbranch_scc1 {lab('v1')}\n  s_barrier")
    if stamp: tl(101, "  s_sub_u32 m0, s59, s60")
    A(f"  s_cmp_eq_u32 s59, s55\n  s_cbranch_scc1 {lab('hook')}\n{lab('v1')}:")
    vpart(False)
    A(f"  s_add_u32 s59, s59, 1\n  s_cmp_lt_u32 s59, s61\n  s_cbranch_scc1 {lab('v0')}")
    A(f"  s_cmp_lt_u32 s53, s59\n  s_cbranch_scc1 {lab('vend')}")
    A(f"  v_subrev_u32 v{aS}, {LOG + 64*512 - AUX}, v{aP}\n  v_subrev_u32 v{aZ}, {VS + 64*64 - AUX}, v{aVS}")
    A(f"  s_and_b32 s54, s59, 3\n  s_lshl_b32 s54, s54, 10\n  v_add_u32 v{aP}, s54, v{aS}\n  v_add_u32 v{aVS}, s54, v{aZ}")
    preads(True)
    A(f"{lab('vy')}:")
    pprep(True)
    A(f"  s_add_u32 s59, s59, 1\n  s_and_b32 s54, s59, 3\n  s_lshl_b32 s54, s54, 10\n  v_add_u32 v{aP}, s54, v{aS}\n  v_add_u32 v{aVS}, s54, v{aZ}\n  s_barrier")
    vpart(True)
    A(f"  s_cmp_ge_u32 s53, s59\n  s_cbranch_scc1 {lab('vy')}\n  s_waitcnt lgkmcnt(0)")
    A(f"{lab('vend')}:")
    ts = lambda n: A(f"  s_memrealtime s[{76+2*n}:{77+2*n}]") if stamp else None
    if stamp:
        for n in range(76, 92): A(f"  s_mov_b32 s{n}, 0")
    ts(0)
    R = 16
    jit("s59")
    A(f"  ; ---- partial result of this workgroup\n  v_mov_b32 v{T0}, v{vLs}\n  ds_read_b32 v{T3}, v{aMisc} offset:{oPART}\n  s_lshl_b32 s54, s3, 2")
    A(f"  v_permlane32_swap_b32 v{T0}, v{vLs}\n  s_nop 0\n  v_add_f32 v{vLs}, v{T0}, v{vLs}")
    A(f"  v_mov_b32 v{T0}, v{vLs}\n  s_nop 1\n  v_permlane16_swap_b32 v{T0}, v{vLs}")
    A(f"  v_sub_f32 v{R}, v{ACC0}, v{ACCZ}\n  v_sub_f32 v{R+1}, v{ACC1}, v{ACCZ}\n  v_add_f32 v{vLs}, v{T0}, v{vLs}")
    A(f"  v_min_u32 v{R}, -2, v{R}\n  v_min_u32 v{R+1}, -2, v{R+1}")
    A(f"  buffer_store_dwordx2 v[{R}:{R+1}], v{vL8}, s[44:47], s57 offen sc1")
    A(f"  v_min_u32 v{vLs}, -2, v{vLs}\n  v_min_u32 v{vM}, -2, v{vM}\n  s_nop 1")
    for qq in range(4): A(f"  v_mov_b32_dpp v{R+2}, v{vM} row_newbcast:{4*qq} row_mask:{1<<qq:#x} bank_mask:0xf")
    for qq in range(4): A(f"  v_mov_b32_dpp v{R+3}, v{vLs} row_newbcast:{4*qq} row_mask:{1<<qq:#x} bank_mask:0xf")
    mlstore(R + 2)
    ts(1)
    A(f"  s_cmp_lg_u32 s54, s51\n  s_cbranch_scc1 {lab('fin')}")
    A(f"  v_add_u32 v4, 0x1000, v{vL8}\n  v_lshl_add_u32 v5, v{vI}, 5, v{vML}")
    A("  s_mov_b32 s28, s18\n  s_mov_b32 s29, s19\n  s_mov_b32 s30, 0x4000\n  s_mov_b32 s31, 0x20000")
    A(f"  v_lshlrev_b32 v8, 2, v{vI}\n  v_lshl_add_u32 v8, v{vQ}, 8, v8")
    A(f"  s_lshl_b32 s57, s3, 6\n  s_add_u32 s57, s57, s52\n  s_mov_b32 s55, {spin}")
    A(f"  s_waitcnt lgkmcnt(0)\n  v_readfirstlane_b32 s53, v{T3}\n  s_cmp_lg_u32 s53, 0\n  s_cbranch_scc1 {lab('poll')}")
    arraddr()
    A(f"{lab('arr')}:                                   ; not yet known that all granules were marked: wait for the count")
    A(f"  global_load_dword v10, v{T2}, s[22:23] sc1\n  s_sub_u32 s55, s55, 1\n  s_waitcnt vmcnt(0)")
    A(f"  s_cbranch_scc1 {lab('fin')}\n  v_readfirstlane_b32 s53, v10\n  s_cmp_lt_u32 s53, 16\n  s_cbranch_scc1 {lab('arr')}")
    C = 20
    dpp = lambda op, d, a, b, c: A(f"  {op}_dpp v{d}, v{a}, v{b} {c} row_mask:0xf bank_mask:0xf")
    A(f"{lab('poll')}:")
    A("  buffer_load_dwordx2 v[16:17], v5, s[44:47], s63 offen sc1      ; lane (split, head): {M, L}")
    for sp in range(16):
        A(f"  buffer_load_dwordx2 v[{C+2*sp}:{C+2*sp+1}], v{vL8 if sp < 8 else 4}, s[44:47], s56 offen offset:{(sp&7)*512} sc1")
    A(f"  s_sub_u32 s55, s55, 1\n  s_cbranch_scc1 {lab('fin')}\n  s_waitcnt vmcnt(16)")
    if early:
        A(f"  v_max_u32 v14, v16, v17\n  v_cmp_eq_u32 vcc, -1, v14\n  v_mov_b32 v9, v16\n  s_nop 3\n  s_cbranch_vccnz {lab('poll')}")
    else:
        A("  v_max_u32 v14, v16, v17\n  v_mov_b32 v9, v16\n  s_nop 1")
    for r in (8, 4, 2, 1):
        dpp("v_max_f32", 9, 9, 9, f"row_ror:{r}"); A("  s_nop 1")
    A("  v_sub_f32 v10, v16, v9\n  v_exp_f32 v10, v10\n  s_nop 0\n  v_mul_f32 v11, v10, v17\n  s_nop 1")
    for r in (8, 4, 2, 1):
        dpp("v_add_f32", 11, 11, 11, f"row_ror:{r}"); A("  s_nop 1")
    A("  v_rcp_f32 v11, v11\n  s_nop 0\n  v_mul_f32 v10, v10, v11\n  s_waitcnt vmcnt(8)")
    A(f"  v_max3_u32 v9, v14, v{C}, v{C+1}\n  s_nop 0")
    dpp("v_mul_f32", 12, 10, C, "row_newbcast:0"); dpp("v_mul_f32", 13, 10, C+1, "row_newbcast:0")
    for sp in range(1, 16):
        if sp == 8: A("  s_waitcnt vmcnt(0)")
        A(f"  v_max3_u32 v9, v9, v{C+2*sp}, v{C+2*sp+1}")
        if sp == 15: A("  v_cmp_eq_u32 vcc, -1, v9")
        dpp("v_fmac_f32", 12, 10, C+2*sp, f"row_newbcast:{sp}"); dpp("v_fmac_f32", 13, 10, C+2*sp+1, f"row_newbcast:{sp}")
    A(f"  v_cvt_pk_bf16_f32 v12, v12, v13\n  s_nop 2\n  s_cbranch_vccnz {lab('poll')}")
    ts(5)
    A("  buffer_store_dword v12, v8, s[28:31], s57 offen")
    ts(6)
    A(f"{lab('fin')}:")
    if stamp:
        A("  s_waitcnt vmcnt(0)\n  s_memrealtime s[62:63]\n  s_getreg_b32 s69, hwreg(HW_REG_XCC_ID)\n  s_waitcnt lgkmcnt(0)")
        A(f"  s_mul_i32 s65, s2, 5\n  s_add_u32 s65, s65, s3\n  s_add_u32 s65, s65, 1\n  s_lshl_b32 s65, s65, 4\n  s_add_u32 s65, s65, {STAMP0}")
        A("  v_mov_b32 v0, s92\n  v_mov_b32 v1, s62\n  v_mov_b32 v2, s69\n  v_mov_b32 v3, s60\n  v_mov_b32 v4, s65")
        A("  s_mov_b64 exec, 1\n  global_store_dwordx4 v4, v[0:3], s[22:23]")
        A(f"  s_cmp_lg_u32 s3, 0\n  s_cbranch_scc1 {lab('end')}\n  s_mov_b64 exec, -1")
        A(f"  v_mbcnt_lo_u32_b32 v4, -1, 0\n  v_mbcnt_hi_u32_b32 v4, -1, v4\n  v_lshlrev_b32 v4, 2, v4\n  s_lshl_b32 s65, s2, 9\n  s_add_u32 s65, s65, {STAMP0+0x200000}\n  v_add_u32 v4, s65, v4")
        A("  global_store_dword v4, v100, s[22:23]\n  global_store_dword v4, v101, s[22:23] offset:256")
        A(f"  s_mov_b64 exec, 1\n  s_lshl_b32 s65, s2, 5\n  s_add_u32 s65, s65, {STAMP0+0x400000}\n  v_mov_b32 v4, s65\n  s_mov_b32 s90, s62")
        for n in range(8): A(f"  v_mov_b32 v{8+n}, s{76+2*n}")
        A("  global_store_dwordx4 v4, v[8:11], s[22:23]\n  global_store_dwordx4 v4, v[12:15], s[22:23] offset:16")
    A(f"{lab('end')}:\n  s_endpgm")
    kd = f""".section .rodata,"a"
.p2align 6
.amdhsa_kernel {kname}
  .amdhsa_next_free_vgpr 116
  .amdhsa_next_free_sgpr {96 if (stamp or jitter) else 72}
  .amdhsa_accum_offset 116
  .amdhsa_group_segment_fixed_size 0
  .amdhsa_kernarg_size 80
  .amdhsa_user_sgpr_count 2
  .amdhsa_user_sgpr_kernarg_segment_ptr 1
  .amdhsa_system_sgpr_workgroup_id_x 1
  .amdhsa_float_denorm_mode_32 3
.end_amdhsa_kernel
"""
    body = "\n".join(L) + "\n" + kd
    if standalone:
        return HEADER + f"; @launch grid=(256,1,1) block=(320,1,1) lds={LDS_BYTES}\n" + DOC + '.amdgcn_target "amdgcn-amd-amdhsa--gfx950"\n.text\n' + body
    return body + ".text\n"

if __name__ == "__main__":
    ap = argparse.ArgumentParser()
    ap.add_argument("-o", default=f"cdna_kernels/{NAME}.s")
    for k, d in (("W", 20), ("WV", 20), ("WXK", 22), ("WX", 22), ("F", 4), ("FV", 4)):
        ap.add_argument("--" + k, type=int, default=d)
    a = ap.parse_args()
    open(a.o, "w").write(gen(W=a.W, WV=a.WV, WXK=a.WXK, WX=a.WX, F=a.F, FV=a.FV))
```

```python
import struct, sys, argparse, os
from gen1 import NAME, HEADER, f32hex, meta

RING, LOG, KS, KZ, VS, VZ, STG = 0, 65536, 98304, 114688, 131072, 135168, 139264
STGS = 1280
AUX = STG
MX = STG + 8 * STGS
MISC = MX + 256
oLAST, oPART, oLASTK, oPARTK, oCIDX = 0, 16, 32, 48, 64
LDS_BYTES = 150016
WS_REC, WS_ML, WS_CNT, WS_AUX, AUXS = 0, 0x80000, 0x90000, 0xb0000, 640
WS_BYTES = 0x200000
STAMP0 = 0x800000
OOB = "0x7ffffff0"

DOC = """; ---------------------------------------------------------------------------------------------
; ---------------------------------------------------------------------------------------------
"""

def gen(W=20, WV=20, WXK=22, WX=22, F=4, FV=4, stamp=0, kname=None, standalone=True, spin=1 << 20, CHK=36, PUBV=1,
        nochk=False, nochkk=False, mapping="same", jitter=0, kh0=2, skip0=True, arrsp=0, clr="k", cstr=4096, gk=None, gv=None, xscale=0, early=True, flagsp=True):
    kname = kname or NAME + "_kernel"
    NS = 64 - F
    NSV = 64 - FV
    assert F % 4 == 0 and FV % 2 == 0 and F <= FV <= F + 4 and WS_AUX + 16 * 16 * FV * AUXS <= WS_BYTES
    assert all(17 <= w <= 32 for w in (W, WV, WXK, WX)) and CHK + 4 <= NSV - 5 and PUBV + 3 < CHK
    L = []
    A = L.append
    tag = "L" + (kname[-12:].strip("_") if not standalone else "")
    lab = lambda s: f"{tag}_{s}"
    njit = [0]
    def jit(reg, other="s2"):
        if not jitter: return
        njit[0] += 1
        A(f"  s_mul_i32 s70, {reg}, {jitter}\n  s_add_u32 s70, s70, {other}\n  s_add_u32 s70, s70, s3\n  s_mul_i32 s70, s70, 0x9e3779b1\n  s_lshr_b32 s70, s70, 29")
        A(f"  s_cmp_lg_u32 s70, {njit[0] & 7}\n  s_cbranch_scc1 {lab(f'j{njit[0]}')}\n  s_sleep {20 + 9*(njit[0] % 5)}\n{lab(f'j{njit[0]}')}:")
    c2 = f32hex((128 ** -0.5) * 1.4426950408889634)

    A(f".globl {kname}\n.p2align 8\n.type {kname},@function\n{kname}:")
    A(f"  s_cmp_ge_u32 s2, 256\n  s_cbranch_scc1 {lab('end')}")
    if stamp: A("  s_memrealtime s[92:93]")
    A("  s_load_dwordx16 s[4:19], s[0:1], 0")
    A("  s_load_dwordx4 s[20:23], s[0:1], 64")
    A("  v_lshrrev_b32 v1, 6, v0")
    A("  v_and_b32 v0, 63, v0                    ; lane")
    A("  v_readfirstlane_b32 s3, v1")
    A("  s_lshr_b32 s50, s2, 4")
    if mapping == "same":
        A("  s_and_b32 s51, s2, 7")
        A("  s_bfe_u32 s52, s2, 0x10003              ; u")
        A("  s_lshl1_add_u32 s51, s51, s52")
    else:
        A("  s_and_b32 s51, s2, 15\n  s_and_b32 s52, s2, 1\n  s_nop 0")
    A(f"  s_cmp_lg_u32 s3, 0\n  s_cbranch_scc1 {lab('cons')}")

    A("  s_setprio 3")
    A("  v_lshrrev_b32 v5, 5, v0\n  v_xor_b32 v1, v0, v5")
    A("  v_lshlrev_b32 v1, 4, v1")
    A("  v_xor_b32 v2, 64, v1\n  v_xor_b32 v3, 0x80, v1\n  v_xor_b32 v4, 0xc0, v1")
    A("  s_lshr_b32 s53, s51, 1\n  s_lshl_b32 s53, s53, 21\n  s_lshl_b32 s52, s52, 15\n  s_add_u32 s53, s53, s52")
    A(f"  s_add_u32 s53, s53, {F//2*65536}")
    A("  s_lshl_b32 s28, s50, 24\n  s_mov_b32 s26, 0x1000000\n  s_mov_b32 s27, 0x20000")
    A("  s_mov_b32 s30, s53\n  s_mov_b32 s34, 0")
    A(f"  s_mov_b32 s31, {8 + ((W - 17) >> 2)}")
    A(f"  s_add_u32 s33, s53, {(NS-2)//2*65536}")
    A("  s_waitcnt lgkmcnt(0)")
    A("  s_add_u32 s24, s6, s28\n  s_addc_u32 s25, s7, 0")
    def ldloop(label, w):
        ib = w - 17
        A(f"{label}:")
        jit("s30")
        A("  s_mov_b32 m0, s34")
        for i in range(4):
            A(f"  s_waitcnt vmcnt({w-1})")
            if i == (ib & 3):
                A(f"  s_sub_u32 s31, s31, 1\n  s_cbranch_scc0 {label}_nb\n  s_barrier\n  s_mov_b32 s31, 3\n{label}_nb:")
            A(f"  buffer_load_dwordx4 v{1+i}, s[24:27], s30 offen offset:{i*1024} nt lds")
        A("  s_add_u32 s30, s30, 0x1000\n  s_add_u32 s34, s34, 0x1000\n  s_and_b32 s34, s34, 0xffff")
        A("  s_and_b32 s35, s30, 0x7000\n  s_cselect_b32 s35, 0, 0x8000\n  s_add_u32 s30, s30, s35")
        A(f"  s_cmp_lt_u32 s30, s33\n  s_cbranch_scc1 {label}")
    def pool(label, isk, w):
        ib = w - 17
        A(f"  v_mov_b32 v8, {MISC}\n  ds_read_b32 v9, v8 offset:{oPARTK if isk else oPART}")
        A(f"  s_mul_i32 s37, s50, {cstr}\n  s_add_u32 s37, s37, {WS_CNT + (2048 if isk else 0)}\n  v_mov_b32 v11, s37")
        gd = gk if isk else gv
        P = 16*(F if isk else FV)
        if gd: A(f"  s_mov_b32 s58, 2\n  s_mov_b32 s54, 1\n  s_mov_b32 s55, 1\n  s_mov_b32 s41, {gd[2]}")
        A("  v_mov_b32 v12, -1\n  v_mov_b32 v13, -1\n  s_add_u32 s36, s40, 2")
        A("  s_waitcnt lgkmcnt(0)\n  v_readfirstlane_b32 s48, v9")
        A(f"{label}:")
        for par in range(2):
            A(f"  s_cmp_lt_u32 s40, s36\n  s_cbranch_scc1 {label}_own{par}")
            if gd: A(f"  v_readfirstlane_b32 s42, v{12+par}\n  s_add_u32 s41, s41, 1\n  s_cmp_lg_u32 s{54+par}, 0\n  s_cselect_b32 s41, s42, s41")
            else: A(f"  v_readfirstlane_b32 s41, v{12+par}")
            A(f"  s_cmp_ge_u32 s41, {16*(F if isk else FV)}\n  s_cbranch_scc1 {label}_end")
            A("  s_bfe_u32 s42, s41, 0x30001\n  s_lshl_b32 s30, s42, 21\n  s_and_b32 s42, s41, 1\n  s_lshl_b32 s42, s42, 15\n  s_add_u32 s30, s30, s42")
            A("  s_lshr_b32 s42, s41, 5\n  s_lshl_b32 s42, s42, 16\n  s_add_u32 s30, s30, s42\n  s_bfe_u32 s42, s41, 0x10004\n  s_lshl_b32 s42, s42, 14\n  s_add_u32 s30, s30, s42")
            if isk:
                A("  s_lshr_b32 s42, s30, 14\n  s_lshl_b32 s43, s50, 10\n  s_add_u32 s42, s42, s43")
                A("  v_mad_u64_u32 v[18:19], s[56:57], v14, s42, v[16:17]")
                A(f"  s_and_b32 s43, s40, 7\n  s_mul_i32 s43, s43, {STGS}\n  s_add_u32 m0, s43, {STG + 512}\n  s_mov_b64 exec, s[38:39]")
                A(f"  s_waitcnt vmcnt({w-1})\n  global_load_lds_dwordx4 v[18:19], off nt")
            else:
                A(f"  s_mul_i32 s42, s41, {AUXS}\n  s_add_u32 s42, s42, s49")
                A(f"  s_lshr_b32 s43, s34, 4\n  s_add_u32 m0, s43, {AUX}\n  s_mov_b64 exec, s[38:39]")
                A(f"  s_waitcnt vmcnt({w-1})\n  buffer_load_dwordx4 v1, s[44:47], s42 offen sc1 lds")
            A(f"{label}_own{par}:")
            A(f"  s_cmp_eq_u32 s48, 0\n  s_cbranch_scc1 {label}_noc{par}\n  s_mov_b64 exec, 1")
            if isk:
                A(f"  s_and_b32 s43, s40, 7\n  s_lshl2_add_u32 s43, s43, {MISC + oCIDX}\n  v_mov_b32 v8, s43\n  v_mov_b32 v9, s41\n  ds_write_b32 v8, v9")
            if gd:
                A(f"  s_mov_b32 s{54+par}, 0\n  s_sub_u32 s58, s58, 1\n  s_cmp_ge_u32 s58, 2\n  s_cbranch_scc1 {label}_noc{par}")
                A(f"  s_cmp_lt_u32 s41, {gd[0]}\n  s_cselect_b32 s43, {gd[1]}, 1\n  s_mov_b32 s{54+par}, 1\n  s_add_u32 s58, s58, s43\n  v_mov_b32 v10, s43")
            elif gk: A("  v_mov_b32 v10, 1")
            A(f"  s_waitcnt vmcnt({w-1})\n  global_atomic_add v{12+par}, v11, v10, s[22:23] sc0 sc1")
            A(f"{label}_noc{par}:\n  s_mov_b64 exec, -1")
            jit("s40")
            for g in range(4):
                A("  s_mov_b32 m0, s34")
                for i in range(4):
                    if 4*g + i == ib: A(f"  s_waitcnt vmcnt({w-1}) lgkmcnt(0)\n  s_barrier")
                    else: A(f"  s_waitcnt vmcnt({w-1})")
                    A(f"  buffer_load_dwordx4 v{1+i}, s[24:27], s30 offen offset:{i*1024} nt lds")
                A("  s_add_u32 s30, s30, 0x1000\n  s_add_u32 s34, s34, 0x1000")
            A("  s_and_b32 s34, s34, 0xffff\n  s_add_u32 s40, s40, 1")
        A(f"  s_branch {label}\n{label}_end:")
        A(f"  s_sub_u32 s42, s40, 1\n  v_mov_b32 v8, {MISC}\n  v_mov_b32 v9, s42\n  ds_write_b32 v8, v9 offset:{oLASTK if isk else oLAST}")
    ldloop(lab("lk"), W)
    A(f"  s_mov_b32 s40, {NS-2}\n  s_mov_b32 s41, 0")
    A("  s_mov_b32 s38, -1\n  s_mov_b32 s39, 0xff\n  v_mov_b32 v10, 1")
    A(f"  s_mov_b32 s44, s22\n  s_mov_b32 s45, s23\n  s_mov_b32 s46, {WS_BYTES}\n  s_mov_b32 s47, 0x20000")
    A(f"  s_mul_i32 s49, s50, {16*FV*AUXS}\n  s_add_u32 s49, s49, {WS_AUX}")
    A("  v_mov_b32 v16, s14\n  v_mov_b32 v17, s15\n  v_mov_b32 v14, 64")
    for (lo, mlo, mhi, sub, stride) in ((16, "0xffffff0", None, 64, None), (10, "0xffffff00", "0xff", 128, 256), (12, "0xff000000", "0xff", 384, None)):
        A(f"  s_sub_u32 s42, s{lo}, {sub}\n  s_subb_u32 s43, s{lo+1}, 0\n  s_mov_b32 exec_lo, {mlo}\n  s_mov_b32 exec_hi, {mhi or 0}")
        A("  v_mov_b32 v16, s42\n  v_mov_b32 v17, s43")
        if stride: A(f"  v_mov_b32 v14, {stride}")
    A("  s_mov_b64 exec, -1\n  v_lshlrev_b32 v8, 4, v0\n  v_add_co_u32 v16, vcc, v16, v8\n  s_nop 1\n  v_addc_co_u32 v17, vcc, 0, v17, vcc")
    pool(lab("pk"), True, WXK)
    A(f"  s_add_u32 s24, s8, s28\n  s_addc_u32 s25, s9, 0\n  s_add_u32 s30, s53, {(FV-F)//2*65536}")
    for i in range(4): A(f"  v_lshlrev_b32 v{1+i}, 4, v0")
    A(f"  s_mov_b32 s31, {(WV-17) >> 2}\n  s_add_u32 s33, s53, {(NS-2)//2*65536}\n  s_add_u32 s40, s40, {NSV-2}\n  s_waitcnt lgkmcnt(0)")
    ldloop(lab("lv"), WV)
    pool(lab("pv"), False, WX)
    A("  s_waitcnt vmcnt(16) lgkmcnt(0)\n  s_barrier\n  s_waitcnt vmcnt(0)\n  s_barrier")
    if stamp:
        A("  s_memrealtime s[62:63]\n  s_getreg_b32 s69, hwreg(HW_REG_XCC_ID)\n  s_waitcnt lgkmcnt(0)")
        A(f"  s_mul_i32 s65, s2, 5\n  s_lshl_b32 s65, s65, 4\n  s_add_u32 s65, s65, {STAMP0}")
        A("  v_mov_b32 v0, s92\n  v_mov_b32 v1, s62\n  v_mov_b32 v2, s69\n  v_mov_b32 v3, s42\n  v_mov_b32 v4, s65")
        A("  s_mov_b64 exec, 1\n  global_store_dwordx4 v4, v[0:3], s[22:23]")
    A("  s_endpgm")

    vI, vQ, vL16 = 1, 2, 3
    aK = [4, 5, 6, 7]
    aS, aZ, aL, vM = 8, 9, 10, 11
    aV, aP, aVS, vLs = 12, 13, 14, 15
    QF, KR, KSr, KZr, OA, OB, ACC = 16, 32, 48, 56, 64, 72, 80
    T0, T1, T2, T3 = 92, 93, 94, 95
    vLAST, vArr, vChk, aMisc = 96, 97, 98, 99
    vL8, vML = 104, 105
    aKx = [106, 107, 108, 109]
    bS, bZ, bL = 110, 111, 112
    A(f"  ; ======== consumer waves\n{lab('cons')}:")
    A("  s_sub_u32 s3, s3, 1")
    A(f"  v_and_b32 v{vI}, 15, v0\n  v_lshrrev_b32 v{vQ}, 4, v0\n  v_lshlrev_b32 v{vL16}, 4, v0")
    A(f"  v_and_b32 v{T0}, 3, v{vI}")
    A(f"  v_bfe_u32 v{T1}, v{vI}, 2, 1")
    A(f"  v_lshlrev_b32 v{T2}, 4, v{vQ}\n  v_lshl_add_u32 v{bS}, v{T1}, 7, v{T2}\n  v_lshl_add_u32 v{T3}, v{T0}, 8, v{bS}")
    A(f"  v_add_u32 v{aS}, {KS + F*256}, v{bS}")
    A(f"  v_lshrrev_b32 v{T1}, 5, v0\n  v_and_b32 v{aV}, 31, v0\n  v_lshlrev_b32 v{aV}, 4, v{aV}\n  v_lshl_add_u32 v{aV}, v{T1}, 10, v{aV}")
    A(f"  v_lshrrev_b32 v{T1}, 3, v0\n  v_and_b32 v{aP}, 7, v0\n  v_lshlrev_b32 v{aP}, 4, v{aP}\n  v_lshl_add_u32 v{aP}, v{T1}, 8, v{aP}")
    A("  s_lshr_b32 s53, s51, 1\n  s_lshl_b32 s53, s53, 7\n  s_lshl1_add_u32 s53, s52, s53\n  s_lshl_b32 s52, s50, 10\n  s_add_u32 s53, s53, s52")
    A("  s_lshl_b32 s54, s53, 6\n  s_lshl_b32 s53, s53, 8\n  s_lshl_b32 s55, s3, 10\n  s_lshl_b32 s57, s3, 11")
    A("  s_mov_b32 s26, 0x4000\n  s_mov_b32 s27, 0x20000\n  s_mov_b32 s30, 32256\n  s_mov_b32 s31, 0x20000\n  s_mov_b32 s34, 32256\n  s_mov_b32 s35, 0x20000")
    if xscale & 1: A("  s_mov_b32 s30, 0\n  s_mov_b32 s34, 0")
    A("  s_mov_b32 s38, 8064\n  s_mov_b32 s39, 0x20000\n  s_mov_b32 s42, 8064\n  s_mov_b32 s43, 0x20000")
    if xscale & 2: A("  s_mov_b32 s38, 0\n  s_mov_b32 s42, 0")
    A(f"  s_cmp_lt_u32 s3, {F//4 if skip0 else 0}\n  s_cselect_b32 s56, {OOB}, s57")
    A("  s_waitcnt lgkmcnt(0)\n  s_mov_b32 s24, s4\n  s_mov_b32 s25, s5")
    A(f"  buffer_load_dwordx4 v[{KR}:{KR+3}], v{T3}, s[24:27], s52 offen")
    A(f"  buffer_load_dwordx4 v[{KR+4}:{KR+7}], v{T3}, s[24:27], s52 offen offset:64")
    A("  s_add_u32 s28, s10, s53\n  s_addc_u32 s29, s11, 0\n  s_add_u32 s32, s12, s53\n  s_addc_u32 s33, s13, 0")
    A("  s_add_u32 s36, s14, s54\n  s_addc_u32 s37, s15, 0\n  s_add_u32 s40, s16, s54\n  s_addc_u32 s41, s17, 0")
    for k in range(4):
        if k: A(f"  s_add_u32 s56, s57, {k*8192}")
        A(f"  s_add_u32 m0, s55, {KS + k*4096}\n  s_nop 0\n  buffer_load_dwordx4 v{aV}, s[28:31], s56 offen nt lds")
        A(f"  s_add_u32 m0, s55, {KZ + k*4096}\n  s_nop 0\n  buffer_load_dwordx4 v{aV}, s[32:35], s56 offen nt lds")
    A(f"  s_add_u32 m0, s55, {VS}\n  s_nop 0\n  buffer_load_dwordx4 v{aP}, s[36:39], s57 offen nt lds")
    A(f"  s_add_u32 m0, s55, {VZ}\n  s_nop 0\n  buffer_load_dwordx4 v{aP}, s[40:43], s57 offen nt lds")
    A(f"  s_mov_b32 s44, s22\n  s_mov_b32 s45, s23\n  s_mov_b32 s46, {WS_BYTES}\n  s_mov_b32 s47, 0x20000")
    A(f"  s_mul_i32 s53, s50, {cstr}\n  s_add_u32 s53, s53, {WS_CNT}\n  s_add_u32 s54, s51, s3\n  s_cmp_eq_u32 s54, 0\n  s_cselect_b32 s53, s53, {OOB}")
    A(f"  v_mov_b32 v{T1}, 0\n  s_mov_b64 exec, 1")
    A(f"  buffer_store_dword v{T1}, v{vL16}, s[44:47], s53 offen sc1\n  buffer_store_dword v{T1}, v{vL16}, s[44:47], s53 offen offset:1024 sc1\n  buffer_store_dword v{T1}, v{vL16}, s[44:47], s53 offen offset:2048 sc1\n  s_mov_b64 exec, -1")
    nvm = 15
    A("  s_lshl2_add_u32 s56, s50, s3\n  s_lshl_b32 s56, s56, 13")
    A("  s_lshl_b32 s57, s51, 9\n  s_add_u32 s57, s57, s56")
    A(f"  s_lshl_b32 s63, s50, 9\n  s_add_u32 s63, s63, {WS_ML}")
    A(f"  v_lshlrev_b32 v{vL8}, 3, v0\n  v_lshlrev_b32 v{vML}, 3, v{vQ}")
    A(f"  v_and_b32 v{T1}, 7, v{vI}\n  v_lshrrev_b32 v{T2}, 3, v{vI}")
    A(f"  v_lshlrev_b32 v{bZ}, 4, v{vQ}\n  v_lshl_add_u32 v{bZ}, v{T2}, 7, v{bZ}\n  v_add_u32 v{aZ}, {KZ + F*256}, v{bZ}")
    A(f"  v_lshlrev_b32 v{T2}, 4, v{T2}\n  v_lshl_add_u32 v{T2}, v{vQ}, 1, v{T2}")
    A(f"  v_and_b32 v{T3}, 6, v{T1}\n  v_lshlrev_b32 v{T3}, 1, v{T3}\n  v_and_or_b32 v{T3}, v{T1}, 1, v{T3}")
    A(f"  v_xor_b32 v{T2}, v{T2}, v{T3}\n  v_lshlrev_b32 v{T2}, 4, v{T2}\n  v_lshl_add_u32 v{T2}, v{T1}, 9, v{T2}")
    A(f"  s_lshl_b32 s58, s3, 12\n  v_add_u32 v{aK[0]}, s58, v{T2}")
    A(f"  v_xor_b32 v{aK[1]}, 16, v{aK[0]}\n  v_xor_b32 v{aK[2]}, 0x80, v{aK[0]}\n  v_xor_b32 v{aK[3]}, 0x90, v{aK[0]}")
    A(f"  v_and_b32 v{T1}, 1, v{vQ}\n  v_lshrrev_b32 v{T2}, 1, v{vQ}\n  v_lshl_add_u32 v{T1}, v{T1}, 2, v{T2}\n  v_lshlrev_b32 v{T1}, 2, v{T1}")
    A(f"  v_lshl_add_u32 v{T1}, v{T0}, 7, v{T1}\n  s_lshl_b32 s58, s3, 5\n  v_add_u32 v{bL}, s58, v{T1}\n  v_add_u32 v{aL}, {LOG + F*512}, v{bL}")
    A(f"  v_lshlrev_b32 v{T1}, 3, v{vI}\n  v_lshl_add_u32 v{T1}, v{vQ}, 12, v{T1}\n  s_lshl_b32 s58, s3, 7\n  v_add_u32 v{aV}, s58, v{T1}")
    A(f"  v_lshrrev_b32 v{T1}, 2, v{vI}\n  v_lshlrev_b32 v{T2}, 5, v{vQ}\n  v_lshl_add_u32 v{T2}, v{T1}, 7, v{T2}\n  v_add_u32 v{aP}, {LOG + FV*512}, v{T2}")
    A(f"  v_lshlrev_b32 v{aVS}, 4, v{vQ}\n  v_add_u32 v{aVS}, {VS + FV*64}, v{aVS}")
    A(f"  v_mov_b32 v{vM}, 0xff800000\n  v_mov_b32 v{vLs}, 0")
    A(f"  v_mov_b32 v{aMisc}, {MISC}\n  v_mov_b32 v{T0}, -1\n  ds_write_b32 v{aMisc}, v{T0} offset:{oLAST}\n  ds_write_b32 v{aMisc}, v{T0} offset:{oLASTK}")
    A("  s_mov_b32 s48, 0x000f000f\n  s_mov_b32 s49, 0x000f000f\n  s_mov_b32 s58, 0xffff0000\n  s_mov_b32 s38, -1\n  s_mov_b32 s39, 0xff")
    A(f"  s_waitcnt vmcnt({nvm-2})")
    for n in range(8):
        A(f"  v_lshlrev_b32 v{QF+2*n}, 16, v{KR+n}\n  v_and_b32 v{QF+2*n+1}, s58, v{KR+n}")
    for n in range(16):
        A(f"  v_mul_f32 v{QF+n}, {c2}, v{QF+n}        ; q * 128^-0.5 * log2(e)" if n == 0 else f"  v_mul_f32 v{QF+n}, {c2}, v{QF+n}")
    if flagsp: A("  s_lshr_b32 s71, s51, 1\n  s_add_u32 s71, s71, 4")
    else: A("  s_mov_b32 s71, 8")
    A(f"  s_mov_b32 s59, 0\n  s_cmp_eq_u32 s51, 0\n  s_cselect_b32 s55, {kh0}, s71\n  s_cmp_eq_u32 s3, 0\n  s_cselect_b32 s55, s55, 99")
    A(f"  s_waitcnt vmcnt({nvm-4})")
    def tl(vr, expr):
        A(f"  s_waitcnt lgkmcnt(0)\n  s_memrealtime s[66:67]\n{expr}\n  s_waitcnt lgkmcnt(0)\n  v_writelane_b32 v{vr}, s66, m0")
    def kstep(ak, ok, oz, ol, pooled):
        e = 1 if pooled else 0
        jit("s59")
        A(f"  ds_read_b128 v[{KSr}:{KSr+3}], v{aS} offset:{oz}\n  ds_read_b128 v[{KSr+4}:{KSr+7}], v{aS} offset:{oz+64}")
        for n in range(4): A(f"  ds_read_b128 v[{KR+4*n}:{KR+4*n+3}], v{ak[n]} offset:{ok}")
        A(f"  ds_read_b128 v[{KZr}:{KZr+3}], v{aZ} offset:{oz}\n  ds_read_b128 v[{KZr+4}:{KZr+7}], v{aZ} offset:{oz+64}")
        if pooled: A(f"  ds_read_b32 v{vLAST}, v{aMisc} offset:{oLASTK}")
        for m in range(2):
            A(f"  s_waitcnt lgkmcnt({7-m+e})")
            for n in range(4):
                r = KSr + 4*m + n
                A(f"  v_lshlrev_b32 v{T0}, 16, v{r}\n  v_and_b32 v{T1}, s58, v{r}")
                A(f"  v_mul_f32 v{T0}, v{T0}, v{QF+8*m+2*n}\n  v_mul_f32 v{T1}, v{T1}, v{QF+8*m+2*n+1}")
                A(f"  v_cvt_pk_bf16_f32 v{OB+4*m+n}, v{T0}, v{T1}")
        for m in range(2):
            A(f"  s_waitcnt lgkmcnt({4-2*m+e})")
            for n in range(8): A(f"  v_cvt_f32_i32 v{KR+8*m+n}, v{KR+8*m+n}")
            for n in range(4): A(f"  v_cvt_pk_bf16_f32 v{OA+4*m+n}, v{KR+8*m+2*n}, v{KR+8*m+2*n+1}")
        A("  s_waitcnt lgkmcnt(0)")
        for n in range(4): A(f"  v_xor_b32 v{KZr+n}, 0x80008000, v{KZr+n}")
        A(f"  v_mfma_f32_16x16x32_bf16 v[{ACC}:{ACC+3}], v[{OA}:{OA+3}], v[{OB}:{OB+3}], 0")
        for n in range(4, 8): A(f"  v_xor_b32 v{KZr+n}, 0x80008000, v{KZr+n}")
        A(f"  v_mfma_f32_16x16x32_bf16 v[{ACC}:{ACC+3}], v[{OA+4}:{OA+7}], v[{OB+4}:{OB+7}], v[{ACC}:{ACC+3}]")
        A(f"  v_mfma_f32_16x16x32_bf16 v[{ACC}:{ACC+3}], v[{KZr}:{KZr+3}], v[{OB}:{OB+3}], v[{ACC}:{ACC+3}]")
        A(f"  v_mfma_f32_16x16x32_bf16 v[{ACC}:{ACC+3}], v[{KZr+4}:{KZr+7}], v[{OB+4}:{OB+7}], v[{ACC}:{ACC+3}]")
        if pooled: A(f"  v_readfirstlane_b32 s61, v{vLAST}\n  s_nop 6")
        else: A("  s_nop 7")
        A(f"  v_permlane32_swap_b32 v{ACC}, v{ACC+1}\n  v_permlane32_swap_b32 v{ACC+2}, v{ACC+3}\n  s_nop 1")
        A(f"  v_add_f32_dpp v{T0}, v{ACC+1}, v{ACC} row_shl:4 row_mask:0xf bank_mask:0xf bound_ctrl:1")
        A(f"  v_add_f32_dpp v{T1}, v{ACC+3}, v{ACC+2} row_shl:4 row_mask:0xf bank_mask:0xf bound_ctrl:1")
        A(f"  s_mov_b64 exec, s[48:49]\n  ds_write_b32 v{aL}, v{T0} offset:{ol}\n  ds_write_b32 v{aL}, v{T1} offset:{ol+8}")
        if not pooled: A(f"  v_max3_f32 v{vM}, v{vM}, v{T0}, v{T1}")
        A("  s_mov_b64 exec, -1")
        jit("s59")
    def publish(r, skip):
        A(f"  s_and_b32 s54, s53, 3\n  s_cmp_lg_u32 s54, s3\n  s_cbranch_scc1 {skip}\n  s_cmp_lt_u32 s53, {NS}\n  s_cbranch_scc1 {skip}")
        A(f"  s_and_b32 s53, s53, 7\n  s_lshl2_add_u32 s54, s53, {MISC + oCIDX}\n  s_mul_i32 s53, s53, {STGS}\n  s_add_u32 s53, s53, {STG}")
        A(f"  v_mov_b32 v{T3}, s54\n  v_add_u32 v{T2}, s53, v{vL16}\n  s_mov_b32 exec_hi, 0xff")
        A(f"  ds_read_b32 v{T3}, v{T3}\n  ds_read_b128 v[{r}:{r+3}], v{T2}\n  s_mul_i32 s54, s50, {16*FV}\n  s_waitcnt lgkmcnt(0)")
        A(f"  v_readfirstlane_b32 s53, v{T3}\n  s_add_u32 s53, s53, s54\n  s_mul_i32 s53, s53, {AUXS}\n  s_add_u32 s53, s53, {WS_AUX}")
        A(f"  buffer_store_dwordx4 v[{r}:{r+3}], v{vL16}, s[44:47], s53 offen sc1\n  s_mov_b64 exec, -1")
    dbgaddr = lambda: A(f"  s_lshl_b32 s53, s50, 4\n  v_mov_b32 v{T2}, s53")
    arraddr = lambda: A(f"  s_mul_i32 s53, s50, {cstr}\n  s_add_u32 s53, s53, {WS_CNT + 1024}\n  v_mov_b32 v{T2}, s53")
    def mlstore(r):
        A(f"  s_lshl_b32 s53, s51, 5\n  s_add_u32 s53, s53, s63\n  s_cmp_eq_u32 s3, 0\n  s_cselect_b32 s53, s53, {OOB}")
        A("  s_mov_b32 exec_lo, 0x00010001\n  s_mov_b32 exec_hi, 0x00010001")
        A(f"  buffer_store_dwordx2 v[{r}:{r+1}], v{vML}, s[44:47], s53 offen sc1\n  s_mov_b64 exec, -1")
    def clear(r):
        A(f"  v_mov_b32 v{r}, -1\n  v_mov_b32 v{r+1}, -1")
        A(f"  buffer_store_dwordx2 v[{r}:{r+1}], v{vL8}, s[44:47], s57 offen sc1")
        mlstore(r)
    A(f"  ; ---- phase K\n{lab('k')}:")
    for k in range(4):
        if k == 3: A("  s_waitcnt vmcnt(0)")
        A("  s_barrier")
        if stamp: tl(100, f"  s_lshl2_add_u32 m0, s59, {k}")
        kstep(aK, k*16384, k*256, k*512, False)
    A(f"  v_add_u32 v{aS}, 0x400, v{aS}\n  v_add_u32 v{aZ}, 0x400, v{aZ}\n  v_add_u32 v{aL}, 0x800, v{aL}")
    A(f"  s_cmp_eq_u32 s59, s55\n  s_cbranch_scc1 {lab('khook')}\n{lab('kn')}:")
    A(f"  s_add_u32 s59, s59, 1\n  s_cmp_lt_u32 s59, {NS//4}\n  s_cbranch_scc1 {lab('k')}")
    if clr == "k": clear(OB)
    A(f"  ds_read_b32 v{vLAST}, v{aMisc} offset:{oLASTK}\n  s_mov_b32 s59, {NS}\n  s_waitcnt lgkmcnt(0)\n  v_readfirstlane_b32 s61, v{vLAST}")
    A(f"{lab('kx')}:\n  s_cmp_lt_u32 s61, s59\n  s_cbranch_scc1 {lab('kdone')}")
    A("  s_and_b32 s53, s59, 3\n  s_lshl_b32 s53, s53, 14")
    for n in range(4): A(f"  v_add_u32 v{aKx[n]}, s53, v{aK[n]}")
    A(f"  s_and_b32 s53, s59, 7\n  s_mul_i32 s53, s53, {STGS}\n  s_add_u32 s53, s53, {STG}")
    A(f"  v_add_u32 v{aL}, s53, v{bL}\n  s_add_u32 s54, s53, 640\n  v_add_u32 v{aS}, s54, v{bS}\n  s_add_u32 s54, s53, 896\n  v_add_u32 v{aZ}, s54, v{bZ}")
    A("  s_barrier\n  s_sub_u32 s53, s59, 2")
    publish(OA, lab("kxp"))
    A(f"{lab('kxp')}:")
    kstep(aKx, 0, 0, 0, True)
    A(f"  s_add_u32 s59, s59, 1\n  s_branch {lab('kx')}")
    A(f"{lab('khook')}:")
    dbgaddr()
    A(f"  v_mov_b32 v{T3}, 1\n  s_mov_b64 exec, 1\n  s_cmp_lg_u32 s59, {kh0}\n  s_cbranch_scc1 {lab('kh1')}")
    A(f"  s_mov_b32 s55, s71")
    A(f"  global_store_dword v{T2}, v{T3}, s[20:21] sc1\n  s_branch {lab('khx')}")
    A(f"{lab('kh1')}:\n  s_cmp_lg_u32 s59, s71\n  s_cbranch_scc1 {lab('kh2')}")
    A(f"  global_load_dword v{vChk}, v{T2}, s[20:21] sc1\n  s_add_u32 s55, s71, 1\n  s_branch {lab('khx')}")
    A(f"{lab('kh2')}:")
    if nochkk: A(f"  v_mov_b32 v{vChk}, 0")
    A(f"  s_cmp_eq_u32 s51, 0\n  s_cselect_b32 s53, 1, 0\n  v_or_b32 v{T3}, s53, v{vChk}\n  ds_write_b32 v{aMisc}, v{T3} offset:{oPARTK}\n  v_readfirstlane_b32 s64, v{T3}")
    A(f"{lab('khx')}:\n  s_mov_b64 exec, -1\n  s_branch {lab('kn')}")
    ACC0, ACC1, ACCZ = 80, 84, 88
    A(f"{lab('kdone')}:")
    if clr == "kd": clear(OB)
    A(f"  v_and_b32 v{T0}, 3, v{vI}\n  v_lshlrev_b32 v{T1}, 2, v{vQ}\n  v_lshl_add_u32 v{T0}, v{T0}, 6, v{T1}")
    A(f"  s_lshl_b32 s53, s3, 4\n  s_add_u32 s53, s53, {MX}\n  v_add_u32 v{T0}, s53, v{T0}")
    A(f"  s_mov_b64 exec, s[48:49]\n  ds_write_b32 v{T0}, v{vM}\n  s_mov_b64 exec, -1")
    A(f"  v_lshrrev_b32 v{T1}, 2, v{vI}\n  v_lshlrev_b32 v{T1}, 6, v{T1}\n  v_add_u32 v{T1}, {MX}, v{T1}")
    for n in range(12): A(f"  v_mov_b32 v{ACC0+n}, 0")
    A(f"  s_mov_b32 s60, s59\n  s_add_u32 s61, s59, {NSV}\n  s_add_u32 s55, s59, {PUBV}\n  s_mov_b32 s62, 0")
    A(f"  s_and_b32 s53, s59, 3\n  s_lshl_b32 s53, s53, 14\n  v_add_u32 v{aV}, s53, v{aV}")
    A("  s_waitcnt lgkmcnt(0)\n  s_barrier")
    if stamp: tl(101, "  s_mov_b32 m0, 0")
    for n in range(4): A(f"  ds_read_b128 v[{KR+4*n}:{KR+4*n+3}], v{T1} offset:{16*n}")
    A("  s_waitcnt lgkmcnt(0)")
    A(f"  v_max3_f32 v{vM}, v{KR}, v{KR+1}, v{KR+2}")
    for n in range(3, 15, 2): A(f"  v_max3_f32 v{vM}, v{vM}, v{KR+n}, v{KR+n+1}")
    A(f"  v_max_f32 v{vM}, v{vM}, v{KR+15}\n  s_branch {lab('v0')}")
    A(f"{lab('hook')}:")
    A(f"  s_add_u32 s62, s62, 1\n  s_cmp_lg_u32 s62, 1\n  s_cbranch_scc1 {lab('h1')}")
    A("  s_sub_u32 s53, s60, 1\n  s_sub_u32 s54, s53, s3\n  s_and_b32 s54, s54, 3\n  s_sub_u32 s53, s53, s54")
    A(f"  s_cmp_ge_u32 s54, 2\n  s_cbranch_scc1 {lab('hp')}")
    publish(KZr, lab("hp"))
    A(f"{lab('hp')}:")
    if FV > F:
        A(f"  s_cmp_ge_u32 s3, {FV-F}\n  s_cbranch_scc1 {lab('hq')}")
        A(f"  s_lshl_b32 s54, s3, 9\n  s_add_u32 s54, s54, {LOG + F*512}\n  v_add_u32 v{T2}, s54, v{vL16}\n  s_lshl_b32 s53, s3, 6")
        A(f"  s_add_u32 s54, s53, {VS + F*64 - 512}\n  s_mov_b32 exec_lo, 0\n  s_mov_b32 exec_hi, 0xf\n  v_add_u32 v{T2}, s54, v{vL16}")
        A(f"  s_add_u32 s54, s53, {VZ + F*64 - 576}\n  s_mov_b32 exec_hi, 0xf0\n  v_add_u32 v{T2}, s54, v{vL16}\n  s_mov_b64 exec, s[38:39]")
        A(f"  ds_read_b128 v[{KR}:{KR+3}], v{T2}")
        A(f"  s_mul_i32 s53, s50, {16*FV}\n  s_add_u32 s54, s3, {F}\n  s_lshl4_add_u32 s53, s54, s53\n  s_add_u32 s53, s53, s51\n  s_mul_i32 s53, s53, {AUXS}\n  s_add_u32 s53, s53, {WS_AUX}")
        A(f"  s_waitcnt lgkmcnt(0)\n  buffer_store_dwordx4 v[{KR}:{KR+3}], v{vL16}, s[44:47], s53 offen sc1\n  s_mov_b64 exec, -1\n{lab('hq')}:")
    if clr == "v": clear(KZr + 4)
    A(f"  s_add_u32 s55, s55, 2\n  s_branch {lab('v1')}")
    A(f"{lab('h1')}:\n  s_cmp_lg_u32 s62, 2\n  s_cbranch_scc1 {lab('h2')}")
    A("  s_waitcnt vmcnt(0)")
    if arrsp: A(f"  s_mul_i32 s53, s51, {arrsp}\n  s_add_u32 s55, s55, s53")
    assert PUBV + 3 + 15*arrsp + 6 < CHK
    A(f"  s_add_u32 s55, s55, 1\n  s_cmp_eq_u32 s3, 0\n  s_cselect_b32 s55, s55, 0\n  s_branch {lab('v1')}")
    A(f"{lab('h2')}:\n  s_mov_b64 exec, 1\n  s_cmp_lg_u32 s62, 3\n  s_cbranch_scc1 {lab('h3')}")
    A(f"  s_cmp_lg_u32 s64, 0\n  s_cbranch_scc1 {lab('h2a')}\n  s_mov_b32 s55, {spin}")
    dbgaddr()
    A(f"{lab('h2w')}:                                   ; counters not yet known to be zeroed: wait for the word")
    A(f"  global_load_dword v{vChk}, v{T2}, s[20:21] sc1\n  s_sub_u32 s55, s55, 1\n  s_waitcnt vmcnt(0)\n  s_cbranch_scc1 {lab('h2a')}")
    A(f"  v_readfirstlane_b32 s64, v{vChk}\n  s_cmp_eq_u32 s64, 0\n  s_cbranch_scc1 {lab('h2w')}")
    A(f"{lab('h2a')}:")
    arraddr()
    A(f"  v_mov_b32 v{T1}, 1\n  global_atomic_add v{vArr}, v{T2}, v{T1}, s[22:23] sc0 sc1")
    A(f"  s_add_u32 s55, s60, {CHK}\n  s_branch {lab('hx')}")
    A(f"{lab('h3')}:\n  s_waitcnt vmcnt(0)\n  s_cmp_lg_u32 s62, 4\n  s_cbranch_scc1 {lab('h4')}")
    arraddr()
    A(f"  global_load_dword v{vChk}, v{T2}, s[22:23] sc1\n  s_add_u32 s55, s55, 3\n  s_branch {lab('hx')}")
    A(f"{lab('h4')}:")
    if nochk: A(f"  v_mov_b32 v{vChk}, 0")
    A(f"  v_add_u32 v{vArr}, 1, v{vArr}\n  v_max_u32 v{T0}, v{vArr}, v{vChk}\n  v_lshrrev_b32 v{T0}, 4, v{T0}")
    A(f"  ds_write_b32 v{aMisc}, v{T0} offset:{oPART}")
    A(f"{lab('hx')}:\n  s_mov_b64 exec, -1\n  s_branch {lab('v1')}")
    SL, VSr, VZr, VR, PA, B0, B1, U = 16, 24, 28, 32, 64, 72, 76, 48
    def preads(flex):
        A(f"  ds_read_b128 v[{SL}:{SL+3}], v{aP}\n  ds_read_b128 v[{SL+4}:{SL+7}], v{aP} offset:16")
        A(f"  ds_read_b128 v[{VSr}:{VSr+3}], v{aVS} offset:{512 if flex else 0}\n  ds_read_b128 v[{VZr}:{VZr+3}], v{aVS} offset:{576 if flex else 4096}")
    def pprep(flex):
        jit("s59")
        A("  s_waitcnt lgkmcnt(2)")
        if flex:
            A(f"  v_max3_f32 v{T0}, v{SL}, v{SL+1}, v{SL+2}\n  v_max3_f32 v{T0}, v{T0}, v{SL+3}, v{SL+4}")
            A(f"  v_max3_f32 v{T0}, v{T0}, v{SL+5}, v{SL+6}\n  v_max3_f32 v{T0}, v{T0}, v{SL+7}, v{vM}")
            A(f"  v_mov_b32 v{T1}, v{T0}\n  s_nop 1\n  v_permlane32_swap_b32 v{T0}, v{T1}\n  s_nop 0\n  v_max_f32 v{T0}, v{T0}, v{T1}")
            A(f"  v_mov_b32 v{T1}, v{T0}\n  s_nop 1\n  v_permlane16_swap_b32 v{T0}, v{T1}\n  s_nop 0\n  v_max_f32 v{T0}, v{T0}, v{T1}")
            A(f"  v_sub_f32 v{T1}, v{vM}, v{T0}\n  v_exp_f32 v{T1}, v{T1}\n  v_mov_b32 v{vM}, v{T0}")
        for n in range(8): A(f"  v_sub_f32 v{SL+n}, v{SL+n}, v{vM}")
        if flex:
            A(f"  v_mul_f32 v{vLs}, v{vLs}, v{T1}")
            for qq in range(4): A(f"  v_mov_b32_dpp v{T2}, v{T1} row_newbcast:{4*qq} row_mask:{1<<qq:#x} bank_mask:0xf")
        for n in range(8): A(f"  v_exp_f32 v{SL+n}, v{SL+n}")
        if flex:
            for r in (ACC0, ACC1, ACCZ): A(f"  v_mul_f32 v{r}, v{r}, v{T2}")
        A("  s_waitcnt lgkmcnt(1)")
        for n in range(4): A(f"  v_lshlrev_b32 v{U+2*n}, 16, v{VSr+n}\n  v_and_b32 v{U+2*n+1}, s58, v{VSr+n}")
        for n in range(8): A(f"  v_mul_f32 v{U+n}, v{U+n}, v{SL+n}")
        for n in range(4): A(f"  v_cvt_pk_bf16_f32 v{PA+n}, v{U+2*n}, v{U+2*n+1}")
        for n in range(8): A(f"  v_add_f32 v{vLs}, v{vLs}, v{SL+n}")
        A("  s_waitcnt lgkmcnt(0)")
        A(f"  v_mfma_f32_16x16x32_bf16 v[{ACCZ}:{ACCZ+3}], v[{PA}:{PA+3}], v[{VZr}:{VZr+3}], v[{ACCZ}:{ACCZ+3}]")
    def vpart(pre):
        jit("s59")
        for n in range(8): A(f"  ds_read_b64 v[{VR+2*n}:{VR+2*n+1}], v{aV} offset:{n*512}")
        A(f"  ds_read_b32 v{vLAST}, v{aMisc} offset:{oLAST}")
        if pre: preads(True)
        A(f"  v_add_u32 v{aV}, 0x4000, v{aV}\n  v_and_b32 v{aV}, 0xffff, v{aV}")
        for part in range(4):
            A(f"  s_waitcnt lgkmcnt({(7-2*part if part < 3 else 0) + (4 if pre else 0)})")
            b = VR + 4*part
            for n in range(4): A(f"  v_cvt_f32_i32 v{b+n}, v{b+n}")
            A(f"  v_cvt_pk_bf16_f32 v{B0+part}, v{b}, v{b+2}\n  v_cvt_pk_bf16_f32 v{B1+part}, v{b+1}, v{b+3}")
        A(f"  v_readfirstlane_b32 s53, v{vLAST}")
        A(f"  v_mfma_f32_16x16x32_bf16 v[{ACC0}:{ACC0+3}], v[{PA}:{PA+3}], v[{B0}:{B0+3}], v[{ACC0}:{ACC0+3}]")
        A(f"  v_mfma_f32_16x16x32_bf16 v[{ACC1}:{ACC1+3}], v[{PA}:{PA+3}], v[{B1}:{B1+3}], v[{ACC1}:{ACC1+3}]")
    A(f"  ; ---- phase V\n{lab('v0')}:")
    preads(False)
    A(f"  v_add_u32 v{aP}, 0x200, v{aP}\n  v_add_u32 v{aVS}, 64, v{aVS}")
    pprep(False)
    A(f"  s_cmp_eq_u32 s59, s60\n  s_cbranch_scc1 {lab('v1')}\n  s_barrier")
    if stamp: tl(101, "  s_sub_u32 m0, s59, s60")
    A(f"  s_cmp_eq_u32 s59, s55\n  s_cbranch_scc1 {lab('hook')}\n{lab('v1')}:")
    vpart(False)
    A(f"  s_add_u32 s59, s59, 1\n  s_cmp_lt_u32 s59, s61\n  s_cbranch_scc1 {lab('v0')}")
    A(f"  s_cmp_lt_u32 s53, s59\n  s_cbranch_scc1 {lab('vend')}")
    A(f"  v_subrev_u32 v{aS}, {LOG + 64*512 - AUX}, v{aP}\n  v_subrev_u32 v{aZ}, {VS + 64*64 - AUX}, v{aVS}")
    A(f"  s_and_b32 s54, s59, 3\n  s_lshl_b32 s54, s54, 10\n  v_add_u32 v{aP}, s54, v{aS}\n  v_add_u32 v{aVS}, s54, v{aZ}")
    preads(True)
    A(f"{lab('vy')}:")
    pprep(True)
    A(f"  s_add_u32 s59, s59, 1\n  s_and_b32 s54, s59, 3\n  s_lshl_b32 s54, s54, 10\n  v_add_u32 v{aP}, s54, v{aS}\n  v_add_u32 v{aVS}, s54, v{aZ}\n  s_barrier")
    vpart(True)
    A(f"  s_cmp_ge_u32 s53, s59\n  s_cbranch_scc1 {lab('vy')}\n  s_waitcnt lgkmcnt(0)")
    A(f"{lab('vend')}:")
    ts = lambda n: A(f"  s_memrealtime s[{76+2*n}:{77+2*n}]") if stamp else None
    if stamp:
        for n in range(76, 92): A(f"  s_mov_b32 s{n}, 0")
    ts(0)
    R = 16
    jit("s59")
    A(f"  ; ---- partial result of this workgroup\n  v_mov_b32 v{T0}, v{vLs}\n  ds_read_b32 v{T3}, v{aMisc} offset:{oPART}\n  s_lshl_b32 s54, s3, 2")
    A(f"  v_permlane32_swap_b32 v{T0}, v{vLs}\n  s_nop 0\n  v_add_f32 v{vLs}, v{T0}, v{vLs}")
    A(f"  v_mov_b32 v{T0}, v{vLs}\n  s_nop 1\n  v_permlane16_swap_b32 v{T0}, v{vLs}")
    A(f"  v_sub_f32 v{R}, v{ACC0}, v{ACCZ}\n  v_sub_f32 v{R+1}, v{ACC1}, v{ACCZ}\n  v_add_f32 v{vLs}, v{T0}, v{vLs}")
    A(f"  v_min_u32 v{R}, -2, v{R}\n  v_min_u32 v{R+1}, -2, v{R+1}")
    A(f"  buffer_store_dwordx2 v[{R}:{R+1}], v{vL8}, s[44:47], s57 offen sc1")
    A(f"  v_min_u32 v{vLs}, -2, v{vLs}\n  v_min_u32 v{vM}, -2, v{vM}\n  s_nop 1")
    for qq in range(4): A(f"  v_mov_b32_dpp v{R+2}, v{vM} row_newbcast:{4*qq} row_mask:{1<<qq:#x} bank_mask:0xf")
    for qq in range(4): A(f"  v_mov_b32_dpp v{R+3}, v{vLs} row_newbcast:{4*qq} row_mask:{1<<qq:#x} bank_mask:0xf")
    mlstore(R + 2)
    ts(1)
    A(f"  s_cmp_lg_u32 s54, s51\n  s_cbranch_scc1 {lab('fin')}")
    A(f"  v_add_u32 v4, 0x1000, v{vL8}\n  v_lshl_add_u32 v5, v{vI}, 5, v{vML}")
    A("  s_mov_b32 s28, s18\n  s_mov_b32 s29, s19\n  s_mov_b32 s30, 0x4000\n  s_mov_b32 s31, 0x20000")
    A(f"  v_lshlrev_b32 v8, 2, v{vI}\n  v_lshl_add_u32 v8, v{vQ}, 8, v8")
    A(f"  s_lshl_b32 s57, s3, 6\n  s_add_u32 s57, s57, s52\n  s_mov_b32 s55, {spin}")
    A(f"  s_waitcnt lgkmcnt(0)\n  v_readfirstlane_b32 s53, v{T3}\n  s_cmp_lg_u32 s53, 0\n  s_cbranch_scc1 {lab('poll')}")
    arraddr()
    A(f"{lab('arr')}:                                   ; not yet known that all granules were marked: wait for the count")
    A(f"  global_load_dword v10, v{T2}, s[22:23] sc1\n  s_sub_u32 s55, s55, 1\n  s_waitcnt vmcnt(0)")
    A(f"  s_cbranch_scc1 {lab('fin')}\n  v_readfirstlane_b32 s53, v10\n  s_cmp_lt_u32 s53, 16\n  s_cbranch_scc1 {lab('arr')}")
    C = 20
    dpp = lambda op, d, a, b, c: A(f"  {op}_dpp v{d}, v{a}, v{b} {c} row_mask:0xf bank_mask:0xf")
    A(f"{lab('poll')}:")
    A("  buffer_load_dwordx2 v[16:17], v5, s[44:47], s63 offen sc1      ; lane (split, head): {M, L}")
    for sp in range(16):
        A(f"  buffer_load_dwordx2 v[{C+2*sp}:{C+2*sp+1}], v{vL8 if sp < 8 else 4}, s[44:47], s56 offen offset:{(sp&7)*512} sc1")
    A(f"  s_sub_u32 s55, s55, 1\n  s_cbranch_scc1 {lab('fin')}\n  s_waitcnt vmcnt(16)")
    if early:
        A(f"  v_max_u32 v14, v16, v17\n  v_cmp_eq_u32 vcc, -1, v14\n  v_mov_b32 v9, v16\n  s_nop 3\n  s_cbranch_vccnz {lab('poll')}")
    else:
        A("  v_max_u32 v14, v16, v17\n  v_mov_b32 v9, v16\n  s_nop 1")
    for r in (8, 4, 2, 1):
        dpp("v_max_f32", 9, 9, 9, f"row_ror:{r}"); A("  s_nop 1")
    A("  v_sub_f32 v10, v16, v9\n  v_exp_f32 v10, v10\n  s_nop 0\n  v_mul_f32 v11, v10, v17\n  s_nop 1")
    for r in (8, 4, 2, 1):
        dpp("v_add_f32", 11, 11, 11, f"row_ror:{r}"); A("  s_nop 1")
    A("  v_rcp_f32 v11, v11\n  s_nop 0\n  v_mul_f32 v10, v10, v11\n  s_waitcnt vmcnt(8)")
    A(f"  v_max3_u32 v9, v14, v{C}, v{C+1}\n  s_nop 0")
    dpp("v_mul_f32", 12, 10, C, "row_newbcast:0"); dpp("v_mul_f32", 13, 10, C+1, "row_newbcast:0")
    for sp in range(1, 16):
        if sp == 8: A("  s_waitcnt vmcnt(0)")
        A(f"  v_max3_u32 v9, v9, v{C+2*sp}, v{C+2*sp+1}")
        if sp == 15: A("  v_cmp_eq_u32 vcc, -1, v9")
        dpp("v_fmac_f32", 12, 10, C+2*sp, f"row_newbcast:{sp}"); dpp("v_fmac_f32", 13, 10, C+2*sp+1, f"row_newbcast:{sp}")
    A(f"  v_cvt_pk_bf16_f32 v12, v12, v13\n  s_nop 2\n  s_cbranch_vccnz {lab('poll')}")
    ts(5)
    A("  buffer_store_dword v12, v8, s[28:31], s57 offen")
    ts(6)
    A(f"{lab('fin')}:")
    if stamp:
        A("  s_waitcnt vmcnt(0)\n  s_memrealtime s[62:63]\n  s_getreg_b32 s69, hwreg(HW_REG_XCC_ID)\n  s_waitcnt lgkmcnt(0)")
        A(f"  s_mul_i32 s65, s2, 5\n  s_add_u32 s65, s65, s3\n  s_add_u32 s65, s65, 1\n  s_lshl_b32 s65, s65, 4\n  s_add_u32 s65, s65, {STAMP0}")
        A("  v_mov_b32 v0, s92\n  v_mov_b32 v1, s62\n  v_mov_b32 v2, s69\n  v_mov_b32 v3, s60\n  v_mov_b32 v4, s65")
        A("  s_mov_b64 exec, 1\n  global_store_dwordx4 v4, v[0:3], s[22:23]")
        A(f"  s_cmp_lg_u32 s3, 0\n  s_cbranch_scc1 {lab('end')}\n  s_mov_b64 exec, -1")
        A(f"  v_mbcnt_lo_u32_b32 v4, -1, 0\n  v_mbcnt_hi_u32_b32 v4, -1, v4\n  v_lshlrev_b32 v4, 2, v4\n  s_lshl_b32 s65, s2, 9\n  s_add_u32 s65, s65, {STAMP0+0x200000}\n  v_add_u32 v4, s65, v4")
        A("  global_store_dword v4, v100, s[22:23]\n  global_store_dword v4, v101, s[22:23] offset:256")
        A(f"  s_mov_b64 exec, 1\n  s_lshl_b32 s65, s2, 5\n  s_add_u32 s65, s65, {STAMP0+0x400000}\n  v_mov_b32 v4, s65\n  s_mov_b32 s90, s62")
        for n in range(8): A(f"  v_mov_b32 v{8+n}, s{76+2*n}")
        A("  global_store_dwordx4 v4, v[8:11], s[22:23]\n  global_store_dwordx4 v4, v[12:15], s[22:23] offset:16")
    A(f"{lab('end')}:\n  s_endpgm")
    kd = f""".section .rodata,"a"
.p2align 6
.amdhsa_kernel {kname}
  .amdhsa_next_free_vgpr 116
  .amdhsa_next_free_sgpr {96 if (stamp or jitter) else 72}
  .amdhsa_accum_offset 116
  .amdhsa_group_segment_fixed_size 0
  .amdhsa_kernarg_size 80
  .amdhsa_user_sgpr_count 2
  .amdhsa_user_sgpr_kernarg_segment_ptr 1
  .amdhsa_system_sgpr_workgroup_id_x 1
  .amdhsa_float_denorm_mode_32 3
.end_amdhsa_kernel
"""
    body = "\n".join(L) + "\n" + kd
    if standalone:
        return HEADER + f"; @launch grid=(256,1,1) block=(320,1,1) lds={LDS_BYTES}\n" + DOC + '.amdgcn_target "amdgcn-amd-amdhsa--gfx950"\n.text\n' + body
    return body + ".text\n"

if __name__ == "__main__":
    ap = argparse.ArgumentParser()
    ap.add_argument("-o", default=f"cdna_kernels/{NAME}.s")
    for k, d in (("W", 20), ("WV", 20), ("WXK", 22), ("WX", 22), ("F", 4), ("FV", 4)):
        ap.add_argument("--" + k, type=int, default=d)
    a = ap.parse_args()
    open(a.o, "w").write(gen(W=a.W, WV=a.WV, WXK=a.WXK, WX=a.WX, F=a.F, FV=a.FV))
```

```python
import struct, sys, argparse, os
from gen1 import NAME, HEADER, f32hex, meta

RING, LOG, KS, KZ, VS, VZ, STG = 0, 65536, 98304, 114688, 131072, 135168, 139264
STGS = 1280
AUX = STG
MX = STG + 8 * STGS
MISC = MX + 256
oLAST, oPART, oLASTK, oPARTK, oCIDX = 0, 16, 32, 48, 64
LDS_BYTES = 150016
WS_REC, WS_ML, WS_CNT, WS_AUX, AUXS = 0, 0x80000, 0x90000, 0xb0000, 640
WS_BYTES = 0x200000
STAMP0 = 0x800000
OOB = "0x7ffffff0"

DOC = """; ---------------------------------------------------------------------------------------------
; ---------------------------------------------------------------------------------------------
"""

def gen(W=20, WV=20, WXK=22, WX=22, F=4, FV=4, stamp=0, kname=None, standalone=True, spin=1 << 20, CHK=36, PUBV=1,
        nochk=False, nochkk=False, mapping="same", jitter=0, kh0=1, skip0=True, arrsp=0, clr="k", cstr=4096, gk=None, gv=None, xscale=0, early=True, flagsp=True, cspread=True, light=0, fast=True, hoist=True):
    kname = kname or NAME + "_kernel"
    NS = 64 - F
    NSV = 64 - FV
    assert F % 4 == 0 and FV % 2 == 0 and F <= FV <= F + 4 and WS_AUX + 16 * 16 * FV * AUXS <= WS_BYTES
    assert all(17 <= w <= 32 for w in (W, WV, WXK, WX)) and CHK + 4 <= NSV - 5 and PUBV + 3 < CHK
    L = []
    A = L.append
    tag = "L" + (kname[-12:].strip("_") if not standalone else "")
    lab = lambda s: f"{tag}_{s}"
    njit = [0]
    def jit(reg, other="s2"):
        if not jitter: return
        njit[0] += 1
        A(f"  s_mul_i32 s70, {reg}, {jitter}\n  s_add_u32 s70, s70, {other}\n  s_add_u32 s70, s70, s3\n  s_mul_i32 s70, s70, 0x9e3779b1\n  s_lshr_b32 s70, s70, 29")
        A(f"  s_cmp_lg_u32 s70, {njit[0] & 7}\n  s_cbranch_scc1 {lab(f'j{njit[0]}')}\n  s_sleep {20 + 9*(njit[0] % 5)}\n{lab(f'j{njit[0]}')}:")
    c2 = f32hex((128 ** -0.5) * 1.4426950408889634)

    A(f".globl {kname}\n.p2align 8\n.type {kname},@function\n{kname}:")
    A(f"  s_cmp_ge_u32 s2, 256\n  s_cbranch_scc1 {lab('end')}")
    if stamp: A("  s_memrealtime s[92:93]")
    A("  s_load_dwordx16 s[4:19], s[0:1], 0")
    A("  s_load_dwordx4 s[20:23], s[0:1], 64")
    A("  v_lshrrev_b32 v1, 6, v0")
    A("  v_and_b32 v0, 63, v0                    ; lane")
    A("  v_readfirstlane_b32 s3, v1")
    A("  s_lshr_b32 s50, s2, 4")
    if mapping == "same":
        A("  s_and_b32 s51, s2, 7")
        A("  s_bfe_u32 s52, s2, 0x10003              ; u")
        A("  s_lshl1_add_u32 s51, s51, s52")
    else:
        A("  s_and_b32 s51, s2, 15\n  s_and_b32 s52, s2, 1\n  s_nop 0")
    A(f"  s_cmp_lg_u32 s3, 0\n  s_cbranch_scc1 {lab('cons')}")

    A("  s_setprio 3")
    A("  v_lshrrev_b32 v5, 5, v0\n  v_xor_b32 v1, v0, v5")
    A("  v_lshlrev_b32 v1, 4, v1")
    A("  v_xor_b32 v2, 64, v1\n  v_xor_b32 v3, 0x80, v1\n  v_xor_b32 v4, 0xc0, v1")
    A("  s_lshr_b32 s53, s51, 1\n  s_lshl_b32 s53, s53, 21\n  s_lshl_b32 s52, s52, 15\n  s_add_u32 s53, s53, s52")
    A(f"  s_add_u32 s53, s53, {F//2*65536}")
    A("  s_lshl_b32 s28, s50, 24\n  s_mov_b32 s26, 0x1000000\n  s_mov_b32 s27, 0x20000")
    A("  s_mov_b32 s30, s53\n  s_mov_b32 s34, 0")
    A(f"  s_mov_b32 s31, {8 + ((W - 17) >> 2)}")
    A(f"  s_add_u32 s33, s53, {(NS-2)//2*65536}")
    A("  s_waitcnt lgkmcnt(0)")
    A("  s_add_u32 s24, s6, s28\n  s_addc_u32 s25, s7, 0")
    def ldloop(label, w):
        ib = w - 17
        A(f"{label}:")
        jit("s30")
        A("  s_mov_b32 m0, s34")
        for i in range(4):
            A(f"  s_waitcnt vmcnt({w-1})")
            if i == (ib & 3):
                A(f"  s_sub_u32 s31, s31, 1\n  s_cbranch_scc0 {label}_nb\n  s_barrier\n  s_mov_b32 s31, 3\n{label}_nb:")
            A(f"  buffer_load_dwordx4 v{1+i}, s[24:27], s30 offen offset:{i*1024} nt lds")
        A("  s_add_u32 s30, s30, 0x1000\n  s_add_u32 s34, s34, 0x1000\n  s_and_b32 s34, s34, 0xffff")
        A("  s_and_b32 s35, s30, 0x7000\n  s_cselect_b32 s35, 0, 0x8000\n  s_add_u32 s30, s30, s35")
        A(f"  s_cmp_lt_u32 s30, s33\n  s_cbranch_scc1 {label}")
    def pool(label, isk, w):
        ib = w - 17
        A(f"  v_mov_b32 v8, {MISC}\n  ds_read_b32 v9, v8 offset:{oPARTK if isk else oPART}")
        A(f"  s_mul_i32 s37, s50, {cstr}\n  s_add_u32 s37, s37, {WS_CNT + (2048 if isk else 0)}\n  v_mov_b32 v11, s37")
        gd = gk if isk else gv
        P = 16*(F if isk else FV)
        if gd: A(f"  s_mov_b32 s58, 2\n  s_mov_b32 s54, 1\n  s_mov_b32 s55, 1\n  s_mov_b32 s41, {gd[2]}")
        A("  v_mov_b32 v12, -1\n  v_mov_b32 v13, -1\n  s_add_u32 s36, s40, 2")
        A("  s_waitcnt lgkmcnt(0)\n  v_readfirstlane_b32 s48, v9")
        A(f"{label}:")
        for par in range(2):
            A(f"  s_cmp_lt_u32 s40, s36\n  s_cbranch_scc1 {label}_own{par}")
            if gd: A(f"  v_readfirstlane_b32 s42, v{12+par}\n  s_add_u32 s41, s41, 1\n  s_cmp_lg_u32 s{54+par}, 0\n  s_cselect_b32 s41, s42, s41")
            else: A(f"  v_readfirstlane_b32 s41, v{12+par}")
            A(f"  s_cmp_ge_u32 s41, {16*(F if isk else FV)}\n  s_cbranch_scc1 {label}_end")
            A("  s_bfe_u32 s42, s41, 0x30001\n  s_lshl_b32 s30, s42, 21\n  s_and_b32 s42, s41, 1\n  s_lshl_b32 s42, s42, 15\n  s_add_u32 s30, s30, s42")
            A("  s_lshr_b32 s42, s41, 5\n  s_lshl_b32 s42, s42, 16\n  s_add_u32 s30, s30, s42\n  s_bfe_u32 s42, s41, 0x10004\n  s_lshl_b32 s42, s42, 14\n  s_add_u32 s30, s30, s42")
            if isk:
                A("  s_lshr_b32 s42, s30, 14\n  s_lshl_b32 s43, s50, 10\n  s_add_u32 s42, s42, s43")
                A("  v_mad_u64_u32 v[18:19], s[56:57], v14, s42, v[16:17]")
                A(f"  s_and_b32 s43, s40, 7\n  s_mul_i32 s43, s43, {STGS}\n  s_add_u32 m0, s43, {STG + 512}\n  s_mov_b64 exec, s[38:39]")
                A(f"  s_waitcnt vmcnt({w-1})\n  global_load_lds_dwordx4 v[18:19], off nt")
            else:
                A(f"  s_mul_i32 s42, s41, {AUXS}\n  s_add_u32 s42, s42, s49")
                A(f"  s_lshr_b32 s43, s34, 4\n  s_add_u32 m0, s43, {AUX}\n  s_mov_b64 exec, s[38:39]")
                A(f"  s_waitcnt vmcnt({w-1})\n  buffer_load_dwordx4 v1, s[44:47], s42 offen sc1 lds")
            A(f"{label}_own{par}:")
            A(f"  s_cmp_eq_u32 s48, 0\n  s_cbranch_scc1 {label}_noc{par}\n  s_mov_b64 exec, 1")
            if isk:
                A(f"  s_and_b32 s43, s40, 7\n  s_lshl2_add_u32 s43, s43, {MISC + oCIDX}\n  v_mov_b32 v8, s43\n  v_mov_b32 v9, s41\n  ds_write_b32 v8, v9")
            if gd:
                A(f"  s_mov_b32 s{54+par}, 0\n  s_sub_u32 s58, s58, 1\n  s_cmp_ge_u32 s58, 2\n  s_cbranch_scc1 {label}_noc{par}")
                A(f"  s_cmp_lt_u32 s41, {gd[0]}\n  s_cselect_b32 s43, {gd[1]}, 1\n  s_mov_b32 s{54+par}, 1\n  s_add_u32 s58, s58, s43\n  v_mov_b32 v10, s43")
            elif gk: A("  v_mov_b32 v10, 1")
            A(f"  s_waitcnt vmcnt({w-1})\n  global_atomic_add v{12+par}, v11, v10, s[22:23] sc0 sc1")
            A(f"{label}_noc{par}:\n  s_mov_b64 exec, -1")
            jit("s40")
            for g in range(4):
                A("  s_mov_b32 m0, s34")
                for i in range(4):
                    if 4*g + i == ib: A(f"  s_waitcnt vmcnt({w-1}) lgkmcnt(0)\n  s_barrier")
                    else: A(f"  s_waitcnt vmcnt({w-1})")
                    A(f"  buffer_load_dwordx4 v{1+i}, s[24:27], s30 offen offset:{i*1024} nt lds")
                A("  s_add_u32 s30, s30, 0x1000\n  s_add_u32 s34, s34, 0x1000")
            A("  s_and_b32 s34, s34, 0xffff\n  s_add_u32 s40, s40, 1")
        A(f"  s_branch {label}\n{label}_end:")
        A(f"  s_sub_u32 s42, s40, 1\n  v_mov_b32 v8, {MISC}\n  v_mov_b32 v9, s42\n  ds_write_b32 v8, v9 offset:{oLASTK if isk else oLAST}")
    def setup():
        A(f"  s_mov_b32 s40, {NS-2}\n  s_mov_b32 s41, 0")
        A("  s_mov_b32 s38, -1\n  s_mov_b32 s39, 0xff\n  v_mov_b32 v10, 1")
        A(f"  s_mov_b32 s44, s22\n  s_mov_b32 s45, s23\n  s_mov_b32 s46, {WS_BYTES}\n  s_mov_b32 s47, 0x20000")
        A(f"  s_mul_i32 s49, s50, {16*FV*AUXS}\n  s_add_u32 s49, s49, {WS_AUX}")
        A("  v_mov_b32 v16, s14\n  v_mov_b32 v17, s15\n  v_mov_b32 v14, 64")
        for (lo, mlo, mhi, sub, stride) in ((16, "0xffffff0", None, 64, None), (10, "0xffffff00", "0xff", 128, 256), (12, "0xff000000", "0xff", 384, None)):
            A(f"  s_sub_u32 s42, s{lo}, {sub}\n  s_subb_u32 s43, s{lo+1}, 0\n  s_mov_b32 exec_lo, {mlo}\n  s_mov_b32 exec_hi, {mhi or 0}")
            A("  v_mov_b32 v16, s42\n  v_mov_b32 v17, s43")
            if stride: A(f"  v_mov_b32 v14, {stride}")
        A("  s_mov_b64 exec, -1\n  v_lshlrev_b32 v8, 4, v0\n  v_add_co_u32 v16, vcc, v16, v8\n  s_nop 1\n  v_addc_co_u32 v17, vcc, 0, v17, vcc")
    if hoist:
        A(f"{lab('l0')}:\n  s_mov_b32 m0, s34\n  s_add_u32 s34, s34, 0x1000")
        for i in range(4): A(f"  buffer_load_dwordx4 v{1+i}, s[24:27], s30 offen offset:{i*1024} nt lds")
        A(f"  s_add_u32 s30, s30, 0x1000\n  s_cmp_lt_u32 s34, {((W-1)//4)*4096}\n  s_cbranch_scc1 {lab('l0')}")
        A(f"  s_sub_u32 s31, s31, {(W-1)//4}")
        setup()
        ldloop(lab("lk"), W)
    else:
        ldloop(lab("lk"), W)
        setup()
    pool(lab("pk"), True, WXK)
    A(f"  s_add_u32 s24, s8, s28\n  s_addc_u32 s25, s9, 0\n  s_add_u32 s30, s53, {(FV-F)//2*65536}")
    for i in range(4): A(f"  v_lshlrev_b32 v{1+i}, 4, v0")
    A(f"  s_mov_b32 s31, {(WV-17) >> 2}\n  s_add_u32 s33, s53, {(NS-2)//2*65536}\n  s_add_u32 s40, s40, {NSV-2}\n  s_waitcnt lgkmcnt(0)")
    ldloop(lab("lv"), WV)
    pool(lab("pv"), False, WX)
    A("  s_waitcnt vmcnt(16) lgkmcnt(0)\n  s_barrier\n  s_waitcnt vmcnt(0)\n  s_barrier")
    if stamp:
        A("  s_memrealtime s[62:63]\n  s_getreg_b32 s69, hwreg(HW_REG_XCC_ID)\n  s_waitcnt lgkmcnt(0)")
        A(f"  s_mul_i32 s65, s2, 5\n  s_lshl_b32 s65, s65, 4\n  s_add_u32 s65, s65, {STAMP0}")
        A("  v_mov_b32 v0, s92\n  v_mov_b32 v1, s62\n  v_mov_b32 v2, s69\n  v_mov_b32 v3, s42\n  v_mov_b32 v4, s65")
        A("  s_mov_b64 exec, 1\n  global_store_dwordx4 v4, v[0:3], s[22:23]")
    A("  s_endpgm")

    vI, vQ, vL16 = 1, 2, 3
    aK = [4, 5, 6, 7]
    aS, aZ, aL, vM = 8, 9, 10, 11
    aV, aP, aVS, vLs = 12, 13, 14, 15
    QF, KR, KSr, KZr, OA, OB, ACC = 16, 32, 48, 56, 64, 72, 80
    T0, T1, T2, T3 = 92, 93, 94, 95
    vLAST, vArr, vChk, aMisc = 96, 97, 98, 99
    vL8, vML = 104, 105
    aKx = [106, 107, 108, 109]
    bS, bZ, bL = 110, 111, 112
    A(f"  ; ======== consumer waves\n{lab('cons')}:")
    A("  s_sub_u32 s3, s3, 1")
    A(f"  v_and_b32 v{vI}, 15, v0\n  v_lshrrev_b32 v{vQ}, 4, v0\n  v_lshlrev_b32 v{vL16}, 4, v0")
    A(f"  v_and_b32 v{T0}, 3, v{vI}")
    A(f"  v_bfe_u32 v{T1}, v{vI}, 2, 1")
    A(f"  v_lshlrev_b32 v{T2}, 4, v{vQ}\n  v_lshl_add_u32 v{bS}, v{T1}, 7, v{T2}\n  v_lshl_add_u32 v{T3}, v{T0}, 8, v{bS}")
    A(f"  v_add_u32 v{aS}, {KS + F*256}, v{bS}")
    A(f"  v_lshrrev_b32 v{T1}, 5, v0\n  v_and_b32 v{aV}, 31, v0\n  v_lshlrev_b32 v{aV}, 4, v{aV}\n  v_lshl_add_u32 v{aV}, v{T1}, 10, v{aV}")
    A(f"  v_lshrrev_b32 v{T1}, 3, v0\n  v_and_b32 v{aP}, 7, v0\n  v_lshlrev_b32 v{aP}, 4, v{aP}\n  v_lshl_add_u32 v{aP}, v{T1}, 8, v{aP}")
    A("  s_lshr_b32 s53, s51, 1\n  s_lshl_b32 s53, s53, 7\n  s_lshl1_add_u32 s53, s52, s53\n  s_lshl_b32 s52, s50, 10\n  s_add_u32 s53, s53, s52")
    A("  s_lshl_b32 s54, s53, 6\n  s_lshl_b32 s53, s53, 8\n  s_lshl_b32 s55, s3, 10\n  s_lshl_b32 s57, s3, 11")
    A("  s_mov_b32 s26, 0x4000\n  s_mov_b32 s27, 0x20000\n  s_mov_b32 s30, 32256\n  s_mov_b32 s31, 0x20000\n  s_mov_b32 s34, 32256\n  s_mov_b32 s35, 0x20000")
    if xscale & 1: A("  s_mov_b32 s30, 0\n  s_mov_b32 s34, 0")
    A("  s_mov_b32 s38, 8064\n  s_mov_b32 s39, 0x20000\n  s_mov_b32 s42, 8064\n  s_mov_b32 s43, 0x20000")
    if xscale & 2: A("  s_mov_b32 s38, 0\n  s_mov_b32 s42, 0")
    A(f"  s_cmp_lt_u32 s3, {F//4 if skip0 else 0}\n  s_cselect_b32 s56, {OOB}, s57")
    A("  s_waitcnt lgkmcnt(0)\n  s_mov_b32 s24, s4\n  s_mov_b32 s25, s5")
    A(f"  buffer_load_dwordx4 v[{KR}:{KR+3}], v{T3}, s[24:27], s52 offen")
    A(f"  buffer_load_dwordx4 v[{KR+4}:{KR+7}], v{T3}, s[24:27], s52 offen offset:64")
    A("  s_add_u32 s28, s10, s53\n  s_addc_u32 s29, s11, 0\n  s_add_u32 s32, s12, s53\n  s_addc_u32 s33, s13, 0")
    A("  s_add_u32 s36, s14, s54\n  s_addc_u32 s37, s15, 0\n  s_add_u32 s40, s16, s54\n  s_addc_u32 s41, s17, 0")
    for k in range(4):
        if k: A(f"  s_add_u32 s56, s57, {k*8192}")
        A(f"  s_add_u32 m0, s55, {KS + k*4096}\n  s_nop 0\n  buffer_load_dwordx4 v{aV}, s[28:31], s56 offen nt lds")
        A(f"  s_add_u32 m0, s55, {KZ + k*4096}\n  s_nop 0\n  buffer_load_dwordx4 v{aV}, s[32:35], s56 offen nt lds")
    A(f"  s_add_u32 m0, s55, {VS}\n  s_nop 0\n  buffer_load_dwordx4 v{aP}, s[36:39], s57 offen nt lds")
    A(f"  s_add_u32 m0, s55, {VZ}\n  s_nop 0\n  buffer_load_dwordx4 v{aP}, s[40:43], s57 offen nt lds")
    A(f"  s_mov_b32 s44, s22\n  s_mov_b32 s45, s23\n  s_mov_b32 s46, {WS_BYTES}\n  s_mov_b32 s47, 0x20000")
    A(f"  s_mul_i32 s53, s50, {cstr}\n  s_add_u32 s53, s53, {WS_CNT}\n  s_add_u32 s54, s51, s3\n  s_cmp_eq_u32 s54, 0\n  s_cselect_b32 s53, s53, {OOB}")
    A(f"  v_mov_b32 v{T1}, 0\n  s_mov_b64 exec, 1")
    A(f"  buffer_store_dword v{T1}, v{vL16}, s[44:47], s53 offen sc1\n  buffer_store_dword v{T1}, v{vL16}, s[44:47], s53 offen offset:1024 sc1\n  buffer_store_dword v{T1}, v{vL16}, s[44:47], s53 offen offset:2048 sc1\n  s_mov_b64 exec, -1")
    nvm = 15
    A("  s_lshl2_add_u32 s56, s50, s3\n  s_lshl_b32 s56, s56, 13")
    A("  s_lshl_b32 s57, s51, 9\n  s_add_u32 s57, s57, s56")
    A(f"  s_lshl_b32 s63, s50, 9\n  s_add_u32 s63, s63, {WS_ML}")
    A(f"  s_lshl_b32 s68, s51, 5\n  s_add_u32 s68, s68, s63\n  s_cmp_eq_u32 s3, 0\n  s_cselect_b32 s68, s68, {OOB}")
    A(f"  v_lshlrev_b32 v{vL8}, 3, v0\n  v_lshlrev_b32 v{vML}, 3, v{vQ}")
    A(f"  v_and_b32 v{T1}, 7, v{vI}\n  v_lshrrev_b32 v{T2}, 3, v{vI}")
    A(f"  v_lshlrev_b32 v{bZ}, 4, v{vQ}\n  v_lshl_add_u32 v{bZ}, v{T2}, 7, v{bZ}\n  v_add_u32 v{aZ}, {KZ + F*256}, v{bZ}")
    A(f"  v_lshlrev_b32 v{T2}, 4, v{T2}\n  v_lshl_add_u32 v{T2}, v{vQ}, 1, v{T2}")
    A(f"  v_and_b32 v{T3}, 6, v{T1}\n  v_lshlrev_b32 v{T3}, 1, v{T3}\n  v_and_or_b32 v{T3}, v{T1}, 1, v{T3}")
    A(f"  v_xor_b32 v{T2}, v{T2}, v{T3}\n  v_lshlrev_b32 v{T2}, 4, v{T2}\n  v_lshl_add_u32 v{T2}, v{T1}, 9, v{T2}")
    A(f"  s_lshl_b32 s58, s3, 12\n  v_add_u32 v{aK[0]}, s58, v{T2}")
    A(f"  v_xor_b32 v{aK[1]}, 16, v{aK[0]}\n  v_xor_b32 v{aK[2]}, 0x80, v{aK[0]}\n  v_xor_b32 v{aK[3]}, 0x90, v{aK[0]}")
    A(f"  v_and_b32 v{T1}, 1, v{vQ}\n  v_lshrrev_b32 v{T2}, 1, v{vQ}\n  v_lshl_add_u32 v{T1}, v{T1}, 2, v{T2}\n  v_lshlrev_b32 v{T1}, 2, v{T1}")
    A(f"  v_lshl_add_u32 v{T1}, v{T0}, 7, v{T1}\n  s_lshl_b32 s58, s3, 5\n  v_add_u32 v{bL}, s58, v{T1}\n  v_add_u32 v{aL}, {LOG + F*512}, v{bL}")
    A(f"  v_lshlrev_b32 v{T1}, 3, v{vI}\n  v_lshl_add_u32 v{T1}, v{vQ}, 12, v{T1}\n  s_lshl_b32 s58, s3, 7\n  v_add_u32 v{aV}, s58, v{T1}")
    A(f"  v_lshrrev_b32 v{T1}, 2, v{vI}\n  v_lshlrev_b32 v{T2}, 5, v{vQ}\n  v_lshl_add_u32 v{T2}, v{T1}, 7, v{T2}\n  v_add_u32 v{aP}, {LOG + FV*512}, v{T2}")
    A(f"  v_lshlrev_b32 v{aVS}, 4, v{vQ}\n  v_add_u32 v{aVS}, {VS + FV*64}, v{aVS}")
    A(f"  v_mov_b32 v{vM}, 0xff800000\n  v_mov_b32 v{vLs}, 0")
    A(f"  v_mov_b32 v{aMisc}, {MISC}\n  v_mov_b32 v{T0}, -1\n  ds_write_b32 v{aMisc}, v{T0} offset:{oLAST}\n  ds_write_b32 v{aMisc}, v{T0} offset:{oLASTK}")
    A("  s_mov_b32 s48, 0x000f000f\n  s_mov_b32 s49, 0x000f000f\n  s_mov_b32 s58, 0xffff0000\n  s_mov_b32 s38, -1\n  s_mov_b32 s39, 0xff")
    A(f"  s_waitcnt vmcnt({nvm-2})")
    for n in range(8):
        A(f"  v_lshlrev_b32 v{QF+2*n}, 16, v{KR+n}\n  v_and_b32 v{QF+2*n+1}, s58, v{KR+n}")
    for n in range(16):
        A(f"  v_mul_f32 v{QF+n}, {c2}, v{QF+n}        ; q * 128^-0.5 * log2(e)" if n == 0 else f"  v_mul_f32 v{QF+n}, {c2}, v{QF+n}")
    if flagsp: A("  s_lshr_b32 s71, s51, 1\n  s_add_u32 s71, s71, 4")
    else: A("  s_mov_b32 s71, 8")
    A(f"  s_mov_b32 s59, 0\n  s_cmp_eq_u32 s51, 0\n  s_cselect_b32 s55, {kh0}, s71\n  s_cmp_eq_u32 s3, 0\n  s_cselect_b32 s55, s55, 99")
    A(f"  s_waitcnt vmcnt({nvm-4})")
    def tl(vr, expr):
        A(f"  s_waitcnt lgkmcnt(0)\n  s_memrealtime s[66:67]\n{expr}\n  s_waitcnt lgkmcnt(0)\n  v_writelane_b32 v{vr}, s66, m0")
    def kstep(ak, ok, oz, ol, pooled):
        e = 1 if pooled else 0
        jit("s59")
        A(f"  ds_read_b128 v[{KSr}:{KSr+3}], v{aS} offset:{oz}\n  ds_read_b128 v[{KSr+4}:{KSr+7}], v{aS} offset:{oz+64}")
        for n in range(4): A(f"  ds_read_b128 v[{KR+4*n}:{KR+4*n+3}], v{ak[n]} offset:{ok}")
        A(f"  ds_read_b128 v[{KZr}:{KZr+3}], v{aZ} offset:{oz}\n  ds_read_b128 v[{KZr+4}:{KZr+7}], v{aZ} offset:{oz+64}")
        if pooled: A(f"  ds_read_b32 v{vLAST}, v{aMisc} offset:{oLASTK}")
        for m in range(2):
            A(f"  s_waitcnt lgkmcnt({7-m+e})")
            for n in range(4):
                r = KSr + 4*m + n
                A(f"  v_lshlrev_b32 v{T0}, 16, v{r}\n  v_and_b32 v{T1}, s58, v{r}")
                A(f"  v_mul_f32 v{T0}, v{T0}, v{QF+8*m+2*n}\n  v_mul_f32 v{T1}, v{T1}, v{QF+8*m+2*n+1}")
                A(f"  v_cvt_pk_bf16_f32 v{OB+4*m+n}, v{T0}, v{T1}")
        for m in range(2):
            A(f"  s_waitcnt lgkmcnt({4-2*m+e})")
            for n in range(8): A(f"  v_cvt_f32_i32 v{KR+8*m+n}, v{KR+8*m+n}")
            for n in range(4): A(f"  v_cvt_pk_bf16_f32 v{OA+4*m+n}, v{KR+8*m+2*n}, v{KR+8*m+2*n+1}")
        A("  s_waitcnt lgkmcnt(0)")
        for n in range(4): A(f"  v_xor_b32 v{KZr+n}, 0x80008000, v{KZr+n}")
        A(f"  v_mfma_f32_16x16x32_bf16 v[{ACC}:{ACC+3}], v[{OA}:{OA+3}], v[{OB}:{OB+3}], 0")
        for n in range(4, 8): A(f"  v_xor_b32 v{KZr+n}, 0x80008000, v{KZr+n}")
        A(f"  v_mfma_f32_16x16x32_bf16 v[{ACC}:{ACC+3}], v[{OA+4}:{OA+7}], v[{OB+4}:{OB+7}], v[{ACC}:{ACC+3}]")
        A(f"  v_mfma_f32_16x16x32_bf16 v[{ACC}:{ACC+3}], v[{KZr}:{KZr+3}], v[{OB}:{OB+3}], v[{ACC}:{ACC+3}]")
        A(f"  v_mfma_f32_16x16x32_bf16 v[{ACC}:{ACC+3}], v[{KZr+4}:{KZr+7}], v[{OB+4}:{OB+7}], v[{ACC}:{ACC+3}]")
        if pooled: A(f"  v_readfirstlane_b32 s61, v{vLAST}\n  s_nop 6")
        else: A("  s_nop 7")
        A(f"  v_permlane32_swap_b32 v{ACC}, v{ACC+1}\n  v_permlane32_swap_b32 v{ACC+2}, v{ACC+3}\n  s_nop 1")
        A(f"  v_add_f32_dpp v{T0}, v{ACC+1}, v{ACC} row_shl:4 row_mask:0xf bank_mask:0xf bound_ctrl:1")
        A(f"  v_add_f32_dpp v{T1}, v{ACC+3}, v{ACC+2} row_shl:4 row_mask:0xf bank_mask:0xf bound_ctrl:1")
        A(f"  s_mov_b64 exec, s[48:49]\n  ds_write_b32 v{aL}, v{T0} offset:{ol}\n  ds_write_b32 v{aL}, v{T1} offset:{ol+8}")
        if not pooled: A(f"  v_max3_f32 v{vM}, v{vM}, v{T0}, v{T1}")
        A("  s_mov_b64 exec, -1")
        jit("s59")
    def publish(r, skip):
        A(f"  s_and_b32 s54, s53, 3\n  s_cmp_lg_u32 s54, s3\n  s_cbranch_scc1 {skip}\n  s_cmp_lt_u32 s53, {NS}\n  s_cbranch_scc1 {skip}")
        A(f"  s_and_b32 s53, s53, 7\n  s_lshl2_add_u32 s54, s53, {MISC + oCIDX}\n  s_mul_i32 s53, s53, {STGS}\n  s_add_u32 s53, s53, {STG}")
        A(f"  v_mov_b32 v{T3}, s54\n  v_add_u32 v{T2}, s53, v{vL16}\n  s_mov_b32 exec_hi, 0xff")
        A(f"  ds_read_b32 v{T3}, v{T3}\n  ds_read_b128 v[{r}:{r+3}], v{T2}\n  s_mul_i32 s54, s50, {16*FV}\n  s_waitcnt lgkmcnt(0)")
        A(f"  v_readfirstlane_b32 s53, v{T3}\n  s_add_u32 s53, s53, s54\n  s_mul_i32 s53, s53, {AUXS}\n  s_add_u32 s53, s53, {WS_AUX}")
        A(f"  buffer_store_dwordx4 v[{r}:{r+3}], v{vL16}, s[44:47], s53 offen sc1\n  s_mov_b64 exec, -1")
    dbgaddr = lambda: A(f"  s_lshl_b32 s53, s50, 4\n  v_mov_b32 v{T2}, s53")
    arraddr = lambda: A(f"  s_mul_i32 s53, s50, {cstr}\n  s_add_u32 s53, s53, {WS_CNT + 1024}\n  v_mov_b32 v{T2}, s53")
    def mlstore(r):
        A("  s_mov_b32 exec_lo, 0x00010001\n  s_mov_b32 exec_hi, 0x00010001")
        A(f"  buffer_store_dwordx2 v[{r}:{r+1}], v{vML}, s[44:47], s68 offen sc1\n  s_mov_b64 exec, -1")
    def clear(r):
        A(f"  v_mov_b32 v{r}, -1\n  v_mov_b32 v{r+1}, -1")
        A(f"  buffer_store_dwordx2 v[{r}:{r+1}], v{vL8}, s[44:47], s57 offen sc1")
        mlstore(r)
    A(f"  ; ---- phase K\n{lab('k')}:")
    for k in range(4):
        if k == 3: A("  s_waitcnt vmcnt(0)")
        A("  s_barrier")
        if stamp: tl(100, f"  s_lshl2_add_u32 m0, s59, {k}")
        kstep(aK, k*16384, k*256, k*512, False)
    A(f"  v_add_u32 v{aS}, 0x400, v{aS}\n  v_add_u32 v{aZ}, 0x400, v{aZ}\n  v_add_u32 v{aL}, 0x800, v{aL}")
    A(f"  s_cmp_eq_u32 s59, s55\n  s_cbranch_scc1 {lab('khook')}\n{lab('kn')}:")
    A(f"  s_add_u32 s59, s59, 1\n  s_cmp_lt_u32 s59, {NS//4}\n  s_cbranch_scc1 {lab('k')}")
    if clr == "k": clear(OB)
    A(f"  ds_read_b32 v{vLAST}, v{aMisc} offset:{oLASTK}\n  s_mov_b32 s59, {NS}\n  s_waitcnt lgkmcnt(0)\n  v_readfirstlane_b32 s61, v{vLAST}")
    A(f"{lab('kx')}:\n  s_cmp_lt_u32 s61, s59\n  s_cbranch_scc1 {lab('kdone')}")
    A("  s_and_b32 s53, s59, 3\n  s_lshl_b32 s53, s53, 14")
    for n in range(4): A(f"  v_add_u32 v{aKx[n]}, s53, v{aK[n]}")
    A(f"  s_and_b32 s53, s59, 7\n  s_mul_i32 s53, s53, {STGS}\n  s_add_u32 s53, s53, {STG}")
    A(f"  v_add_u32 v{aL}, s53, v{bL}\n  s_add_u32 s54, s53, 640\n  v_add_u32 v{aS}, s54, v{bS}\n  s_add_u32 s54, s53, 896\n  v_add_u32 v{aZ}, s54, v{bZ}")
    A("  s_barrier\n  s_sub_u32 s53, s59, 2")
    publish(OA, lab("kxp"))
    A(f"{lab('kxp')}:")
    kstep(aKx, 0, 0, 0, True)
    A(f"  s_add_u32 s59, s59, 1\n  s_branch {lab('kx')}")
    A(f"{lab('khook')}:")
    dbgaddr()
    A(f"  v_mov_b32 v{T3}, 1\n  s_mov_b64 exec, 1\n  s_cmp_lg_u32 s59, {kh0}\n  s_cbranch_scc1 {lab('kh1')}")
    A(f"  s_mov_b32 s55, s71")
    A(f"  global_store_dword v{T2}, v{T3}, s[20:21] sc1\n  s_branch {lab('khx')}")
    A(f"{lab('kh1')}:\n  s_cmp_lg_u32 s59, s71\n  s_cbranch_scc1 {lab('kh2')}")
    A(f"  global_load_dword v{vChk}, v{T2}, s[20:21] sc1\n  s_add_u32 s55, s71, 1\n  s_branch {lab('khx')}")
    A(f"{lab('kh2')}:")
    if nochkk: A(f"  v_mov_b32 v{vChk}, 0")
    A(f"  s_cmp_eq_u32 s51, 0\n  s_cselect_b32 s53, 1, 0\n  v_or_b32 v{T3}, s53, v{vChk}\n  ds_write_b32 v{aMisc}, v{T3} offset:{oPARTK}\n  v_readfirstlane_b32 s64, v{T3}")
    A(f"{lab('khx')}:\n  s_mov_b64 exec, -1\n  s_branch {lab('kn')}")
    ACC0, ACC1, ACCZ = 80, 84, 88
    A(f"{lab('kdone')}:")
    if clr == "kd": clear(OB)
    A(f"  v_and_b32 v{T0}, 3, v{vI}\n  v_lshlrev_b32 v{T1}, 2, v{vQ}\n  v_lshl_add_u32 v{T0}, v{T0}, 6, v{T1}")
    A(f"  s_lshl_b32 s53, s3, 4\n  s_add_u32 s53, s53, {MX}\n  v_add_u32 v{T0}, s53, v{T0}")
    A(f"  s_mov_b64 exec, s[48:49]\n  ds_write_b32 v{T0}, v{vM}\n  s_mov_b64 exec, -1")
    A(f"  v_lshrrev_b32 v{T1}, 2, v{vI}\n  v_lshlrev_b32 v{T1}, 6, v{T1}\n  v_add_u32 v{T1}, {MX}, v{T1}")
    for n in range(12): A(f"  v_mov_b32 v{ACC0+n}, 0")
    A(f"  s_mov_b32 s60, s59\n  s_add_u32 s61, s59, {NSV}\n  s_add_u32 s55, s59, {PUBV}\n  s_mov_b32 s62, 0")
    A(f"  s_and_b32 s53, s59, 3\n  s_lshl_b32 s53, s53, 14\n  v_add_u32 v{aV}, s53, v{aV}")
    A("  s_waitcnt lgkmcnt(0)\n  s_barrier")
    if stamp: tl(101, "  s_mov_b32 m0, 0")
    for n in range(4): A(f"  ds_read_b128 v[{KR+4*n}:{KR+4*n+3}], v{T1} offset:{16*n}")
    A("  s_waitcnt lgkmcnt(0)")
    A(f"  v_max3_f32 v{vM}, v{KR}, v{KR+1}, v{KR+2}")
    for n in range(3, 15, 2): A(f"  v_max3_f32 v{vM}, v{vM}, v{KR+n}, v{KR+n+1}")
    A(f"  v_max_f32 v{vM}, v{vM}, v{KR+15}\n  s_branch {lab('v0')}")
    A(f"{lab('hook')}:")
    A(f"  s_add_u32 s62, s62, 1\n  s_cmp_lg_u32 s62, 1\n  s_cbranch_scc1 {lab('h1')}")
    A("  s_sub_u32 s53, s60, 1\n  s_sub_u32 s54, s53, s3\n  s_and_b32 s54, s54, 3\n  s_sub_u32 s53, s53, s54")
    A(f"  s_cmp_ge_u32 s54, 2\n  s_cbranch_scc1 {lab('hp')}")
    publish(KZr, lab("hp"))
    A(f"{lab('hp')}:")
    if FV > F:
        A(f"  s_cmp_ge_u32 s3, {FV-F}\n  s_cbranch_scc1 {lab('hq')}")
        A(f"  s_lshl_b32 s54, s3, 9\n  s_add_u32 s54, s54, {LOG + F*512}\n  v_add_u32 v{T2}, s54, v{vL16}\n  s_lshl_b32 s53, s3, 6")
        A(f"  s_add_u32 s54, s53, {VS + F*64 - 512}\n  s_mov_b32 exec_lo, 0\n  s_mov_b32 exec_hi, 0xf\n  v_add_u32 v{T2}, s54, v{vL16}")
        A(f"  s_add_u32 s54, s53, {VZ + F*64 - 576}\n  s_mov_b32 exec_hi, 0xf0\n  v_add_u32 v{T2}, s54, v{vL16}\n  s_mov_b64 exec, s[38:39]")
        A(f"  ds_read_b128 v[{KR}:{KR+3}], v{T2}")
        A(f"  s_mul_i32 s53, s50, {16*FV}\n  s_add_u32 s54, s3, {F}\n  s_lshl4_add_u32 s53, s54, s53\n  s_add_u32 s53, s53, s51\n  s_mul_i32 s53, s53, {AUXS}\n  s_add_u32 s53, s53, {WS_AUX}")
        A(f"  s_waitcnt lgkmcnt(0)\n  buffer_store_dwordx4 v[{KR}:{KR+3}], v{vL16}, s[44:47], s53 offen sc1\n  s_mov_b64 exec, -1\n{lab('hq')}:")
    if clr == "v": clear(KZr + 4)
    A(f"  s_add_u32 s55, s55, 2\n  s_branch {lab('v1')}")
    A(f"{lab('h1')}:\n  s_cmp_lg_u32 s62, 2\n  s_cbranch_scc1 {lab('h2')}")
    A("  s_waitcnt vmcnt(0)")
    if arrsp: A(f"  s_mul_i32 s53, s51, {arrsp}\n  s_add_u32 s55, s55, s53")
    assert PUBV + 3 + 15*arrsp + 6 < CHK
    A(f"  s_add_u32 s55, s55, 1\n  s_cmp_eq_u32 s3, 0\n  s_cselect_b32 s55, s55, 0\n  s_branch {lab('v1')}")
    A(f"{lab('h2')}:\n  s_mov_b64 exec, 1\n  s_cmp_lg_u32 s62, 3\n  s_cbranch_scc1 {lab('h3')}")
    A(f"  s_cmp_lg_u32 s64, 0\n  s_cbranch_scc1 {lab('h2a')}\n  s_mov_b32 s55, {spin}")
    dbgaddr()
    A(f"{lab('h2w')}:                                   ; counters not yet known to be zeroed: wait for the word")
    A(f"  global_load_dword v{vChk}, v{T2}, s[20:21] sc1\n  s_sub_u32 s55, s55, 1\n  s_waitcnt vmcnt(0)\n  s_cbranch_scc1 {lab('h2a')}")
    A(f"  v_readfirstlane_b32 s64, v{vChk}\n  s_cmp_eq_u32 s64, 0\n  s_cbranch_scc1 {lab('h2w')}")
    A(f"{lab('h2a')}:")
    arraddr()
    A(f"  v_mov_b32 v{T1}, 1\n  global_atomic_add v{vArr}, v{T2}, v{T1}, s[22:23] sc0 sc1")
    A(f"  s_add_u32 s55, s60, {CHK}\n  s_branch {lab('hx')}")
    A(f"{lab('h3')}:\n  s_waitcnt vmcnt(0)\n  s_cmp_lg_u32 s62, 4\n  s_cbranch_scc1 {lab('h4')}")
    arraddr()
    A(f"  global_load_dword v{vChk}, v{T2}, s[22:23] sc1\n  s_add_u32 s55, s55, 3\n  s_branch {lab('hx')}")
    A(f"{lab('h4')}:")
    if nochk: A(f"  v_mov_b32 v{vChk}, 0")
    A(f"  v_add_u32 v{vArr}, 1, v{vArr}\n  v_max_u32 v{T0}, v{vArr}, v{vChk}\n  v_lshrrev_b32 v{T0}, 4, v{T0}")
    A(f"  ds_write_b32 v{aMisc}, v{T0} offset:{oPART}")
    A(f"{lab('hx')}:\n  s_mov_b64 exec, -1\n  s_branch {lab('v1')}")
    SL, VSr, VZr, VR, PA, B0, B1, U = 16, 24, 28, 32, 64, 72, 76, 48
    def preads(flex):
        A(f"  ds_read_b128 v[{SL}:{SL+3}], v{aP}\n  ds_read_b128 v[{SL+4}:{SL+7}], v{aP} offset:16")
        A(f"  ds_read_b128 v[{VSr}:{VSr+3}], v{aVS} offset:{512 if flex else 0}\n  ds_read_b128 v[{VZr}:{VZr+3}], v{aVS} offset:{576 if flex else 4096}")
    def pprep(flex):
        jit("s59")
        A("  s_waitcnt lgkmcnt(2)")
        if flex:
            A(f"  v_max3_f32 v{T0}, v{SL}, v{SL+1}, v{SL+2}\n  v_max3_f32 v{T0}, v{T0}, v{SL+3}, v{SL+4}")
            A(f"  v_max3_f32 v{T0}, v{T0}, v{SL+5}, v{SL+6}\n  v_max3_f32 v{T0}, v{T0}, v{SL+7}, v{vM}")
            A(f"  v_mov_b32 v{T1}, v{T0}\n  s_nop 1\n  v_permlane32_swap_b32 v{T0}, v{T1}\n  s_nop 0\n  v_max_f32 v{T0}, v{T0}, v{T1}")
            A(f"  v_mov_b32 v{T1}, v{T0}\n  s_nop 1\n  v_permlane16_swap_b32 v{T0}, v{T1}\n  s_nop 0\n  v_max_f32 v{T0}, v{T0}, v{T1}")
            A(f"  v_sub_f32 v{T1}, v{vM}, v{T0}\n  v_exp_f32 v{T1}, v{T1}\n  v_mov_b32 v{vM}, v{T0}")
        for n in range(8): A(f"  v_sub_f32 v{SL+n}, v{SL+n}, v{vM}")
        if flex:
            A(f"  v_mul_f32 v{vLs}, v{vLs}, v{T1}")
            for qq in range(4): A(f"  v_mov_b32_dpp v{T2}, v{T1} row_newbcast:{4*qq} row_mask:{1<<qq:#x} bank_mask:0xf")
        for n in range(8): A(f"  v_exp_f32 v{SL+n}, v{SL+n}")
        if flex:
            for r in (ACC0, ACC1, ACCZ): A(f"  v_mul_f32 v{r}, v{r}, v{T2}")
        A("  s_waitcnt lgkmcnt(1)")
        for n in range(4): A(f"  v_lshlrev_b32 v{U+2*n}, 16, v{VSr+n}\n  v_and_b32 v{U+2*n+1}, s58, v{VSr+n}")
        for n in range(8): A(f"  v_mul_f32 v{U+n}, v{U+n}, v{SL+n}")
        for n in range(4): A(f"  v_cvt_pk_bf16_f32 v{PA+n}, v{U+2*n}, v{U+2*n+1}")
        for n in range(8): A(f"  v_add_f32 v{vLs}, v{vLs}, v{SL+n}")
        A("  s_waitcnt lgkmcnt(0)")
        A(f"  v_mfma_f32_16x16x32_bf16 v[{ACCZ}:{ACCZ+3}], v[{PA}:{PA+3}], v[{VZr}:{VZr+3}], v[{ACCZ}:{ACCZ+3}]")
    def vpart(pre):
        jit("s59")
        for n in range(8): A(f"  ds_read_b64 v[{VR+2*n}:{VR+2*n+1}], v{aV} offset:{n*512}")
        A(f"  ds_read_b32 v{vLAST}, v{aMisc} offset:{oLAST}")
        if pre: preads(True)
        A(f"  v_add_u32 v{aV}, 0x4000, v{aV}\n  v_and_b32 v{aV}, 0xffff, v{aV}")
        for part in range(4):
            A(f"  s_waitcnt lgkmcnt({(7-2*part if part < 3 else 0) + (4 if pre else 0)})")
            b = VR + 4*part
            for n in range(4): A(f"  v_cvt_f32_i32 v{b+n}, v{b+n}")
            A(f"  v_cvt_pk_bf16_f32 v{B0+part}, v{b}, v{b+2}\n  v_cvt_pk_bf16_f32 v{B1+part}, v{b+1}, v{b+3}")
        A(f"  v_readfirstlane_b32 s53, v{vLAST}")
        A(f"  v_mfma_f32_16x16x32_bf16 v[{ACC0}:{ACC0+3}], v[{PA}:{PA+3}], v[{B0}:{B0+3}], v[{ACC0}:{ACC0+3}]")
        A(f"  v_mfma_f32_16x16x32_bf16 v[{ACC1}:{ACC1+3}], v[{PA}:{PA+3}], v[{B1}:{B1+3}], v[{ACC1}:{ACC1+3}]")
    A(f"  ; ---- phase V\n{lab('v0')}:")
    preads(False)
    A(f"  v_add_u32 v{aP}, 0x200, v{aP}\n  v_add_u32 v{aVS}, 64, v{aVS}")
    pprep(False)
    A(f"  s_cmp_eq_u32 s59, s60\n  s_cbranch_scc1 {lab('v1')}\n  s_barrier")
    if stamp: tl(101, "  s_sub_u32 m0, s59, s60")
    A(f"  s_cmp_eq_u32 s59, s55\n  s_cbranch_scc1 {lab('hook')}\n{lab('v1')}:")
    vpart(False)
    A(f"  s_add_u32 s59, s59, 1\n  s_cmp_lt_u32 s59, s61\n  s_cbranch_scc1 {lab('v0')}")
    A(f"  s_cmp_lt_u32 s53, s59\n  s_cbranch_scc1 {lab('vend')}")
    A(f"  v_subrev_u32 v{aS}, {LOG + 64*512 - AUX}, v{aP}\n  v_subrev_u32 v{aZ}, {VS + 64*64 - AUX}, v{aVS}")
    A(f"  s_and_b32 s54, s59, 3\n  s_lshl_b32 s54, s54, 10\n  v_add_u32 v{aP}, s54, v{aS}\n  v_add_u32 v{aVS}, s54, v{aZ}")
    preads(True)
    A(f"{lab('vy')}:")
    pprep(True)
    A(f"  s_add_u32 s59, s59, 1\n  s_and_b32 s54, s59, 3\n  s_lshl_b32 s54, s54, 10\n  v_add_u32 v{aP}, s54, v{aS}\n  v_add_u32 v{aVS}, s54, v{aZ}\n  s_barrier")
    vpart(True)
    A(f"  s_cmp_ge_u32 s53, s59\n  s_cbranch_scc1 {lab('vy')}\n  s_waitcnt lgkmcnt(0)")
    A(f"{lab('vend')}:")
    ts = lambda n: A(f"  s_memrealtime s[{76+2*n}:{77+2*n}]") if stamp else None
    if stamp:
        for n in range(76, 92): A(f"  s_mov_b32 s{n}, 0")
    ts(0)
    R = 16
    jit("s59")
    A(f"  ; ---- partial result of this workgroup\n  v_mov_b32 v{T0}, v{vLs}\n  ds_read_b32 v{T3}, v{aMisc} offset:{oPART}\n  s_lshl_b32 s54, s3, 2")
    bc = lambda d, x, qq: A(f"  v_mov_b32_dpp v{d}, v{x} row_newbcast:{4*qq} row_mask:{1<<qq:#x} bank_mask:0xf")
    if fast:
        A(f"  v_permlane32_swap_b32 v{T0}, v{vLs}\n  v_min_u32 v{vM}, -2, v{vM}\n  v_add_f32 v{vLs}, v{T0}, v{vLs}\n  v_mov_b32 v{T0}, v{vLs}")
        bc(R+2, vM, 0); bc(R+2, vM, 1)
        A(f"  v_permlane16_swap_b32 v{T0}, v{vLs}")
        bc(R+2, vM, 2)
        A(f"  v_add_f32 v{vLs}, v{T0}, v{vLs}")
        bc(R+2, vM, 3)
        A(f"  v_min_u32 v{vLs}, -2, v{vLs}\n  v_sub_f32 v{R}, v{ACC0}, v{ACCZ}\n  v_sub_f32 v{R+1}, v{ACC1}, v{ACCZ}")
        bc(R+3, vLs, 0)
        A(f"  v_min_u32 v{R}, -2, v{R}\n  v_min_u32 v{R+1}, -2, v{R+1}")
        A(f"  buffer_store_dwordx2 v[{R}:{R+1}], v{vL8}, s[44:47], s57 offen sc1")
        for qq in range(1, 4): bc(R+3, vLs, qq)
        mlstore(R + 2)
    else:
        A(f"  v_permlane32_swap_b32 v{T0}, v{vLs}\n  s_nop 0\n  v_add_f32 v{vLs}, v{T0}, v{vLs}")
        A(f"  v_mov_b32 v{T0}, v{vLs}\n  s_nop 1\n  v_permlane16_swap_b32 v{T0}, v{vLs}")
        A(f"  v_sub_f32 v{R}, v{ACC0}, v{ACCZ}\n  v_sub_f32 v{R+1}, v{ACC1}, v{ACCZ}\n  v_add_f32 v{vLs}, v{T0}, v{vLs}")
        A(f"  v_min_u32 v{R}, -2, v{R}\n  v_min_u32 v{R+1}, -2, v{R+1}")
        A(f"  buffer_store_dwordx2 v[{R}:{R+1}], v{vL8}, s[44:47], s57 offen sc1")
        A(f"  v_min_u32 v{vLs}, -2, v{vLs}\n  v_min_u32 v{vM}, -2, v{vM}\n  s_nop 1")
        for qq in range(4): A(f"  v_mov_b32_dpp v{R+2}, v{vM} row_newbcast:{4*qq} row_mask:{1<<qq:#x} bank_mask:0xf")
        for qq in range(4): A(f"  v_mov_b32_dpp v{R+3}, v{vLs} row_newbcast:{4*qq} row_mask:{1<<qq:#x} bank_mask:0xf")
        mlstore(R + 2)
    ts(1)
    if cspread: A("  s_and_b32 s53, s50, 3\n  s_add_u32 s54, s54, s53")
    A(f"  s_cmp_lg_u32 s54, s51\n  s_cbranch_scc1 {lab('fin')}")
    A(f"  v_add_u32 v4, 0x1000, v{vL8}\n  v_lshl_add_u32 v5, v{vI}, 5, v{vML}")
    A("  s_mov_b32 s28, s18\n  s_mov_b32 s29, s19\n  s_mov_b32 s30, 0x4000\n  s_mov_b32 s31, 0x20000")
    A(f"  v_lshlrev_b32 v8, 2, v{vI}\n  v_lshl_add_u32 v8, v{vQ}, 8, v8")
    A(f"  s_lshl_b32 s57, s3, 6\n  s_add_u32 s57, s57, s52\n  s_mov_b32 s55, {spin}")
    A(f"  s_waitcnt lgkmcnt(0)\n  v_readfirstlane_b32 s53, v{T3}\n  s_cmp_lg_u32 s53, 0\n  s_cbranch_scc1 {lab('lite' if light else 'poll')}")
    arraddr()
    A(f"{lab('arr')}:                                   ; not yet known that all granules were marked: wait for the count")
    A(f"  global_load_dword v10, v{T2}, s[22:23] sc1\n  s_sub_u32 s55, s55, 1\n  s_waitcnt vmcnt(0)")
    A(f"  s_cbranch_scc1 {lab('fin')}\n  v_readfirstlane_b32 s53, v10\n  s_cmp_lt_u32 s53, 16\n  s_cbranch_scc1 {lab('arr')}")
    C = 20
    dpp = lambda op, d, a, b, c: A(f"  {op}_dpp v{d}, v{a}, v{b} {c} row_mask:0xf bank_mask:0xf")
    if light:
        A(f"  s_branch {lab('lite')}\n{lab('again')}:\n  s_bcnt1_i32_b64 s53, vcc\n  s_cmp_le_u32 s53, {4*light}\n  s_cbranch_scc1 {lab('poll')}")
        A(f"{lab('lite')}:\n  buffer_load_dwordx2 v[16:17], v5, s[44:47], s63 offen sc1\n  s_sub_u32 s55, s55, 1\n  s_cbranch_scc1 {lab('fin')}\n  s_waitcnt vmcnt(0)")
        A(f"  v_max_u32 v14, v16, v17\n  v_cmp_eq_u32 vcc, -1, v14\n  s_nop 4\n  s_branch {lab('again')}")
    A(f"{lab('poll')}:")
    A("  buffer_load_dwordx2 v[16:17], v5, s[44:47], s63 offen sc1      ; lane (split, head): {M, L}")
    for sp in range(16):
        A(f"  buffer_load_dwordx2 v[{C+2*sp}:{C+2*sp+1}], v{vL8 if sp < 8 else 4}, s[44:47], s56 offen offset:{(sp&7)*512} sc1")
    A(f"  s_sub_u32 s55, s55, 1\n  s_cbranch_scc1 {lab('fin')}\n  s_waitcnt vmcnt(16)")
    if early:
        A(f"  v_max_u32 v14, v16, v17\n  v_cmp_eq_u32 vcc, -1, v14\n  v_mov_b32 v9, v16\n  s_nop 3\n  s_cbranch_vccnz {lab('again' if light else 'poll')}")
    else:
        A("  v_max_u32 v14, v16, v17\n  v_mov_b32 v9, v16\n  s_nop 1")
    for r in (8, 4, 2, 1):
        dpp("v_max_f32", 9, 9, 9, f"row_ror:{r}"); A("  s_nop 1")
    if fast:
        A(f"  v_sub_f32 v10, v16, v9\n  v_exp_f32 v10, v10\n  s_waitcnt vmcnt(8)\n  v_mul_f32 v11, v10, v17")
        for sp in range(16):
            if sp == 8: A("  s_waitcnt vmcnt(0)")
            A(f"  v_max3_u32 v9, v{14 if sp == 0 else 9}, v{C+2*sp}, v{C+2*sp+1}")
            if sp == 15: A("  v_cmp_eq_u32 vcc, -1, v9")
            op = "v_mul_f32" if sp == 0 else "v_fmac_f32"
            dpp(op, 12, 10, C+2*sp, f"row_newbcast:{sp}"); dpp(op, 13, 10, C+2*sp+1, f"row_newbcast:{sp}")
            if sp < 4: dpp("v_add_f32", 11, 11, 11, f"row_ror:{8 >> sp}")
            if sp == 4: A("  v_rcp_f32 v11, v11")
        A(f"  v_mul_f32 v12, v12, v11\n  v_mul_f32 v13, v13, v11\n  v_cvt_pk_bf16_f32 v12, v12, v13\n  s_nop 0\n  s_cbranch_vccnz {lab('poll')}")
    else:
        A("  v_sub_f32 v10, v16, v9\n  v_exp_f32 v10, v10\n  s_nop 0\n  v_mul_f32 v11, v10, v17\n  s_nop 1")
        for r in (8, 4, 2, 1):
            dpp("v_add_f32", 11, 11, 11, f"row_ror:{r}"); A("  s_nop 1")
        A("  v_rcp_f32 v11, v11\n  s_nop 0\n  v_mul_f32 v10, v10, v11\n  s_waitcnt vmcnt(8)")
        A(f"  v_max3_u32 v9, v14, v{C}, v{C+1}\n  s_nop 0")
        dpp("v_mul_f32", 12, 10, C, "row_newbcast:0"); dpp("v_mul_f32", 13, 10, C+1, "row_newbcast:0")
        for sp in range(1, 16):
            if sp == 8: A("  s_waitcnt vmcnt(0)")
            A(f"  v_max3_u32 v9, v9, v{C+2*sp}, v{C+2*sp+1}")
            if sp == 15: A("  v_cmp_eq_u32 vcc, -1, v9")
            dpp("v_fmac_f32", 12, 10, C+2*sp, f"row_newbcast:{sp}"); dpp("v_fmac_f32", 13, 10, C+2*sp+1, f"row_newbcast:{sp}")
        A(f"  v_cvt_pk_bf16_f32 v12, v12, v13\n  s_nop 2\n  s_cbranch_vccnz {lab('poll')}")
    ts(5)
    A("  buffer_store_dword v12, v8, s[28:31], s57 offen")
    ts(6)
    A(f"{lab('fin')}:")
    if stamp:
        A("  s_waitcnt vmcnt(0)\n  s_memrealtime s[62:63]\n  s_getreg_b32 s69, hwreg(HW_REG_XCC_ID)\n  s_waitcnt lgkmcnt(0)")
        A(f"  s_mul_i32 s65, s2, 5\n  s_add_u32 s65, s65, s3\n  s_add_u32 s65, s65, 1\n  s_lshl_b32 s65, s65, 4\n  s_add_u32 s65, s65, {STAMP0}")
        A("  v_mov_b32 v0, s92\n  v_mov_b32 v1, s62\n  v_mov_b32 v2, s69\n  v_mov_b32 v3, s60\n  v_mov_b32 v4, s65")
        A("  s_mov_b64 exec, 1\n  global_store_dwordx4 v4, v[0:3], s[22:23]")
        A(f"  s_cmp_lg_u32 s3, 0\n  s_cbranch_scc1 {lab('end')}\n  s_mov_b64 exec, -1")
        A(f"  v_mbcnt_lo_u32_b32 v4, -1, 0\n  v_mbcnt_hi_u32_b32 v4, -1, v4\n  v_lshlrev_b32 v4, 2, v4\n  s_lshl_b32 s65, s2, 9\n  s_add_u32 s65, s65, {STAMP0+0x200000}\n  v_add_u32 v4, s65, v4")
        A("  global_store_dword v4, v100, s[22:23]\n  global_store_dword v4, v101, s[22:23] offset:256")
        A(f"  s_mov_b64 exec, 1\n  s_lshl_b32 s65, s2, 5\n  s_add_u32 s65, s65, {STAMP0+0x400000}\n  v_mov_b32 v4, s65\n  s_mov_b32 s90, s62")
        for n in range(8): A(f"  v_mov_b32 v{8+n}, s{76+2*n}")
        A("  global_store_dwordx4 v4, v[8:11], s[22:23]\n  global_store_dwordx4 v4, v[12:15], s[22:23] offset:16")
    A(f"{lab('end')}:\n  s_endpgm")
    kd = f""".section .rodata,"a"
.p2align 6
.amdhsa_kernel {kname}
  .amdhsa_next_free_vgpr 116
  .amdhsa_next_free_sgpr {96 if (stamp or jitter) else 72}
  .amdhsa_accum_offset 116
  .amdhsa_group_segment_fixed_size 0
  .amdhsa_kernarg_size 80
  .amdhsa_user_sgpr_count 2
  .amdhsa_user_sgpr_kernarg_segment_ptr 1
  .amdhsa_system_sgpr_workgroup_id_x 1
  .amdhsa_float_denorm_mode_32 3
.end_amdhsa_kernel
"""
    body = "\n".join(L) + "\n" + kd
    if standalone:
        return HEADER + f"; @launch grid=(256,1,1) block=(320,1,1) lds={LDS_BYTES}\n" + DOC + '.amdgcn_target "amdgcn-amd-amdhsa--gfx950"\n.text\n' + body
    return body + ".text\n"

if __name__ == "__main__":
    ap = argparse.ArgumentParser()
    ap.add_argument("-o", default=f"cdna_kernels/{NAME}.s")
    for k, d in (("W", 20), ("WV", 20), ("WXK", 22), ("WX", 22), ("F", 4), ("FV", 4)):
        ap.add_argument("--" + k, type=int, default=d)
    a = ap.parse_args()
    open(a.o, "w").write(gen(W=a.W, WV=a.WV, WXK=a.WXK, WX=a.WX, F=a.F, FV=a.FV))
```

```python
import sys
def meta(names, wg):
    s = ".amdgpu_metadata\n---\namdhsa.version: [1, 2]\namdhsa.kernels:\n"
    for n, (mw, vg) in names.items():
        s += f"""  - .name: {n}
    .symbol: {n}.kd
    .kernarg_segment_size: 80
    .kernarg_segment_align: 8
    .group_segment_fixed_size: 0
    .private_segment_fixed_size: 0
    .wavefront_size: 64
    .sgpr_count: 64
    .vgpr_count: {vg}
    .max_flat_workgroup_size: {mw}
    .args:
      - {{.name: kernargs, .size: 80, .offset: 0, .value_kind: by_value}}
"""
    s += "...\n.end_amdgpu_metadata\n"
    return s

def kd(name, vg, sg=64):
    acc = (vg + 3)//4*4
    if acc > 256: acc = 256
    return f""".section .rodata,"a"
.p2align 6
.amdhsa_kernel {name}
  .amdhsa_next_free_vgpr {vg}
  .amdhsa_next_free_sgpr {sg}
  .amdhsa_accum_offset {acc}
  .amdhsa_group_segment_fixed_size 0
  .amdhsa_kernarg_size 80
  .amdhsa_user_sgpr_count 2
  .amdhsa_user_sgpr_kernarg_segment_ptr 1
  .amdhsa_system_sgpr_workgroup_id_x 1
.end_amdhsa_kernel
.text
"""

TOT = 256 << 20
def bw_kernel(name, NW, NWG, DEPTH, flags, pattern, U=16, pairmap="hi", seg=1024, ldsdma=False, stamp=True, null=False, vgpr=0, xmask=255, WIN=0, two=False, skew=0, rot=0, prot=0, xmap=False, grp=0):
    tile = U*1024
    nwt = NW*NWG
    iters = TOT // (tile*nwt)
    assert iters*tile*nwt == TOT, (name, "not divisible")
    L = []
    A = L.append
    A(f".globl {name}\n.p2align 8\n.type {name},@function\n{name}:")
    A(f"  s_cmp_ge_u32 s2, {NWG}\n  s_cbranch_scc1 {name}_done")
    if stamp: A("  s_memrealtime s[30:31]\n  s_load_dwordx2 s[34:35], s[0:1], 72")
    A("  s_load_dwordx4 s[4:7], s[0:1], 8")
    A("  v_lshrrev_b32 v1, 6, v0")
    A("  v_and_b32 v0, 63, v0")
    A("  v_readfirstlane_b32 s3, v1")
    if seg == 1024:
        A("  v_lshlrev_b32 v0, 4, v0")
    elif seg == 256:
        A("  v_and_b32 v2, 15, v0\n  v_lshrrev_b32 v3, 4, v0\n  v_lshlrev_b32 v2, 4, v2\n  v_lshl_add_u32 v0, v3, 9, v2")
    elif seg == 64:
        A("  v_and_b32 v2, 15, v0\n  v_lshrrev_b32 v3, 4, v0\n  v_lshlrev_b32 v3, 4, v3\n  v_lshl_add_u32 v0, v2, 9, v3")
    A("  v_add_u32 v1, 0x1000, v0\n  v_add_u32 v2, 0x2000, v0\n  v_add_u32 v3, 0x3000, v0")
    if xmap:
        A("  s_mov_b32 s39, s2\n  s_and_b32 s18, s2, 7\n  s_lshr_b32 s19, s2, 3\n  s_lshl_b32 s18, s18, 5\n  s_or_b32 s2, s18, s19")
    wpp = NWG//16 if NWG >= 16 else 1
    if pairmap == "hi":
        A(f"  s_lshr_b32 s16, s2, {wpp.bit_length()-1}   ; pair\n  s_and_b32 s17, s2, {wpp-1} ; sub")
    else:
        A(f"  s_and_b32 s16, s2, 15\n  s_lshr_b32 s17, s2, 4")
    if pattern == 0:
        chunk = TOT//nwt
        A(f"  s_mul_i32 s18, s17, {NW}\n  s_add_u32 s18, s18, s3\n  s_mul_i32 s18, s18, {chunk}\n  s_lshl_b32 s20, s16, 24\n  s_add_u32 s20, s20, s18")
        stride = tile
    elif pattern == 1:
        chunk = TOT//NWG
        A(f"  s_mul_i32 s18, s17, {chunk}\n  s_mul_i32 s19, s3, {tile}\n  s_add_u32 s18, s18, s19\n  s_lshl_b32 s20, s16, 24\n  s_add_u32 s20, s20, s18")
        stride = tile*NW
    elif pattern == 2:
        A(f"  s_mul_i32 s18, s17, {NW}\n  s_add_u32 s18, s18, s3\n  s_mul_i32 s18, s18, {tile}\n  s_lshl_b32 s20, s16, 24\n  s_add_u32 s20, s20, s18")
        stride = tile*NW*wpp
    elif pattern == 5:
        assert NW == 1 and NWG == 256
        lg = grp.bit_length()-1
        A(f"  s_lshr_b32 s18, s2, {lg}\n  s_and_b32 s19, s2, {grp-1}\n  s_lshl_b32 s18, s18, {20+lg}\n  s_mul_i32 s19, s19, {tile}\n  s_add_u32 s20, s18, s19")
        stride = tile*grp
    elif pattern == 3:
        A(f"  s_mul_i32 s18, s2, {NW}\n  s_add_u32 s18, s18, s3\n  s_mul_i32 s20, s18, {tile}")
        stride = tile*nwt
    A("  s_waitcnt lgkmcnt(0)")
    A("  s_mov_b32 s8, s4\n  s_and_b32 s9, s5, 0xffff\n  s_mov_b32 s10, 0x10000000\n  s_mov_b32 s11, 0x20000")
    A("  s_mov_b32 s12, s6\n  s_and_b32 s13, s7, 0xffff\n  s_mov_b32 s14, 0x10000000\n  s_mov_b32 s15, 0x20000")
    A(f"  s_mov_b32 s22, 0")
    base = 8
    def ioff(j):
        if seg == 1024:
            o = j*1024
        elif seg == 256:
            o = (j & 1)*256 + (j >> 1)*2048
        elif seg == 64:
            o = (j & 7)*64 + (j >> 3)*8192
        return o >> 12, o & 4095
    import math
    per = U if two else 2*U
    if DEPTH <= per:
        assert per % DEPTH == 0; unroll = 1
    else:
        assert DEPTH % per == 0; unroll = DEPTH//per
    assert iters % unroll == 0, (name, iters, unroll)
    if ldsdma:
        A(f"  s_mul_i32 s23, s3, {DEPTH*1024}")
    if null: A(f"  s_branch {name}_fin")
    if xmask != 255: A(f"  s_getreg_b32 s36, hwreg(HW_REG_XCC_ID)\n  s_and_b32 s36, s36, 7\n  s_lshr_b32 s36, {xmask}, s36\n  s_and_b32 s36, s36, 1\n  s_cbranch_scc0 {name}_fin")
    if rot:
        assert pattern == 1
        chunk = TOT//NWG
        A(f"  s_mul_i32 s27, s2, {rot}\n  s_and_b32 s27, s27, {chunk-1}\n  s_and_b32 s28, s20, {(~(chunk-1)) & 0xffffffff}\n  s_add_u32 s20, s20, s27\n  s_and_b32 s20, s20, {chunk-1}\n  s_or_b32 s20, s20, s28")
    if prot:
        reg = (16<<20) if pattern == 2 else (grp<<20)
        lgr = reg.bit_length()-1
        A(f"  s_lshr_b32 s27, s20, {lgr}\n  s_mul_i32 s27, s27, {prot}\n  s_and_b32 s28, s20, {(~(reg-1)) & 0xffffffff}\n  s_add_u32 s20, s20, s27\n  s_and_b32 s20, s20, {reg-1}\n  s_or_b32 s20, s20, s28")
    A("  s_mov_b32 s25, s20")
    for ph in ([0,1] if two else [None]):
        if ph == 1:
            A("  s_mov_b32 s20, s25\n  s_mov_b32 s22, 0")
        A(f"{name}_loop{ph}:")
        n = 0
        for u in range(unroll):
            for arr in ([ph] if two else range(2)):
                for j in range(U):
                    slot = n % DEPTH
                    vr, im = ioff(j % 16)
                    srd = "s[8:11]" if arr == 0 else "s[12:15]"
                    so = "s20"
                    if U > 16:
                        so = "s24"
                        if j % 16 == 0: A(f"  s_add_u32 s24, s20, {(j//16)*16384}")
                    if skew and arr == 1:
                        if j % 16 == 0: A(f"  s_add_u32 s26, {so}, {skew}\n  s_and_b32 s26, s26, 0xfffffff")
                        so = "s26"
                    A(f"  s_waitcnt vmcnt({(WIN or DEPTH)-1})")
                    if ldsdma:
                        A(f"  s_add_u32 m0, s23, {slot*1024 - im}") if slot*1024-im >= 0 else A(f"  s_sub_u32 m0, s23, {im-slot*1024}")
                        A("  s_nop 0")
                        A(f"  buffer_load_dwordx4 v{vr}, {srd}, {so} offen offset:{im} {flags} lds")
                    else:
                        r = base + slot*4
                        A(f"  v_xor_b32 v4, v4, v{r}")
                        A(f"  buffer_load_dwordx4 v[{r}:{r+3}], v{vr}, {srd}, {so} offen offset:{im} {flags}")
                    n += 1
            A(f"  s_add_u32 s20, s20, {stride}")
            if rot: A(f"  s_and_b32 s20, s20, {TOT//NWG-1}\n  s_or_b32 s20, s20, s28")
            if prot: A(f"  s_and_b32 s20, s20, {reg-1}\n  s_or_b32 s20, s20, s28")
        A(f"  s_add_u32 s22, s22, {unroll}\n  s_cmp_lt_u32 s22, {iters}\n  s_cbranch_scc1 {name}_loop{ph}")
    A(f"{name}_fin:")
    A("  s_waitcnt vmcnt(0)")
    if stamp:
        A("  s_memrealtime s[32:33]\n  s_getreg_b32 s36, hwreg(HW_REG_XCC_ID)\n  s_getreg_b32 s37, hwreg(HW_REG_HW_ID)\n  s_waitcnt lgkmcnt(0)")
        if xmap: A("  s_mov_b32 s2, s39")
        A(f"  s_mul_i32 s38, s2, {NW}\n  s_add_u32 s38, s38, s3\n  s_lshl_b32 s38, s38, 4")
        A("  v_mov_b32 v0, s30\n  v_mov_b32 v1, s32\n  v_mov_b32 v2, s36\n  v_mov_b32 v3, s37\n  v_mov_b32 v4, s38")
        A("  s_mov_b64 exec, 1\n  global_store_dwordx4 v4, v[0:3], s[34:35]")
    A(f"{name}_done:\n  s_endpgm")
    vg = max(vgpr, base + (0 if ldsdma else DEPTH*4))
    return "\n".join(L) + "\n" + kd(name, vg), vg

if __name__ == "__main__":
    import json
    cfgs = json.load(open(sys.argv[1]))
    out = '.amdgcn_target "amdgcn-amd-amdhsa--gfx950"\n.text\n'
    names = {}
    specs = []
    for c in cfgs:
        nm = c.pop("name")
        s, vg = bw_kernel(nm, **c)
        out += s
        names[nm] = (c["NW"]*64, vg)
        lds = c["NW"]*c["DEPTH"]*1024 if c.get("ldsdma") else 0
        specs.append(f"{nm}={sys.argv[2][:-2]}.co@{nm}:{c['NWG']}:{c['NW']*64}:{lds}")
    out += meta(names, 0)
    open(sys.argv[2], "w").write(out)
    open(sys.argv[2][:-2]+".specs", "w").write(" ".join(specs))
```

```python
import sys
sys.path.insert(0,'scratch')
from gen_bw import kd, meta
def dyn(name, W=20, WV=None, F=8, WX=24, kflex=False, pubv=2, scales=True, half=0, auxb=640, contig=0):
    WV = WV or W
    L=[]; A=L.append
    def off(dst, s, t):
        if contig:
            A(f"  s_lshr_b32 s38, {s}, 1\n  s_mul_i32 {dst}, s38, {(64-F)*32768}\n  s_add_u32 {dst}, {dst}, {16*F*16384 - (F//2)*65536}\n  s_and_b32 s38, {s}, 1\n  s_lshl_b32 s38, s38, 15\n  s_add_u32 {dst}, {dst}, s38")
            A(f"  s_lshr_b32 s38, {t}, 1\n  s_lshl_b32 s38, s38, 16\n  s_add_u32 {dst}, {dst}, s38\n  s_and_b32 s38, {t}, 1\n  s_lshl_b32 s38, s38, 14\n  s_add_u32 {dst}, {dst}, s38")
            return
        A(f"  s_lshr_b32 s38, {s}, 1\n  s_lshl_b32 {dst}, s38, 21\n  s_and_b32 s38, {s}, 1\n  s_lshl_b32 s38, s38, 15\n  s_add_u32 {dst}, {dst}, s38")
        A(f"  s_lshr_b32 s38, {t}, 1\n  s_lshl_b32 s38, s38, 16\n  s_add_u32 {dst}, {dst}, s38\n  s_and_b32 s38, {t}, 1\n  s_lshl_b32 s38, s38, 14\n  s_add_u32 {dst}, {dst}, s38")
    A(f".globl {name}\n.p2align 8\n.type {name},@function\n{name}:")
    A(f"  s_cmp_ge_u32 s2, 256\n  s_cbranch_scc1 {name}_done")
    A("  s_memrealtime s[60:61]\n  s_load_dwordx8 s[4:11], s[0:1], 8\n  s_load_dwordx4 s[20:23], s[0:1], 64")
    A("  v_lshlrev_b32 v1, 4, v0\n  v_mov_b32 v10, 1\n  v_mov_b32 v20, -1\n  v_mov_b32 v21, -1\n  v_mov_b32 v22, -1\n  v_mov_b32 v23, -1")
    A("  s_lshr_b32 s50, s2, 4\n  s_and_b32 s51, s2, 7\n  s_bfe_u32 s52, s2, 0x10003\n  s_lshl1_add_u32 s51, s51, s52")
    A(f"  s_lshl_b32 s52, s50, 12\n  v_mov_b32 v11, s52\n  v_add_u32 v14, 2048, v11")
    A("  s_lshl_b32 s28, s50, 24\n  s_mov_b32 s26, 0x1000000\n  s_mov_b32 s27, 0x20000\n  s_mov_b32 s34, 0")
    A("  s_waitcnt lgkmcnt(0)")
    A("  s_mov_b32 s44, s22\n  s_mov_b32 s45, s23\n  s_mov_b32 s46, 0x1000000\n  s_mov_b32 s47, 0x20000")
    A("  s_add_u32 s24, s4, s28\n  s_addc_u32 s25, s5, 0")
    if scales:
        A("  s_mov_b32 s40, s8\n  s_mov_b32 s41, s9\n  s_mov_b32 s42, 0x400000\n  s_mov_b32 s43, 0x20000\n  s_lshl_b32 s53, s2, 14\n  s_mov_b32 m0, 0x10000")
        for i in range(16): A(f"  s_add_u32 s54, s53, {i*1024}\n  buffer_load_dwordx4 v1, s[40:43], s54 offen nt lds")
        A("  s_mov_b32 s40, s10\n  s_mov_b32 s41, s11")
        for i in range(16): A(f"  s_add_u32 s54, s53, {i*1024}\n  buffer_load_dwordx4 v1, s[40:43], s54 offen nt lds")
    def body(w, ng=4):
        for g in range(ng):
            A("  s_mov_b32 m0, s34")
            for i in range(4):
                A(f"  s_waitcnt vmcnt({w-1})\n  buffer_load_dwordx4 v1, s[24:27], s30 offen offset:{i*1024} nt lds")
            A("  s_add_u32 s30, s30, 0x1000\n  s_add_u32 s34, s34, 0x1000\n  s_and_b32 s34, s34, 0xffff")
    def tiles(label, t0, t1, w):
        A(f"  s_mov_b32 s33, {t0}\n{label}:")
        off("s30", "s51", "s33"); body(w)
        A(f"  s_add_u32 s33, s33, 1\n  s_cmp_lt_u32 s33, {t1}\n  s_cbranch_scc1 {label}")
    def store(soff, lanes40):
        if lanes40:
            n = auxb // 16
            A(f"  s_mov_b32 exec_lo, {hex((1 << min(n,32)) - 1)}\n  s_mov_b32 exec_hi, {hex((1 << max(n-32,0)) - 1)}")
        A(f"  buffer_store_dwordx4 v[20:23], v1, s[44:47], {soff} offen sc1\n  s_mov_b64 exec, -1")
    def clears():
        A("  s_lshl_b32 s54, s2, 11\n  s_add_u32 s54, s54, 0x400000"); store("s54", False); A("  s_add_u32 s54, s54, 1024"); store("s54", False)
    def pool(label, cnt, isk):
        A(f"  s_mov_b32 s40, 0\n  s_mov_b32 s55, 0\n{label}:")
        for par in range(2):
            A(f"  s_mov_b32 s42, s51\n  s_add_u32 s43, s40, 62\n  s_cmp_lt_u32 s40, 2\n  s_cbranch_scc1 {label}_own{par}")
            hv = half and not isk
            H = 16*(F - half)
            A(f"  v_readfirstlane_b32 s41, v{12+par}\n  s_cmp_ge_u32 s41, {16*F + (16*half if hv else 0)}\n  s_cbranch_scc1 {label}_end")
            if hv:
                A(f"  s_mov_b32 s55, 0\n  s_cmp_lt_u32 s41, {H}\n  s_cbranch_scc1 {label}_full{par}\n  s_sub_u32 s41, s41, {H}\n  s_and_b32 s55, s41, 1\n  s_add_u32 s55, s55, 1\n  s_lshr_b32 s41, s41, 1\n  s_add_u32 s41, s41, {H}\n{label}_full{par}:")
            A(f"  s_and_b32 s42, s41, 15\n  s_lshr_b32 s43, s41, 4")
            A(f"  s_mul_i32 s48, s50, {16*F}\n  s_add_u32 s48, s48, s41\n  s_mul_i32 s48, s48, 640\n  s_add_u32 s48, s48, 0x800000\n  s_mov_b32 m0, 0x10000\n  s_mov_b32 exec_hi, 0xff\n  s_waitcnt vmcnt({WX-1})")
            if isk:
                A("  buffer_load_dwordx4 v1, s[56:59], s48 offen nt lds\n  s_mov_b64 exec, -1"); store("s48", True)
            else:
                A("  buffer_load_dwordx4 v1, s[44:47], s48 offen sc1 lds\n  s_mov_b64 exec, -1")
            A(f"{label}_own{par}:")
            off("s30", "s42", "s43")
            if contig: A("  s_lshl_b32 s38, s41, 14\n  s_cmp_lt_u32 s40, 2\n  s_cselect_b32 s30, s30, s38")
            A(f"  s_waitcnt vmcnt({WX-1})\n  s_mov_b64 exec, 1\n  global_atomic_add v{12+par}, v{cnt}, v10, s[20:21] sc0 sc1\n  s_mov_b64 exec, -1")
            if half and not isk:
                A(f"  s_cmp_eq_u32 s55, 2\n  s_cselect_b32 s38, 0x2000, 0\n  s_add_u32 s30, s30, s38")
                body(WX, 2)
                A(f"  s_cmp_lg_u32 s55, 0\n  s_cbranch_scc1 {label}_h{par}")
                body(WX, 2)
                A(f"{label}_h{par}:\n  s_waitcnt vmcnt({min(WX-1, 17)})")
            else:
                body(WX)
            A("  s_add_u32 s40, s40, 1")
        A(f"  s_branch {label}\n{label}_end:")
    if kflex:
        A("  s_mov_b32 s56, s4\n  s_mov_b32 s57, s5\n  s_mov_b32 s58, 0x10000000\n  s_mov_b32 s59, 0x20000")
        tiles(name+"_k", F, 62, W)
        pool(name+"_kp", 14, True)
    else:
        tiles(name+"_k", 0, 64, W)
    A("  s_add_u32 s24, s6, s28\n  s_addc_u32 s25, s7, 0")
    tiles(name+"_v0", F, F+pubv+2, WV)
    if not kflex:
        for j in range(F):
            A(f"  s_mul_i32 s48, s50, {16*F}\n  s_add_u32 s48, s48, s51\n  s_add_u32 s48, s48, {16*j}\n  s_mul_i32 s48, s48, 640\n  s_add_u32 s48, s48, 0x800000"); store("s48", True)
    clears()
    tiles(name+"_v1", F+pubv+2, 62, WV)
    pool(name+"_vp", 11, False)
    A("  s_waitcnt vmcnt(0)")
    A("  s_memrealtime s[62:63]\n  s_getreg_b32 s64, hwreg(HW_REG_XCC_ID)\n  s_waitcnt lgkmcnt(0)")
    clears()
    A("  s_lshl_b32 s65, s2, 4")
    A("  v_mov_b32 v0, s60\n  v_mov_b32 v1, s62\n  v_mov_b32 v2, s64\n  v_mov_b32 v3, s40\n  v_mov_b32 v4, s65")
    A("  s_mov_b64 exec, 1\n  global_store_dwordx4 v4, v[0:3], s[22:23]")
    A(f"{name}_done:\n  s_endpgm")
    return "\n".join(L)+"\n"+kd(name, 32, 80)
def build(fn, cfg):
    out = '.amdgcn_target "amdgcn-amd-amdhsa--gfx950"\n.text\n'
    names={}; specs=[]
    for kw in cfg:
        n = "e"+"".join(f"_{k}{int(v)}" for k,v in kw.items())
        out+=dyn(n,**kw); names[n]=(64,32); specs.append(f"{n}={fn}.co@{n}:256:64:100000")
    out+=meta(names,0)
    open(fn+".s","w").write(out); open(fn+".specs","w").write(" ".join(specs))
if __name__ == "__main__":
    b=dict(kflex=True,WX=22)
    build("dyn9",[dict(F=4,**b),dict(F=4,contig=1,**b),dict(F=6,**b),dict(F=6,contig=1,**b),dict(F=8,contig=1,**b),dict(F=4,contig=1,W=21,**b),dict(F=6,contig=1,W=21,**b)])
```

```python
import struct, sys, argparse, os
from gen1 import NAME, HEADER, f32hex, meta

RING, LOG, KS, KZ, VS, VZ, STG = 0, 65536, 98304, 114688, 131072, 135168, 139264
STGS = 1280
AUX = STG
MX = STG + 8 * STGS
MISC = MX + 256
oLAST, oPART, oLASTK, oPARTK, oCIDX = 0, 16, 32, 48, 64
LDS_BYTES = 150016
WS_REC, WS_ML, WS_CNT, WS_AUX, AUXS = 0, 0x80000, 0x90000, 0xb0000, 640
WS_BYTES = 0x200000
STAMP0 = 0x800000
OOB = "0x7ffffff0"

DOC = """; ---------------------------------------------------------------------------------------------
; ---------------------------------------------------------------------------------------------
"""

def gen(W=20, WV=20, WXK=22, WX=22, F=4, FV=4, stamp=0, kname=None, standalone=True, spin=1 << 20, CHK=36, PUBV=1,
        nochk=False, nochkk=False, mapping="same", jitter=0, kh0=1, skip0=True, arrsp=0, clr="k", cstr=4096, gk=None, gv=None, xscale=0, early=True, flagsp=True, cspread=True, light=0, fast=True, hoist=True, leadk=2, leadv=2, touch=0, sfl="nt"):
    kname = kname or NAME + "_kernel"
    NS = 64 - F
    NSV = 64 - FV
    assert F % 4 == 0 and FV % 2 == 0 and F <= FV <= F + 4 and WS_AUX + 16 * 16 * FV * AUXS <= WS_BYTES
    assert all(17 <= w <= 32 for w in (W, WV, WXK, WX)) and CHK + 4 <= NSV - 5 and PUBV + 3 < CHK
    L = []
    A = L.append
    tag = "L" + (kname[-12:].strip("_") if not standalone else "")
    lab = lambda s: f"{tag}_{s}"
    njit = [0]
    def jit(reg, other="s2"):
        if not jitter: return
        njit[0] += 1
        A(f"  s_mul_i32 s70, {reg}, {jitter}\n  s_add_u32 s70, s70, {other}\n  s_add_u32 s70, s70, s3\n  s_mul_i32 s70, s70, 0x9e3779b1\n  s_lshr_b32 s70, s70, 29")
        A(f"  s_cmp_lg_u32 s70, {njit[0] & 7}\n  s_cbranch_scc1 {lab(f'j{njit[0]}')}\n  s_sleep {20 + 9*(njit[0] % 5)}\n{lab(f'j{njit[0]}')}:")
    c2 = f32hex((128 ** -0.5) * 1.4426950408889634)

    A(f".globl {kname}\n.p2align 8\n.type {kname},@function\n{kname}:")
    A(f"  s_cmp_ge_u32 s2, 256\n  s_cbranch_scc1 {lab('end')}")
    if stamp: A("  s_memrealtime s[92:93]")
    A("  s_load_dwordx16 s[4:19], s[0:1], 0")
    A("  s_load_dwordx4 s[20:23], s[0:1], 64")
    A("  v_lshrrev_b32 v1, 6, v0")
    A("  v_and_b32 v0, 63, v0                    ; lane")
    A("  v_readfirstlane_b32 s3, v1")
    A("  s_lshr_b32 s50, s2, 4")
    if mapping == "same":
        A("  s_and_b32 s51, s2, 7")
        A("  s_bfe_u32 s52, s2, 0x10003              ; u")
        A("  s_lshl1_add_u32 s51, s51, s52")
    else:
        A("  s_and_b32 s51, s2, 15\n  s_and_b32 s52, s2, 1\n  s_nop 0")
    A(f"  s_cmp_lg_u32 s3, 0\n  s_cbranch_scc1 {lab('cons')}")

    A("  s_setprio 3")
    A("  v_lshrrev_b32 v5, 5, v0\n  v_xor_b32 v1, v0, v5")
    A("  v_lshlrev_b32 v1, 4, v1")
    A("  v_xor_b32 v2, 64, v1\n  v_xor_b32 v3, 0x80, v1\n  v_xor_b32 v4, 0xc0, v1")
    A("  s_lshr_b32 s53, s51, 1\n  s_lshl_b32 s53, s53, 21\n  s_lshl_b32 s52, s52, 15\n  s_add_u32 s53, s53, s52")
    A(f"  s_add_u32 s53, s53, {F//2*65536}")
    A("  s_lshl_b32 s28, s50, 24\n  s_mov_b32 s26, 0x1000000\n  s_mov_b32 s27, 0x20000")
    A("  s_mov_b32 s30, s53\n  s_mov_b32 s34, 0")
    A(f"  s_mov_b32 s31, {8 + ((W - 17) >> 2)}")
    A(f"  s_add_u32 s33, s53, {(NS-2)//2*65536}")
    A("  s_waitcnt lgkmcnt(0)")
    A("  s_add_u32 s24, s6, s28\n  s_addc_u32 s25, s7, 0")
    def ldloop(label, w):
        ib = w - 17
        A(f"{label}:")
        jit("s30")
        A("  s_mov_b32 m0, s34")
        for i in range(4):
            A(f"  s_waitcnt vmcnt({w-1})")
            if i == (ib & 3):
                A(f"  s_sub_u32 s31, s31, 1\n  s_cbranch_scc0 {label}_nb\n  s_barrier\n  s_mov_b32 s31, 3\n{label}_nb:")
            A(f"  buffer_load_dwordx4 v{1+i}, s[24:27], s30 offen offset:{i*1024} {sfl} lds")
        A("  s_add_u32 s30, s30, 0x1000\n  s_add_u32 s34, s34, 0x1000\n  s_and_b32 s34, s34, 0xffff")
        A("  s_and_b32 s35, s30, 0x7000\n  s_cselect_b32 s35, 0, 0x8000\n  s_add_u32 s30, s30, s35")
        A(f"  s_cmp_lt_u32 s30, s33\n  s_cbranch_scc1 {label}")
    def pool(label, isk, w):
        ib = w - 17
        A(f"  v_mov_b32 v8, {MISC}\n  ds_read_b32 v9, v8 offset:{oPARTK if isk else oPART}")
        A(f"  s_mul_i32 s37, s50, {cstr}\n  s_add_u32 s37, s37, {WS_CNT + (2048 if isk else 0)}\n  v_mov_b32 v11, s37")
        gd = gk if isk else gv
        P = 16*(F if isk else FV)
        if gd: A(f"  s_mov_b32 s58, 2\n  s_mov_b32 s54, 1\n  s_mov_b32 s55, 1\n  s_mov_b32 s41, {gd[2]}")
        A("  v_mov_b32 v12, -1\n  v_mov_b32 v13, -1\n  s_add_u32 s36, s40, 2")
        A("  s_waitcnt lgkmcnt(0)\n  v_readfirstlane_b32 s48, v9")
        A(f"{label}:")
        for par in range(2):
            A(f"  s_cmp_lt_u32 s40, s36\n  s_cbranch_scc1 {label}_own{par}")
            if gd: A(f"  v_readfirstlane_b32 s42, v{12+par}\n  s_add_u32 s41, s41, 1\n  s_cmp_lg_u32 s{54+par}, 0\n  s_cselect_b32 s41, s42, s41")
            elif (leadk if isk else leadv) == 1: A("  s_waitcnt vmcnt(16)\n  v_readfirstlane_b32 s41, v12")
            else: A(f"  v_readfirstlane_b32 s41, v{12+par}")
            A(f"  s_cmp_ge_u32 s41, {16*(F if isk else FV)}\n  s_cbranch_scc1 {label}_end")
            A("  s_bfe_u32 s42, s41, 0x30001\n  s_lshl_b32 s30, s42, 21\n  s_and_b32 s42, s41, 1\n  s_lshl_b32 s42, s42, 15\n  s_add_u32 s30, s30, s42")
            A("  s_lshr_b32 s42, s41, 5\n  s_lshl_b32 s42, s42, 16\n  s_add_u32 s30, s30, s42\n  s_bfe_u32 s42, s41, 0x10004\n  s_lshl_b32 s42, s42, 14\n  s_add_u32 s30, s30, s42")
            if isk:
                A("  s_lshr_b32 s42, s30, 14\n  s_lshl_b32 s43, s50, 10\n  s_add_u32 s42, s42, s43")
                A("  v_mad_u64_u32 v[18:19], s[56:57], v14, s42, v[16:17]")
                A(f"  s_and_b32 s43, s40, 7\n  s_mul_i32 s43, s43, {STGS}\n  s_add_u32 m0, s43, {STG + 512}\n  s_mov_b64 exec, s[38:39]")
                A(f"  s_waitcnt vmcnt({w-1})\n  global_load_lds_dwordx4 v[18:19], off nt")
            else:
                A(f"  s_mul_i32 s42, s41, {AUXS}\n  s_add_u32 s42, s42, s49")
                A(f"  s_lshr_b32 s43, s34, 4\n  s_add_u32 m0, s43, {AUX}\n  s_mov_b64 exec, s[38:39]")
                A(f"  s_waitcnt vmcnt({w-1})\n  buffer_load_dwordx4 v1, s[44:47], s42 offen sc1 lds")
            A(f"{label}_own{par}:")
            A(f"  s_cmp_eq_u32 s48, 0\n  s_cbranch_scc1 {label}_noc{par}\n  s_mov_b64 exec, 1")
            if isk:
                A(f"  s_and_b32 s43, s40, 7\n  s_lshl2_add_u32 s43, s43, {MISC + oCIDX}\n  v_mov_b32 v8, s43\n  v_mov_b32 v9, s41\n  ds_write_b32 v8, v9")
            if gd:
                A(f"  s_mov_b32 s{54+par}, 0\n  s_sub_u32 s58, s58, 1\n  s_cmp_ge_u32 s58, 2\n  s_cbranch_scc1 {label}_noc{par}")
                A(f"  s_cmp_lt_u32 s41, {gd[0]}\n  s_cselect_b32 s43, {gd[1]}, 1\n  s_mov_b32 s{54+par}, 1\n  s_add_u32 s58, s58, s43\n  v_mov_b32 v10, s43")
            elif gk: A("  v_mov_b32 v10, 1")
            if (leadk if isk else leadv) == 1:
                A(f"  s_add_u32 s43, s40, 1\n  s_cmp_lt_u32 s43, s36\n  s_cbranch_scc1 {label}_noc{par}")
                A(f"  s_waitcnt vmcnt({w-1})\n  global_atomic_add v12, v11, v10, s[22:23] sc0 sc1")
            else:
                A(f"  s_waitcnt vmcnt({w-1})\n  global_atomic_add v{12+par}, v11, v10, s[22:23] sc0 sc1")
            A(f"{label}_noc{par}:\n  s_mov_b64 exec, -1")
            jit("s40")
            for g in range(4):
                A("  s_mov_b32 m0, s34")
                for i in range(4):
                    if 4*g + i == ib: A(f"  s_waitcnt vmcnt({w-1}) lgkmcnt(0)\n  s_barrier")
                    else: A(f"  s_waitcnt vmcnt({w-1})")
                    A(f"  buffer_load_dwordx4 v{1+i}, s[24:27], s30 offen offset:{i*1024} {sfl} lds")
                A("  s_add_u32 s30, s30, 0x1000\n  s_add_u32 s34, s34, 0x1000")
            A("  s_and_b32 s34, s34, 0xffff\n  s_add_u32 s40, s40, 1")
        A(f"  s_branch {label}\n{label}_end:")
        A(f"  s_sub_u32 s42, s40, 1\n  v_mov_b32 v8, {MISC}\n  v_mov_b32 v9, s42\n  ds_write_b32 v8, v9 offset:{oLASTK if isk else oLAST}")
    def setup():
        A(f"  s_mov_b32 s40, {NS-2}\n  s_mov_b32 s41, 0")
        A("  s_mov_b32 s38, -1\n  s_mov_b32 s39, 0xff\n  v_mov_b32 v10, 1")
        A(f"  s_mov_b32 s44, s22\n  s_mov_b32 s45, s23\n  s_mov_b32 s46, {WS_BYTES}\n  s_mov_b32 s47, 0x20000")
        A(f"  s_mul_i32 s49, s50, {16*FV*AUXS}\n  s_add_u32 s49, s49, {WS_AUX}")
        A("  v_mov_b32 v16, s14\n  v_mov_b32 v17, s15\n  v_mov_b32 v14, 64")
        for (lo, mlo, mhi, sub, stride) in ((16, "0xffffff0", None, 64, None), (10, "0xffffff00", "0xff", 128, 256), (12, "0xff000000", "0xff", 384, None)):
            A(f"  s_sub_u32 s42, s{lo}, {sub}\n  s_subb_u32 s43, s{lo+1}, 0\n  s_mov_b32 exec_lo, {mlo}\n  s_mov_b32 exec_hi, {mhi or 0}")
            A("  v_mov_b32 v16, s42\n  v_mov_b32 v17, s43")
            if stride: A(f"  v_mov_b32 v14, {stride}")
        A("  s_mov_b64 exec, -1\n  v_lshlrev_b32 v8, 4, v0\n  v_add_co_u32 v16, vcc, v16, v8\n  s_nop 1\n  v_addc_co_u32 v17, vcc, 0, v17, vcc")
    if hoist:
        A(f"{lab('l0')}:\n  s_mov_b32 m0, s34\n  s_add_u32 s34, s34, 0x1000")
        for i in range(4): A(f"  buffer_load_dwordx4 v{1+i}, s[24:27], s30 offen offset:{i*1024} {sfl} lds")
        A(f"  s_add_u32 s30, s30, 0x1000\n  s_cmp_lt_u32 s34, {((W-1)//4)*4096}\n  s_cbranch_scc1 {lab('l0')}")
        A(f"  s_sub_u32 s31, s31, {(W-1)//4}")
        setup()
        ldloop(lab("lk"), W)
    else:
        ldloop(lab("lk"), W)
        setup()
    pool(lab("pk"), True, WXK)
    A(f"  s_add_u32 s24, s8, s28\n  s_addc_u32 s25, s9, 0\n  s_add_u32 s30, s53, {(FV-F)//2*65536}")
    for i in range(4): A(f"  v_lshlrev_b32 v{1+i}, 4, v0")
    A(f"  s_mov_b32 s31, {(WV-17) >> 2}\n  s_add_u32 s33, s53, {(NS-2)//2*65536}\n  s_add_u32 s40, s40, {NSV-2}\n  s_waitcnt lgkmcnt(0)")
    ldloop(lab("lv"), WV)
    pool(lab("pv"), False, WX)
    A("  s_waitcnt vmcnt(16) lgkmcnt(0)\n  s_barrier\n  s_waitcnt vmcnt(0)\n  s_barrier")
    if stamp:
        A("  s_memrealtime s[62:63]\n  s_getreg_b32 s69, hwreg(HW_REG_XCC_ID)\n  s_waitcnt lgkmcnt(0)")
        A(f"  s_mul_i32 s65, s2, 5\n  s_lshl_b32 s65, s65, 4\n  s_add_u32 s65, s65, {STAMP0}")
        A("  v_mov_b32 v0, s92\n  v_mov_b32 v1, s62\n  v_mov_b32 v2, s69\n  v_mov_b32 v3, s42\n  v_mov_b32 v4, s65")
        A("  s_mov_b64 exec, 1\n  global_store_dwordx4 v4, v[0:3], s[22:23]")
    A("  s_endpgm")

    vI, vQ, vL16 = 1, 2, 3
    aK = [4, 5, 6, 7]
    aS, aZ, aL, vM = 8, 9, 10, 11
    aV, aP, aVS, vLs = 12, 13, 14, 15
    QF, KR, KSr, KZr, OA, OB, ACC = 16, 32, 48, 56, 64, 72, 80
    T0, T1, T2, T3 = 92, 93, 94, 95
    vLAST, vArr, vChk, aMisc = 96, 97, 98, 99
    vL8, vML = 104, 105
    aKx = [106, 107, 108, 109]
    bS, bZ, bL = 110, 111, 112
    A(f"  ; ======== consumer waves\n{lab('cons')}:")
    A("  s_sub_u32 s3, s3, 1")
    A(f"  v_and_b32 v{vI}, 15, v0\n  v_lshrrev_b32 v{vQ}, 4, v0\n  v_lshlrev_b32 v{vL16}, 4, v0")
    A(f"  v_and_b32 v{T0}, 3, v{vI}")
    A(f"  v_bfe_u32 v{T1}, v{vI}, 2, 1")
    A(f"  v_lshlrev_b32 v{T2}, 4, v{vQ}\n  v_lshl_add_u32 v{bS}, v{T1}, 7, v{T2}\n  v_lshl_add_u32 v{T3}, v{T0}, 8, v{bS}")
    A(f"  v_add_u32 v{aS}, {KS + F*256}, v{bS}")
    A(f"  v_lshrrev_b32 v{T1}, 5, v0\n  v_and_b32 v{aV}, 31, v0\n  v_lshlrev_b32 v{aV}, 4, v{aV}\n  v_lshl_add_u32 v{aV}, v{T1}, 10, v{aV}")
    A(f"  v_lshrrev_b32 v{T1}, 3, v0\n  v_and_b32 v{aP}, 7, v0\n  v_lshlrev_b32 v{aP}, 4, v{aP}\n  v_lshl_add_u32 v{aP}, v{T1}, 8, v{aP}")
    A("  s_lshr_b32 s53, s51, 1\n  s_lshl_b32 s53, s53, 7\n  s_lshl1_add_u32 s53, s52, s53\n  s_lshl_b32 s52, s50, 10\n  s_add_u32 s53, s53, s52")
    A("  s_lshl_b32 s54, s53, 6\n  s_lshl_b32 s53, s53, 8\n  s_lshl_b32 s55, s3, 10\n  s_lshl_b32 s57, s3, 11")
    A("  s_mov_b32 s26, 0x4000\n  s_mov_b32 s27, 0x20000\n  s_mov_b32 s30, 32256\n  s_mov_b32 s31, 0x20000\n  s_mov_b32 s34, 32256\n  s_mov_b32 s35, 0x20000")
    if xscale & 1: A("  s_mov_b32 s30, 0\n  s_mov_b32 s34, 0")
    A("  s_mov_b32 s38, 8064\n  s_mov_b32 s39, 0x20000\n  s_mov_b32 s42, 8064\n  s_mov_b32 s43, 0x20000")
    if xscale & 2: A("  s_mov_b32 s38, 0\n  s_mov_b32 s42, 0")
    A(f"  s_cmp_lt_u32 s3, {F//4 if skip0 else 0}\n  s_cselect_b32 s56, {OOB}, s57")
    A("  s_waitcnt lgkmcnt(0)\n  s_mov_b32 s24, s4\n  s_mov_b32 s25, s5")
    A(f"  buffer_load_dwordx4 v[{KR}:{KR+3}], v{T3}, s[24:27], s52 offen")
    A(f"  buffer_load_dwordx4 v[{KR+4}:{KR+7}], v{T3}, s[24:27], s52 offen offset:64")
    A("  s_add_u32 s28, s10, s53\n  s_addc_u32 s29, s11, 0\n  s_add_u32 s32, s12, s53\n  s_addc_u32 s33, s13, 0")
    A("  s_add_u32 s36, s14, s54\n  s_addc_u32 s37, s15, 0\n  s_add_u32 s40, s16, s54\n  s_addc_u32 s41, s17, 0")
    for k in range(4):
        if k: A(f"  s_add_u32 s56, s57, {k*8192}")
        A(f"  s_add_u32 m0, s55, {KS + k*4096}\n  s_nop 0\n  buffer_load_dwordx4 v{aV}, s[28:31], s56 offen nt lds")
        A(f"  s_add_u32 m0, s55, {KZ + k*4096}\n  s_nop 0\n  buffer_load_dwordx4 v{aV}, s[32:35], s56 offen nt lds")
    A(f"  s_add_u32 m0, s55, {VS}\n  s_nop 0\n  buffer_load_dwordx4 v{aP}, s[36:39], s57 offen nt lds")
    A(f"  s_add_u32 m0, s55, {VZ}\n  s_nop 0\n  buffer_load_dwordx4 v{aP}, s[40:43], s57 offen nt lds")
    A(f"  s_mov_b32 s44, s22\n  s_mov_b32 s45, s23\n  s_mov_b32 s46, {WS_BYTES}\n  s_mov_b32 s47, 0x20000")
    A(f"  s_mul_i32 s53, s50, {cstr}\n  s_add_u32 s53, s53, {WS_CNT}\n  s_add_u32 s54, s51, s3\n  s_cmp_eq_u32 s54, 0\n  s_cselect_b32 s53, s53, {OOB}")
    A(f"  v_mov_b32 v{T1}, 0\n  s_mov_b64 exec, 1")
    A(f"  buffer_store_dword v{T1}, v{vL16}, s[44:47], s53 offen sc1\n  buffer_store_dword v{T1}, v{vL16}, s[44:47], s53 offen offset:1024 sc1\n  buffer_store_dword v{T1}, v{vL16}, s[44:47], s53 offen offset:2048 sc1\n  s_mov_b64 exec, -1")
    nvm = 15
    A("  s_lshl2_add_u32 s56, s50, s3\n  s_lshl_b32 s56, s56, 13")
    A("  s_lshl_b32 s57, s51, 9\n  s_add_u32 s57, s57, s56")
    A(f"  s_lshl_b32 s63, s50, 9\n  s_add_u32 s63, s63, {WS_ML}")
    A(f"  s_lshl_b32 s68, s51, 5\n  s_add_u32 s68, s68, s63\n  s_cmp_eq_u32 s3, 0\n  s_cselect_b32 s68, s68, {OOB}")
    A(f"  v_lshlrev_b32 v{vL8}, 3, v0\n  v_lshlrev_b32 v{vML}, 3, v{vQ}")
    A(f"  v_and_b32 v{T1}, 7, v{vI}\n  v_lshrrev_b32 v{T2}, 3, v{vI}")
    A(f"  v_lshlrev_b32 v{bZ}, 4, v{vQ}\n  v_lshl_add_u32 v{bZ}, v{T2}, 7, v{bZ}\n  v_add_u32 v{aZ}, {KZ + F*256}, v{bZ}")
    A(f"  v_lshlrev_b32 v{T2}, 4, v{T2}\n  v_lshl_add_u32 v{T2}, v{vQ}, 1, v{T2}")
    A(f"  v_and_b32 v{T3}, 6, v{T1}\n  v_lshlrev_b32 v{T3}, 1, v{T3}\n  v_and_or_b32 v{T3}, v{T1}, 1, v{T3}")
    A(f"  v_xor_b32 v{T2}, v{T2}, v{T3}\n  v_lshlrev_b32 v{T2}, 4, v{T2}\n  v_lshl_add_u32 v{T2}, v{T1}, 9, v{T2}")
    A(f"  s_lshl_b32 s58, s3, 12\n  v_add_u32 v{aK[0]}, s58, v{T2}")
    A(f"  v_xor_b32 v{aK[1]}, 16, v{aK[0]}\n  v_xor_b32 v{aK[2]}, 0x80, v{aK[0]}\n  v_xor_b32 v{aK[3]}, 0x90, v{aK[0]}")
    A(f"  v_and_b32 v{T1}, 1, v{vQ}\n  v_lshrrev_b32 v{T2}, 1, v{vQ}\n  v_lshl_add_u32 v{T1}, v{T1}, 2, v{T2}\n  v_lshlrev_b32 v{T1}, 2, v{T1}")
    A(f"  v_lshl_add_u32 v{T1}, v{T0}, 7, v{T1}\n  s_lshl_b32 s58, s3, 5\n  v_add_u32 v{bL}, s58, v{T1}\n  v_add_u32 v{aL}, {LOG + F*512}, v{bL}")
    A(f"  v_lshlrev_b32 v{T1}, 3, v{vI}\n  v_lshl_add_u32 v{T1}, v{vQ}, 12, v{T1}\n  s_lshl_b32 s58, s3, 7\n  v_add_u32 v{aV}, s58, v{T1}")
    A(f"  v_lshrrev_b32 v{T1}, 2, v{vI}\n  v_lshlrev_b32 v{T2}, 5, v{vQ}\n  v_lshl_add_u32 v{T2}, v{T1}, 7, v{T2}\n  v_add_u32 v{aP}, {LOG + FV*512}, v{T2}")
    A(f"  v_lshlrev_b32 v{aVS}, 4, v{vQ}\n  v_add_u32 v{aVS}, {VS + FV*64}, v{aVS}")
    A(f"  v_mov_b32 v{vM}, 0xff800000\n  v_mov_b32 v{vLs}, 0")
    A(f"  v_mov_b32 v{aMisc}, {MISC}\n  v_mov_b32 v{T0}, -1\n  ds_write_b32 v{aMisc}, v{T0} offset:{oLAST}\n  ds_write_b32 v{aMisc}, v{T0} offset:{oLASTK}")
    A("  s_mov_b32 s48, 0x000f000f\n  s_mov_b32 s49, 0x000f000f\n  s_mov_b32 s58, 0xffff0000\n  s_mov_b32 s38, -1\n  s_mov_b32 s39, 0xff")
    A(f"  s_waitcnt vmcnt({nvm-2})")
    for n in range(8):
        A(f"  v_lshlrev_b32 v{QF+2*n}, 16, v{KR+n}\n  v_and_b32 v{QF+2*n+1}, s58, v{KR+n}")
    for n in range(16):
        A(f"  v_mul_f32 v{QF+n}, {c2}, v{QF+n}        ; q * 128^-0.5 * log2(e)" if n == 0 else f"  v_mul_f32 v{QF+n}, {c2}, v{QF+n}")
    if flagsp: A("  s_lshr_b32 s71, s51, 1\n  s_add_u32 s71, s71, 4")
    else: A("  s_mov_b32 s71, 8")
    A(f"  s_mov_b32 s59, 0\n  s_cmp_eq_u32 s51, 0\n  s_cselect_b32 s55, {kh0}, s71\n  s_cmp_eq_u32 s3, 0\n  s_cselect_b32 s55, s55, 99")
    if touch: A(f"  s_cmp_eq_u32 s3, 1\n  s_cselect_b32 s55, {touch}, s55")
    A(f"  s_waitcnt vmcnt({nvm-4})")
    def tl(vr, expr):
        A(f"  s_waitcnt lgkmcnt(0)\n  s_memrealtime s[66:67]\n{expr}\n  s_waitcnt lgkmcnt(0)\n  v_writelane_b32 v{vr}, s66, m0")
    def kstep(ak, ok, oz, ol, pooled):
        e = 1 if pooled else 0
        jit("s59")
        A(f"  ds_read_b128 v[{KSr}:{KSr+3}], v{aS} offset:{oz}\n  ds_read_b128 v[{KSr+4}:{KSr+7}], v{aS} offset:{oz+64}")
        for n in range(4): A(f"  ds_read_b128 v[{KR+4*n}:{KR+4*n+3}], v{ak[n]} offset:{ok}")
        A(f"  ds_read_b128 v[{KZr}:{KZr+3}], v{aZ} offset:{oz}\n  ds_read_b128 v[{KZr+4}:{KZr+7}], v{aZ} offset:{oz+64}")
        if pooled: A(f"  ds_read_b32 v{vLAST}, v{aMisc} offset:{oLASTK}")
        for m in range(2):
            A(f"  s_waitcnt lgkmcnt({7-m+e})")
            for n in range(4):
                r = KSr + 4*m + n
                A(f"  v_lshlrev_b32 v{T0}, 16, v{r}\n  v_and_b32 v{T1}, s58, v{r}")
                A(f"  v_mul_f32 v{T0}, v{T0}, v{QF+8*m+2*n}\n  v_mul_f32 v{T1}, v{T1}, v{QF+8*m+2*n+1}")
                A(f"  v_cvt_pk_bf16_f32 v{OB+4*m+n}, v{T0}, v{T1}")
        for m in range(2):
            A(f"  s_waitcnt lgkmcnt({4-2*m+e})")
            for n in range(8): A(f"  v_cvt_f32_i32 v{KR+8*m+n}, v{KR+8*m+n}")
            for n in range(4): A(f"  v_cvt_pk_bf16_f32 v{OA+4*m+n}, v{KR+8*m+2*n}, v{KR+8*m+2*n+1}")
        A("  s_waitcnt lgkmcnt(0)")
        for n in range(4): A(f"  v_xor_b32 v{KZr+n}, 0x80008000, v{KZr+n}")
        A(f"  v_mfma_f32_16x16x32_bf16 v[{ACC}:{ACC+3}], v[{OA}:{OA+3}], v[{OB}:{OB+3}], 0")
        for n in range(4, 8): A(f"  v_xor_b32 v{KZr+n}, 0x80008000, v{KZr+n}")
        A(f"  v_mfma_f32_16x16x32_bf16 v[{ACC}:{ACC+3}], v[{OA+4}:{OA+7}], v[{OB+4}:{OB+7}], v[{ACC}:{ACC+3}]")
        A(f"  v_mfma_f32_16x16x32_bf16 v[{ACC}:{ACC+3}], v[{KZr}:{KZr+3}], v[{OB}:{OB+3}], v[{ACC}:{ACC+3}]")
        A(f"  v_mfma_f32_16x16x32_bf16 v[{ACC}:{ACC+3}], v[{KZr+4}:{KZr+7}], v[{OB+4}:{OB+7}], v[{ACC}:{ACC+3}]")
        if pooled: A(f"  v_readfirstlane_b32 s61, v{vLAST}\n  s_nop 6")
        else: A("  s_nop 7")
        A(f"  v_permlane32_swap_b32 v{ACC}, v{ACC+1}\n  v_permlane32_swap_b32 v{ACC+2}, v{ACC+3}\n  s_nop 1")
        A(f"  v_add_f32_dpp v{T0}, v{ACC+1}, v{ACC} row_shl:4 row_mask:0xf bank_mask:0xf bound_ctrl:1")
        A(f"  v_add_f32_dpp v{T1}, v{ACC+3}, v{ACC+2} row_shl:4 row_mask:0xf bank_mask:0xf bound_ctrl:1")
        A(f"  s_mov_b64 exec, s[48:49]\n  ds_write_b32 v{aL}, v{T0} offset:{ol}\n  ds_write_b32 v{aL}, v{T1} offset:{ol+8}")
        if not pooled: A(f"  v_max3_f32 v{vM}, v{vM}, v{T0}, v{T1}")
        A("  s_mov_b64 exec, -1")
        jit("s59")
    def publish(r, skip):
        A(f"  s_and_b32 s54, s53, 3\n  s_cmp_lg_u32 s54, s3\n  s_cbranch_scc1 {skip}\n  s_cmp_lt_u32 s53, {NS}\n  s_cbranch_scc1 {skip}")
        A(f"  s_and_b32 s53, s53, 7\n  s_lshl2_add_u32 s54, s53, {MISC + oCIDX}\n  s_mul_i32 s53, s53, {STGS}\n  s_add_u32 s53, s53, {STG}")
        A(f"  v_mov_b32 v{T3}, s54\n  v_add_u32 v{T2}, s53, v{vL16}\n  s_mov_b32 exec_hi, 0xff")
        A(f"  ds_read_b32 v{T3}, v{T3}\n  ds_read_b128 v[{r}:{r+3}], v{T2}\n  s_mul_i32 s54, s50, {16*FV}\n  s_waitcnt lgkmcnt(0)")
        A(f"  v_readfirstlane_b32 s53, v{T3}\n  s_add_u32 s53, s53, s54\n  s_mul_i32 s53, s53, {AUXS}\n  s_add_u32 s53, s53, {WS_AUX}")
        A(f"  buffer_store_dwordx4 v[{r}:{r+3}], v{vL16}, s[44:47], s53 offen sc1\n  s_mov_b64 exec, -1")
    dbgaddr = lambda: A(f"  s_lshl_b32 s53, s50, 4\n  v_mov_b32 v{T2}, s53")
    arraddr = lambda: A(f"  s_mul_i32 s53, s50, {cstr}\n  s_add_u32 s53, s53, {WS_CNT + 1024}\n  v_mov_b32 v{T2}, s53")
    def mlstore(r):
        A("  s_mov_b32 exec_lo, 0x00010001\n  s_mov_b32 exec_hi, 0x00010001")
        A(f"  buffer_store_dwordx2 v[{r}:{r+1}], v{vML}, s[44:47], s68 offen sc1\n  s_mov_b64 exec, -1")
    def clear(r):
        A(f"  v_mov_b32 v{r}, -1\n  v_mov_b32 v{r+1}, -1")
        A(f"  buffer_store_dwordx2 v[{r}:{r+1}], v{vL8}, s[44:47], s57 offen sc1")
        mlstore(r)
    A(f"  ; ---- phase K\n{lab('k')}:")
    for k in range(4):
        if k == 3: A("  s_waitcnt vmcnt(0)")
        A("  s_barrier")
        if stamp: tl(100, f"  s_lshl2_add_u32 m0, s59, {k}")
        kstep(aK, k*16384, k*256, k*512, False)
    A(f"  v_add_u32 v{aS}, 0x400, v{aS}\n  v_add_u32 v{aZ}, 0x400, v{aZ}\n  v_add_u32 v{aL}, 0x800, v{aL}")
    A(f"  s_cmp_eq_u32 s59, s55\n  s_cbranch_scc1 {lab('khook')}\n{lab('kn')}:")
    A(f"  s_add_u32 s59, s59, 1\n  s_cmp_lt_u32 s59, {NS//4}\n  s_cbranch_scc1 {lab('k')}")
    if clr == "k": clear(OB)
    A(f"  ds_read_b32 v{vLAST}, v{aMisc} offset:{oLASTK}\n  s_mov_b32 s59, {NS}\n  s_waitcnt lgkmcnt(0)\n  v_readfirstlane_b32 s61, v{vLAST}")
    A(f"{lab('kx')}:\n  s_cmp_lt_u32 s61, s59\n  s_cbranch_scc1 {lab('kdone')}")
    A("  s_and_b32 s53, s59, 3\n  s_lshl_b32 s53, s53, 14")
    for n in range(4): A(f"  v_add_u32 v{aKx[n]}, s53, v{aK[n]}")
    A(f"  s_and_b32 s53, s59, 7\n  s_mul_i32 s53, s53, {STGS}\n  s_add_u32 s53, s53, {STG}")
    A(f"  v_add_u32 v{aL}, s53, v{bL}\n  s_add_u32 s54, s53, 640\n  v_add_u32 v{aS}, s54, v{bS}\n  s_add_u32 s54, s53, 896\n  v_add_u32 v{aZ}, s54, v{bZ}")
    A("  s_barrier\n  s_sub_u32 s53, s59, 2")
    publish(OA, lab("kxp"))
    A(f"{lab('kxp')}:")
    kstep(aKx, 0, 0, 0, True)
    A(f"  s_add_u32 s59, s59, 1\n  s_branch {lab('kx')}")
    A(f"{lab('khook')}:")
    if touch:
        A(f"  s_cmp_eq_u32 s3, 0\n  s_cbranch_scc1 {lab('kh0')}")
        A("  s_lshl_b32 s53, s50, 24\n  s_add_u32 s24, s8, s53\n  s_addc_u32 s25, s9, 0\n  s_mov_b32 s26, 0x1000000")
        A(f"  v_lshlrev_b32 v{T2}, 21, v0\n  s_mov_b64 exec, 0xff")
        A(f"  buffer_load_dword v{vChk}, v{T2}, s[24:27], 0 offen nt")
        A(f"  s_add_u32 s24, s6, s53\n  s_addc_u32 s25, s7, 0\n  buffer_load_dword v{vArr}, v{T2}, s[24:27], 0 offen nt")
        A("  s_mov_b32 s28, s18\n  s_mov_b32 s29, s19\n  s_mov_b32 s30, 0x4000\n  s_mov_b64 exec, 1")
        A(f"  buffer_load_dword v{vLAST}, v{vL16}, s[28:31], s52 offen nt\n  buffer_load_dword v{aKx[0]}, v{vL16}, s[44:47], s57 offen sc1")
        A(f"  s_branch {lab('khx')}\n{lab('kh0')}:")
    dbgaddr()
    A(f"  v_mov_b32 v{T3}, 1\n  s_mov_b64 exec, 1\n  s_cmp_lg_u32 s59, {kh0}\n  s_cbranch_scc1 {lab('kh1')}")
    A(f"  s_mov_b32 s55, s71")
    A(f"  global_store_dword v{T2}, v{T3}, s[20:21] sc1\n  s_branch {lab('khx')}")
    A(f"{lab('kh1')}:\n  s_cmp_lg_u32 s59, s71\n  s_cbranch_scc1 {lab('kh2')}")
    A(f"  global_load_dword v{vChk}, v{T2}, s[20:21] sc1\n  s_add_u32 s55, s71, 1\n  s_branch {lab('khx')}")
    A(f"{lab('kh2')}:")
    if nochkk: A(f"  v_mov_b32 v{vChk}, 0")
    A(f"  s_cmp_eq_u32 s51, 0\n  s_cselect_b32 s53, 1, 0\n  v_or_b32 v{T3}, s53, v{vChk}\n  ds_write_b32 v{aMisc}, v{T3} offset:{oPARTK}\n  v_readfirstlane_b32 s64, v{T3}")
    A(f"{lab('khx')}:\n  s_mov_b64 exec, -1\n  s_branch {lab('kn')}")
    ACC0, ACC1, ACCZ = 80, 84, 88
    A(f"{lab('kdone')}:")
    if clr == "kd": clear(OB)
    A(f"  v_and_b32 v{T0}, 3, v{vI}\n  v_lshlrev_b32 v{T1}, 2, v{vQ}\n  v_lshl_add_u32 v{T0}, v{T0}, 6, v{T1}")
    A(f"  s_lshl_b32 s53, s3, 4\n  s_add_u32 s53, s53, {MX}\n  v_add_u32 v{T0}, s53, v{T0}")
    A(f"  s_mov_b64 exec, s[48:49]\n  ds_write_b32 v{T0}, v{vM}\n  s_mov_b64 exec, -1")
    A(f"  v_lshrrev_b32 v{T1}, 2, v{vI}\n  v_lshlrev_b32 v{T1}, 6, v{T1}\n  v_add_u32 v{T1}, {MX}, v{T1}")
    for n in range(12): A(f"  v_mov_b32 v{ACC0+n}, 0")
    A(f"  s_mov_b32 s60, s59\n  s_add_u32 s61, s59, {NSV}\n  s_add_u32 s55, s59, {PUBV}\n  s_mov_b32 s62, 0")
    A(f"  s_and_b32 s53, s59, 3\n  s_lshl_b32 s53, s53, 14\n  v_add_u32 v{aV}, s53, v{aV}")
    A("  s_waitcnt lgkmcnt(0)\n  s_barrier")
    if stamp: tl(101, "  s_mov_b32 m0, 0")
    for n in range(4): A(f"  ds_read_b128 v[{KR+4*n}:{KR+4*n+3}], v{T1} offset:{16*n}")
    A("  s_waitcnt lgkmcnt(0)")
    A(f"  v_max3_f32 v{vM}, v{KR}, v{KR+1}, v{KR+2}")
    for n in range(3, 15, 2): A(f"  v_max3_f32 v{vM}, v{vM}, v{KR+n}, v{KR+n+1}")
    A(f"  v_max_f32 v{vM}, v{vM}, v{KR+15}\n  s_branch {lab('v0')}")
    A(f"{lab('hook')}:")
    A(f"  s_add_u32 s62, s62, 1\n  s_cmp_lg_u32 s62, 1\n  s_cbranch_scc1 {lab('h1')}")
    A("  s_sub_u32 s53, s60, 1\n  s_sub_u32 s54, s53, s3\n  s_and_b32 s54, s54, 3\n  s_sub_u32 s53, s53, s54")
    A(f"  s_cmp_ge_u32 s54, 2\n  s_cbranch_scc1 {lab('hp')}")
    publish(KZr, lab("hp"))
    A(f"{lab('hp')}:")
    if FV > F:
        A(f"  s_cmp_ge_u32 s3, {FV-F}\n  s_cbranch_scc1 {lab('hq')}")
        A(f"  s_lshl_b32 s54, s3, 9\n  s_add_u32 s54, s54, {LOG + F*512}\n  v_add_u32 v{T2}, s54, v{vL16}\n  s_lshl_b32 s53, s3, 6")
        A(f"  s_add_u32 s54, s53, {VS + F*64 - 512}\n  s_mov_b32 exec_lo, 0\n  s_mov_b32 exec_hi, 0xf\n  v_add_u32 v{T2}, s54, v{vL16}")
        A(f"  s_add_u32 s54, s53, {VZ + F*64 - 576}\n  s_mov_b32 exec_hi, 0xf0\n  v_add_u32 v{T2}, s54, v{vL16}\n  s_mov_b64 exec, s[38:39]")
        A(f"  ds_read_b128 v[{KR}:{KR+3}], v{T2}")
        A(f"  s_mul_i32 s53, s50, {16*FV}\n  s_add_u32 s54, s3, {F}\n  s_lshl4_add_u32 s53, s54, s53\n  s_add_u32 s53, s53, s51\n  s_mul_i32 s53, s53, {AUXS}\n  s_add_u32 s53, s53, {WS_AUX}")
        A(f"  s_waitcnt lgkmcnt(0)\n  buffer_store_dwordx4 v[{KR}:{KR+3}], v{vL16}, s[44:47], s53 offen sc1\n  s_mov_b64 exec, -1\n{lab('hq')}:")
    if clr == "v": clear(KZr + 4)
    A(f"  s_add_u32 s55, s55, 2\n  s_branch {lab('v1')}")
    A(f"{lab('h1')}:\n  s_cmp_lg_u32 s62, 2\n  s_cbranch_scc1 {lab('h2')}")
    A("  s_waitcnt vmcnt(0)")
    if arrsp: A(f"  s_mul_i32 s53, s51, {arrsp}\n  s_add_u32 s55, s55, s53")
    assert PUBV + 3 + 15*arrsp + 6 < CHK
    A(f"  s_add_u32 s55, s55, 1\n  s_cmp_eq_u32 s3, 0\n  s_cselect_b32 s55, s55, 0\n  s_branch {lab('v1')}")
    A(f"{lab('h2')}:\n  s_mov_b64 exec, 1\n  s_cmp_lg_u32 s62, 3\n  s_cbranch_scc1 {lab('h3')}")
    A(f"  s_cmp_lg_u32 s64, 0\n  s_cbranch_scc1 {lab('h2a')}\n  s_mov_b32 s55, {spin}")
    dbgaddr()
    A(f"{lab('h2w')}:                                   ; counters not yet known to be zeroed: wait for the word")
    A(f"  global_load_dword v{vChk}, v{T2}, s[20:21] sc1\n  s_sub_u32 s55, s55, 1\n  s_waitcnt vmcnt(0)\n  s_cbranch_scc1 {lab('h2a')}")
    A(f"  v_readfirstlane_b32 s64, v{vChk}\n  s_cmp_eq_u32 s64, 0\n  s_cbranch_scc1 {lab('h2w')}")
    A(f"{lab('h2a')}:")
    arraddr()
    A(f"  v_mov_b32 v{T1}, 1\n  global_atomic_add v{vArr}, v{T2}, v{T1}, s[22:23] sc0 sc1")
    A(f"  s_add_u32 s55, s60, {CHK}\n  s_branch {lab('hx')}")
    A(f"{lab('h3')}:\n  s_waitcnt vmcnt(0)\n  s_cmp_lg_u32 s62, 4\n  s_cbranch_scc1 {lab('h4')}")
    arraddr()
    A(f"  global_load_dword v{vChk}, v{T2}, s[22:23] sc1\n  s_add_u32 s55, s55, 3\n  s_branch {lab('hx')}")
    A(f"{lab('h4')}:")
    if nochk: A(f"  v_mov_b32 v{vChk}, 0")
    A(f"  v_add_u32 v{vArr}, 1, v{vArr}\n  v_max_u32 v{T0}, v{vArr}, v{vChk}\n  v_lshrrev_b32 v{T0}, 4, v{T0}")
    A(f"  ds_write_b32 v{aMisc}, v{T0} offset:{oPART}")
    A(f"{lab('hx')}:\n  s_mov_b64 exec, -1\n  s_branch {lab('v1')}")
    SL, VSr, VZr, VR, PA, B0, B1, U = 16, 24, 28, 32, 64, 72, 76, 48
    def preads(flex):
        A(f"  ds_read_b128 v[{SL}:{SL+3}], v{aP}\n  ds_read_b128 v[{SL+4}:{SL+7}], v{aP} offset:16")
        A(f"  ds_read_b128 v[{VSr}:{VSr+3}], v{aVS} offset:{512 if flex else 0}\n  ds_read_b128 v[{VZr}:{VZr+3}], v{aVS} offset:{576 if flex else 4096}")
    def pprep(flex):
        jit("s59")
        A("  s_waitcnt lgkmcnt(2)")
        if flex:
            A(f"  v_max3_f32 v{T0}, v{SL}, v{SL+1}, v{SL+2}\n  v_max3_f32 v{T0}, v{T0}, v{SL+3}, v{SL+4}")
            A(f"  v_max3_f32 v{T0}, v{T0}, v{SL+5}, v{SL+6}\n  v_max3_f32 v{T0}, v{T0}, v{SL+7}, v{vM}")
            A(f"  v_mov_b32 v{T1}, v{T0}\n  s_nop 1\n  v_permlane32_swap_b32 v{T0}, v{T1}\n  s_nop 0\n  v_max_f32 v{T0}, v{T0}, v{T1}")
            A(f"  v_mov_b32 v{T1}, v{T0}\n  s_nop 1\n  v_permlane16_swap_b32 v{T0}, v{T1}\n  s_nop 0\n  v_max_f32 v{T0}, v{T0}, v{T1}")
            A(f"  v_sub_f32 v{T1}, v{vM}, v{T0}\n  v_exp_f32 v{T1}, v{T1}\n  v_mov_b32 v{vM}, v{T0}")
        for n in range(8): A(f"  v_sub_f32 v{SL+n}, v{SL+n}, v{vM}")
        if flex:
            A(f"  v_mul_f32 v{vLs}, v{vLs}, v{T1}")
            for qq in range(4): A(f"  v_mov_b32_dpp v{T2}, v{T1} row_newbcast:{4*qq} row_mask:{1<<qq:#x} bank_mask:0xf")
        for n in range(8): A(f"  v_exp_f32 v{SL+n}, v{SL+n}")
        if flex:
            for r in (ACC0, ACC1, ACCZ): A(f"  v_mul_f32 v{r}, v{r}, v{T2}")
        A("  s_waitcnt lgkmcnt(1)")
        for n in range(4): A(f"  v_lshlrev_b32 v{U+2*n}, 16, v{VSr+n}\n  v_and_b32 v{U+2*n+1}, s58, v{VSr+n}")
        for n in range(8): A(f"  v_mul_f32 v{U+n}, v{U+n}, v{SL+n}")
        for n in range(4): A(f"  v_cvt_pk_bf16_f32 v{PA+n}, v{U+2*n}, v{U+2*n+1}")
        for n in range(8): A(f"  v_add_f32 v{vLs}, v{vLs}, v{SL+n}")
        A("  s_waitcnt lgkmcnt(0)")
        A(f"  v_mfma_f32_16x16x32_bf16 v[{ACCZ}:{ACCZ+3}], v[{PA}:{PA+3}], v[{VZr}:{VZr+3}], v[{ACCZ}:{ACCZ+3}]")
    def vpart(pre):
        jit("s59")
        for n in range(8): A(f"  ds_read_b64 v[{VR+2*n}:{VR+2*n+1}], v{aV} offset:{n*512}")
        A(f"  ds_read_b32 v{vLAST}, v{aMisc} offset:{oLAST}")
        if pre: preads(True)
        A(f"  v_add_u32 v{aV}, 0x4000, v{aV}\n  v_and_b32 v{aV}, 0xffff, v{aV}")
        for part in range(4):
            A(f"  s_waitcnt lgkmcnt({(7-2*part if part < 3 else 0) + (4 if pre else 0)})")
            b = VR + 4*part
            for n in range(4): A(f"  v_cvt_f32_i32 v{b+n}, v{b+n}")
            A(f"  v_cvt_pk_bf16_f32 v{B0+part}, v{b}, v{b+2}\n  v_cvt_pk_bf16_f32 v{B1+part}, v{b+1}, v{b+3}")
        A(f"  v_readfirstlane_b32 s53, v{vLAST}")
        A(f"  v_mfma_f32_16x16x32_bf16 v[{ACC0}:{ACC0+3}], v[{PA}:{PA+3}], v[{B0}:{B0+3}], v[{ACC0}:{ACC0+3}]")
        A(f"  v_mfma_f32_16x16x32_bf16 v[{ACC1}:{ACC1+3}], v[{PA}:{PA+3}], v[{B1}:{B1+3}], v[{ACC1}:{ACC1+3}]")
    A(f"  ; ---- phase V\n{lab('v0')}:")
    preads(False)
    A(f"  v_add_u32 v{aP}, 0x200, v{aP}\n  v_add_u32 v{aVS}, 64, v{aVS}")
    pprep(False)
    A(f"  s_cmp_eq_u32 s59, s60\n  s_cbranch_scc1 {lab('v1')}\n  s_barrier")
    if stamp: tl(101, "  s_sub_u32 m0, s59, s60")
    A(f"  s_cmp_eq_u32 s59, s55\n  s_cbranch_scc1 {lab('hook')}\n{lab('v1')}:")
    vpart(False)
    A(f"  s_add_u32 s59, s59, 1\n  s_cmp_lt_u32 s59, s61\n  s_cbranch_scc1 {lab('v0')}")
    A(f"  s_cmp_lt_u32 s53, s59\n  s_cbranch_scc1 {lab('vend')}")
    A(f"  v_subrev_u32 v{aS}, {LOG + 64*512 - AUX}, v{aP}\n  v_subrev_u32 v{aZ}, {VS + 64*64 - AUX}, v{aVS}")
    A(f"  s_and_b32 s54, s59, 3\n  s_lshl_b32 s54, s54, 10\n  v_add_u32 v{aP}, s54, v{aS}\n  v_add_u32 v{aVS}, s54, v{aZ}")
    preads(True)
    A(f"{lab('vy')}:")
    pprep(True)
    A(f"  s_add_u32 s59, s59, 1\n  s_and_b32 s54, s59, 3\n  s_lshl_b32 s54, s54, 10\n  v_add_u32 v{aP}, s54, v{aS}\n  v_add_u32 v{aVS}, s54, v{aZ}\n  s_barrier")
    vpart(True)
    A(f"  s_cmp_ge_u32 s53, s59\n  s_cbranch_scc1 {lab('vy')}\n  s_waitcnt lgkmcnt(0)")
    A(f"{lab('vend')}:")
    ts = lambda n: A(f"  s_memrealtime s[{76+2*n}:{77+2*n}]") if stamp else None
    if stamp:
        for n in range(76, 92): A(f"  s_mov_b32 s{n}, 0")
    ts(0)
    R = 16
    jit("s59")
    A(f"  ; ---- partial result of this workgroup\n  v_mov_b32 v{T0}, v{vLs}\n  ds_read_b32 v{T3}, v{aMisc} offset:{oPART}\n  s_lshl_b32 s54, s3, 2")
    bc = lambda d, x, qq: A(f"  v_mov_b32_dpp v{d}, v{x} row_newbcast:{4*qq} row_mask:{1<<qq:#x} bank_mask:0xf")
    if fast:
        A(f"  v_permlane32_swap_b32 v{T0}, v{vLs}\n  v_min_u32 v{vM}, -2, v{vM}\n  v_add_f32 v{vLs}, v{T0}, v{vLs}\n  v_mov_b32 v{T0}, v{vLs}")
        bc(R+2, vM, 0); bc(R+2, vM, 1)
        A(f"  v_permlane16_swap_b32 v{T0}, v{vLs}")
        bc(R+2, vM, 2)
        A(f"  v_add_f32 v{vLs}, v{T0}, v{vLs}")
        bc(R+2, vM, 3)
        A(f"  v_min_u32 v{vLs}, -2, v{vLs}\n  v_sub_f32 v{R}, v{ACC0}, v{ACCZ}\n  v_sub_f32 v{R+1}, v{ACC1}, v{ACCZ}")
        bc(R+3, vLs, 0)
        A(f"  v_min_u32 v{R}, -2, v{R}\n  v_min_u32 v{R+1}, -2, v{R+1}")
        A(f"  buffer_store_dwordx2 v[{R}:{R+1}], v{vL8}, s[44:47], s57 offen sc1")
        for qq in range(1, 4): bc(R+3, vLs, qq)
        mlstore(R + 2)
    else:
        A(f"  v_permlane32_swap_b32 v{T0}, v{vLs}\n  s_nop 0\n  v_add_f32 v{vLs}, v{T0}, v{vLs}")
        A(f"  v_mov_b32 v{T0}, v{vLs}\n  s_nop 1\n  v_permlane16_swap_b32 v{T0}, v{vLs}")
        A(f"  v_sub_f32 v{R}, v{ACC0}, v{ACCZ}\n  v_sub_f32 v{R+1}, v{ACC1}, v{ACCZ}\n  v_add_f32 v{vLs}, v{T0}, v{vLs}")
        A(f"  v_min_u32 v{R}, -2, v{R}\n  v_min_u32 v{R+1}, -2, v{R+1}")
        A(f"  buffer_store_dwordx2 v[{R}:{R+1}], v{vL8}, s[44:47], s57 offen sc1")
        A(f"  v_min_u32 v{vLs}, -2, v{vLs}\n  v_min_u32 v{vM}, -2, v{vM}\n  s_nop 1")
        for qq in range(4): A(f"  v_mov_b32_dpp v{R+2}, v{vM} row_newbcast:{4*qq} row_mask:{1<<qq:#x} bank_mask:0xf")
        for qq in range(4): A(f"  v_mov_b32_dpp v{R+3}, v{vLs} row_newbcast:{4*qq} row_mask:{1<<qq:#x} bank_mask:0xf")
        mlstore(R + 2)
    ts(1)
    if cspread: A("  s_and_b32 s53, s50, 3\n  s_add_u32 s54, s54, s53")
    A(f"  s_cmp_lg_u32 s54, s51\n  s_cbranch_scc1 {lab('fin')}")
    A(f"  v_add_u32 v4, 0x1000, v{vL8}\n  v_lshl_add_u32 v5, v{vI}, 5, v{vML}")
    A("  s_mov_b32 s28, s18\n  s_mov_b32 s29, s19\n  s_mov_b32 s30, 0x4000\n  s_mov_b32 s31, 0x20000")
    A(f"  v_lshlrev_b32 v8, 2, v{vI}\n  v_lshl_add_u32 v8, v{vQ}, 8, v8")
    A(f"  s_lshl_b32 s57, s3, 6\n  s_add_u32 s57, s57, s52\n  s_mov_b32 s55, {spin}")
    A(f"  s_waitcnt lgkmcnt(0)\n  v_readfirstlane_b32 s53, v{T3}\n  s_cmp_lg_u32 s53, 0\n  s_cbranch_scc1 {lab('lite' if light else 'poll')}")
    arraddr()
    A(f"{lab('arr')}:                                   ; not yet known that all granules were marked: wait for the count")
    A(f"  global_load_dword v10, v{T2}, s[22:23] sc1\n  s_sub_u32 s55, s55, 1\n  s_waitcnt vmcnt(0)")
    A(f"  s_cbranch_scc1 {lab('fin')}\n  v_readfirstlane_b32 s53, v10\n  s_cmp_lt_u32 s53, 16\n  s_cbranch_scc1 {lab('arr')}")
    C = 20
    dpp = lambda op, d, a, b, c: A(f"  {op}_dpp v{d}, v{a}, v{b} {c} row_mask:0xf bank_mask:0xf")
    if light:
        A(f"  s_branch {lab('lite')}\n{lab('again')}:\n  s_bcnt1_i32_b64 s53, vcc\n  s_cmp_le_u32 s53, {4*light}\n  s_cbranch_scc1 {lab('poll')}")
        A(f"{lab('lite')}:\n  buffer_load_dwordx2 v[16:17], v5, s[44:47], s63 offen sc1\n  s_sub_u32 s55, s55, 1\n  s_cbranch_scc1 {lab('fin')}\n  s_waitcnt vmcnt(0)")
        A(f"  v_max_u32 v14, v16, v17\n  v_cmp_eq_u32 vcc, -1, v14\n  s_nop 4\n  s_branch {lab('again')}")
    A(f"{lab('poll')}:")
    A("  buffer_load_dwordx2 v[16:17], v5, s[44:47], s63 offen sc1      ; lane (split, head): {M, L}")
    for sp in range(16):
        A(f"  buffer_load_dwordx2 v[{C+2*sp}:{C+2*sp+1}], v{vL8 if sp < 8 else 4}, s[44:47], s56 offen offset:{(sp&7)*512} sc1")
    A(f"  s_sub_u32 s55, s55, 1\n  s_cbranch_scc1 {lab('fin')}\n  s_waitcnt vmcnt(16)")
    if early:
        A(f"  v_max_u32 v14, v16, v17\n  v_cmp_eq_u32 vcc, -1, v14\n  v_mov_b32 v9, v16\n  s_nop 3\n  s_cbranch_vccnz {lab('again' if light else 'poll')}")
    else:
        A("  v_max_u32 v14, v16, v17\n  v_mov_b32 v9, v16\n  s_nop 1")
    for r in (8, 4, 2, 1):
        dpp("v_max_f32", 9, 9, 9, f"row_ror:{r}"); A("  s_nop 1")
    if fast:
        A(f"  v_sub_f32 v10, v16, v9\n  v_exp_f32 v10, v10\n  s_waitcnt vmcnt(8)\n  v_mul_f32 v11, v10, v17")
        for sp in range(16):
            if sp == 8: A("  s_waitcnt vmcnt(0)")
            A(f"  v_max3_u32 v9, v{14 if sp == 0 else 9}, v{C+2*sp}, v{C+2*sp+1}")
            if sp == 15: A("  v_cmp_eq_u32 vcc, -1, v9")
            op = "v_mul_f32" if sp == 0 else "v_fmac_f32"
            dpp(op, 12, 10, C+2*sp, f"row_newbcast:{sp}"); dpp(op, 13, 10, C+2*sp+1, f"row_newbcast:{sp}")
            if sp < 4: dpp("v_add_f32", 11, 11, 11, f"row_ror:{8 >> sp}")
            if sp == 4: A("  v_rcp_f32 v11, v11")
        A(f"  v_mul_f32 v12, v12, v11\n  v_mul_f32 v13, v13, v11\n  v_cvt_pk_bf16_f32 v12, v12, v13\n  s_nop 0\n  s_cbranch_vccnz {lab('poll')}")
    else:
        A("  v_sub_f32 v10, v16, v9\n  v_exp_f32 v10, v10\n  s_nop 0\n  v_mul_f32 v11, v10, v17\n  s_nop 1")
        for r in (8, 4, 2, 1):
            dpp("v_add_f32", 11, 11, 11, f"row_ror:{r}"); A("  s_nop 1")
        A("  v_rcp_f32 v11, v11\n  s_nop 0\n  v_mul_f32 v10, v10, v11\n  s_waitcnt vmcnt(8)")
        A(f"  v_max3_u32 v9, v14, v{C}, v{C+1}\n  s_nop 0")
        dpp("v_mul_f32", 12, 10, C, "row_newbcast:0"); dpp("v_mul_f32", 13, 10, C+1, "row_newbcast:0")
        for sp in range(1, 16):
            if sp == 8: A("  s_waitcnt vmcnt(0)")
            A(f"  v_max3_u32 v9, v9, v{C+2*sp}, v{C+2*sp+1}")
            if sp == 15: A("  v_cmp_eq_u32 vcc, -1, v9")
            dpp("v_fmac_f32", 12, 10, C+2*sp, f"row_newbcast:{sp}"); dpp("v_fmac_f32", 13, 10, C+2*sp+1, f"row_newbcast:{sp}")
        A(f"  v_cvt_pk_bf16_f32 v12, v12, v13\n  s_nop 2\n  s_cbranch_vccnz {lab('poll')}")
    ts(5)
    A("  buffer_store_dword v12, v8, s[28:31], s57 offen")
    ts(6)
    A(f"{lab('fin')}:")
    if stamp:
        A("  s_waitcnt vmcnt(0)\n  s_memrealtime s[62:63]\n  s_getreg_b32 s69, hwreg(HW_REG_XCC_ID)\n  s_waitcnt lgkmcnt(0)")
        A(f"  s_mul_i32 s65, s2, 5\n  s_add_u32 s65, s65, s3\n  s_add_u32 s65, s65, 1\n  s_lshl_b32 s65, s65, 4\n  s_add_u32 s65, s65, {STAMP0}")
        A("  v_mov_b32 v0, s92\n  v_mov_b32 v1, s62\n  v_mov_b32 v2, s69\n  v_mov_b32 v3, s60\n  v_mov_b32 v4, s65")
        A("  s_mov_b64 exec, 1\n  global_store_dwordx4 v4, v[0:3], s[22:23]")
        A(f"  s_cmp_lg_u32 s3, 0\n  s_cbranch_scc1 {lab('end')}\n  s_mov_b64 exec, -1")
        A(f"  v_mbcnt_lo_u32_b32 v4, -1, 0\n  v_mbcnt_hi_u32_b32 v4, -1, v4\n  v_lshlrev_b32 v4, 2, v4\n  s_lshl_b32 s65, s2, 9\n  s_add_u32 s65, s65, {STAMP0+0x200000}\n  v_add_u32 v4, s65, v4")
        A("  global_store_dword v4, v100, s[22:23]\n  global_store_dword v4, v101, s[22:23] offset:256")
        A(f"  s_mov_b64 exec, 1\n  s_lshl_b32 s65, s2, 5\n  s_add_u32 s65, s65, {STAMP0+0x400000}\n  v_mov_b32 v4, s65\n  s_mov_b32 s90, s62")
        for n in range(8): A(f"  v_mov_b32 v{8+n}, s{76+2*n}")
        A("  global_store_dwordx4 v4, v[8:11], s[22:23]\n  global_store_dwordx4 v4, v[12:15], s[22:23] offset:16")
    A(f"{lab('end')}:\n  s_endpgm")
    kd = f""".section .rodata,"a"
.p2align 6
.amdhsa_kernel {kname}
  .amdhsa_next_free_vgpr 116
  .amdhsa_next_free_sgpr {96 if (stamp or jitter) else 72}
  .amdhsa_accum_offset 116
  .amdhsa_group_segment_fixed_size 0
  .amdhsa_kernarg_size 80
  .amdhsa_user_sgpr_count 2
  .amdhsa_user_sgpr_kernarg_segment_ptr 1
  .amdhsa_system_sgpr_workgroup_id_x 1
  .amdhsa_float_denorm_mode_32 3
.end_amdhsa_kernel
"""
    body = "\n".join(L) + "\n" + kd
    if standalone:
        return HEADER + f"; @launch grid=(256,1,1) block=(320,1,1) lds={LDS_BYTES}\n" + DOC + '.amdgcn_target "amdgcn-amd-amdhsa--gfx950"\n.text\n' + body
    return body + ".text\n"

if __name__ == "__main__":
    ap = argparse.ArgumentParser()
    ap.add_argument("-o", default=f"cdna_kernels/{NAME}.s")
    for k, d in (("W", 20), ("WV", 20), ("WXK", 22), ("WX", 22), ("F", 4), ("FV", 4)):
        ap.add_argument("--" + k, type=int, default=d)
    a = ap.parse_args()
    open(a.o, "w").write(gen(W=a.W, WV=a.WV, WXK=a.WXK, WX=a.WX, F=a.F, FV=a.FV))
```
